```python
import torch

def _softmax(x, axis=-1):
    return torch.softmax(x, dim=axis)
def _gelu(x):
    return torch.nn.functional.gelu(x, approximate="tanh")
def _silu(x):
    return torch.nn.functional.silu(x)
def _sigmoid(x):
    return torch.sigmoid(x)
def _layernorm(x, axis=-1, eps=1e-5):
    m = x.mean(dim=axis, keepdim=True)
    v = x.var(dim=axis, keepdim=True, unbiased=False)
    return (x - m) / torch.sqrt(v + eps)
def _scatter_add(tgt, idx, src, axis=0):
    return tgt.clone().index_add_(axis, idx, src)
def _segment_sum(src, seg, n):
    out = torch.zeros((n,) + src.shape[1:], dtype=src.dtype)
    return out.index_add_(0, seg, src)
def _pad(x, pw):
    flat = tuple(v for pair in reversed(pw) for v in pair)
    return torch.nn.functional.pad(x, flat)

kernel_name = 'parallel_sum__grouped_kv_mqa__glu_gated_glu__prompt'

def setup_inputs():

    _w = (lambda a: (lambda t: t.to(torch.bfloat16) if t.is_floating_point() else t)(torch.as_tensor(a)))
    def _A_setup():
        B, S, D, H = 1, 2048, 448, 16
        Dh = D // H
        return {
            "x": _w((lambda *s: torch.randn(*s, dtype=torch.bfloat16) * 0.05)(B, S, D)),
            "wq": _w((lambda *s: torch.randn(*s, dtype=torch.bfloat16) * 0.2)(D, H * Dh)),
            "wk": _w((lambda *s: torch.randn(*s, dtype=torch.bfloat16) * 0.2)(D, Dh)),
            "wv": _w((lambda *s: torch.randn(*s, dtype=torch.bfloat16) * 0.1)(D, Dh)),
            "wo": _w((lambda *s: torch.randn(*s, dtype=torch.bfloat16) * 0.1)(H * Dh, D)),
        }
    _A_in = _A_setup()

    def _B_setup():
        B, S, D, F = 1, 2048, 448, 1792
        return {
            "x": _w((lambda *s: torch.randn(*s, dtype=torch.bfloat16) * 0.05)(B, S, D)),
            "w_gate": _w((lambda *s: torch.randn(*s, dtype=torch.bfloat16) * 0.2)(D, F)),
            "w_up": _w((lambda *s: torch.randn(*s, dtype=torch.bfloat16) * 0.1)(D, F)),
            "w_down": _w((lambda *s: torch.randn(*s, dtype=torch.bfloat16) * 0.1)(F, D)),
        }
    _B_in = _B_setup()

    return {
        "A_x": _A_in["x"],
        "A_wq": _A_in["wq"],
        "A_wk": _A_in["wk"],
        "A_wv": _A_in["wv"],
        "A_wo": _A_in["wo"],
        "B_x": _B_in["x"],
        "B_w_gate": _B_in["w_gate"],
        "B_w_up": _B_in["w_up"],
        "B_w_down": _B_in["w_down"],
    }

def reference(A_x, A_wq, A_wk, A_wv, A_wo, B_x, B_w_gate, B_w_up, B_w_down):
    def _A_ref(x, wq, wk, wv, wo):
        B, S, D = x.shape
        H = 16
        Dh = D // H
        q = (lambda x, *d: x.permute(*d))((x @ wq).reshape(B, S, H, Dh), 0, 2, 1, 3)
        k = x @ wk
        v = x @ wv
        scores = torch.einsum("bhqd,bkd->bhqk", q, k) * (Dh ** -0.5)
        p = _softmax(scores, axis=-1)
        o = torch.einsum("bhqk,bkd->bhqd", p, v)
        return (lambda x, *d: x.permute(*d))(o, 0, 2, 1, 3).reshape(B, S, H * Dh) @ wo

    def _B_ref(x, w_gate, w_up, w_down):
        g = torch.einsum("bsd,df->bsf", x, w_gate)
        u = torch.einsum("bsd,df->bsf", x, w_up)
        h = _sigmoid(g) * u
        return torch.einsum("bsf,fd->bsd", h, w_down)

    x = A_x
    xn = _layernorm(x, axis=-1)
    return x + _A_ref(xn, A_wq, A_wk, A_wv, A_wo) + _B_ref(xn, B_w_gate, B_w_up, B_w_down)
```

```python
import re

TRANS = ("v_exp_f32", "v_log_f32", "v_rcp_f32", "v_rsq_f32", "v_sqrt_f32", "v_sin_f32", "v_cos_f32")

def regs_of(tok):
    tok = tok.strip().lstrip("-")
    m = re.fullmatch(r"\|?([vsa])(\d+)\|?", tok)
    if m: return {(m.group(1), int(m.group(2)))}
    m = re.fullmatch(r"\|?([vsa])\[(\d+):(\d+)\]\|?", tok)
    if m: return {(m.group(1), i) for i in range(int(m.group(2)), int(m.group(3)) + 1)}
    if tok == "vcc": return {("s", "vcc")}
    if tok == "exec": return {("s", "exec")}
    if tok == "m0": return {("s", "m0")}
    return set()

class Ins:
    def __init__(self, text):
        self.text = text
        t = text.split(";")[0].strip()
        parts = t.split(None, 1)
        self.op = parts[0]
        ops = [o.strip() for o in parts[1].split(",")] if len(parts) > 1 else []
        if ops:
            ops[-1] = ops[-1].split()[0] if ops[-1].split() else ops[-1]
        self.ops = ops
        op = self.op
        self.mfma = op.startswith("v_mfma")
        self.valu = op.startswith("v_") and not self.mfma
        self.trans = op.replace("_e32", "").replace("_e64", "") in TRANS
        self.dot = op.startswith("v_dot")
        self.ds = op.startswith("ds_")
        self.vmem = op.startswith("buffer_") or op.startswith("global_")
        self.salu = op.startswith("s_")
        self.lds_dma = self.vmem and (" lds" in t or "_lds_" in op)
        self.w = set(); self.r = set(); self.srcc = set(); self.ab = set()
        R = [regs_of(o) for o in ops]
        if self.mfma:
            self.w = R[0]; self.ab = R[1] | R[2]; self.srcc = R[3]; self.r = self.ab | self.srcc
            self.passes = 8 if "32x32x16" in op else 4
        elif self.valu:
            nd = 1
            if op.startswith(("v_add_co", "v_sub_co", "v_addc_co", "v_subb_co")): nd = 2
            for x in R[:nd]: self.w |= x
            for x in R[nd:]: self.r |= x
            if op.startswith(("v_fmac", "v_dot2c")): self.r |= R[0]
            if op.startswith("v_permlane") and "swap" in op:
                self.w = R[0] | R[1]; self.r = R[0] | R[1]
            if op.startswith("v_cmpx"): self.w |= {("s", "exec")}
            if op.startswith("v_cndmask") and len(ops) == 3: self.r |= {("s", "vcc")}
        elif self.ds:
            if op.startswith(("ds_write", "ds_add_f32", "ds_add_u32")) :
                for x in R: self.r |= x
            else:
                self.w = R[0]
                for x in R[1:]: self.r |= x
        elif self.vmem:
            if "store" in op or self.lds_dma or ("atomic" in op):
                for x in R: self.r |= x
                if self.lds_dma: self.r |= {("s", "m0")}
            else:
                self.w = R[0]
                for x in R[1:]: self.r |= x
        elif self.salu:
            if op.startswith(("s_cmp", "s_cbranch", "s_branch", "s_waitcnt", "s_barrier", "s_nop", "s_endpgm", "s_setprio", "s_sleep")):
                for x in R: self.r |= x
            else:
                if R: self.w = R[0]
                for x in R[1:]: self.r |= x
                if "saveexec" in op: self.w |= {("s", "exec")}
        self.slots = 1
        if op == "s_nop": self.slots = int(ops[0]) + 1
        self.wide_store = self.vmem and "store" in op and ("x4" in op or "x3" in op)
        self.store_data = R[0] if (self.wide_store and op.startswith("buffer")) else (R[1] if self.wide_store else set())

def need(prev, cur):
    n = 0
    vw = {x for x in prev.w if x[0] in "va"}
    sw = {x for x in prev.w if x[0] == "s"}
    if prev.valu:
        if cur.mfma and vw & cur.r: n = max(n, 2)
        if prev.trans and cur.valu and not cur.trans and vw & cur.r: n = max(n, 1)
        if prev.trans and (cur.ds or cur.vmem) and vw & cur.r: n = max(n, 1)
        if cur.op.startswith(("v_readfirstlane", "v_readlane")) and vw & cur.r: n = max(n, 1)
        if cur.op.startswith("v_permlane") and vw & cur.r: n = max(n, 2)
        if "dpp" in cur.text or "quad_perm" in cur.text or "row_" in cur.text:
            if vw & cur.r: n = max(n, 2)
        if sw and cur.valu and sw & cur.r: n = max(n, 2)
        if sw and cur.vmem and sw & cur.r: n = max(n, 5)
        if sw and cur.salu and sw & cur.r: n = max(n, 1)
        if ("s", "exec") in sw and (cur.mfma or cur.op.startswith(("v_readlane", "v_readfirstlane", "v_permlane"))): n = max(n, 4)
        if prev.dot:
            if (cur.valu or cur.mfma or cur.ds or cur.vmem) and vw & (cur.r | cur.w):
                same_acc = cur.op == prev.op and not (vw & (regs_of(cur.ops[1]) | regs_of(cur.ops[2])))
                if not same_acc: n = max(n, 3)
    if prev.mfma:
        big = 12 if prev.passes == 8 else 8
        if cur.mfma:
            if prev.w & cur.ab: n = max(n, big)
            if prev.w & cur.srcc and not (prev.w == cur.srcc and prev.passes == cur.passes): n = max(n, big - 2)
            if prev.w & cur.w and not (prev.w == cur.srcc): n = max(n, big)
        elif cur.valu or cur.ds or cur.vmem:
            if prev.w & (cur.r | cur.w): n = max(n, big)
            if cur.valu and prev.srcc & cur.w: n = max(n, 7 if prev.passes == 8 else 3)
    if prev.salu and ("s", "m0") in prev.w and cur.lds_dma: n = max(n, 1)
    if prev.wide_store and prev.store_data & cur.w: n = max(n, 2)
    return n

class Asm:
    def __init__(self):
        self.lines = []
        self.hist = []
        self.nops = 0
    def raw(self, s):
        self.lines.append(s)
    def label(self, name, keep=False):
        self.lines.append(name + ":")
    def fence(self, n=12):
        worst = 0; dist = 0
        for p in reversed(self.hist):
            req = 12 if p.mfma else (5 if p.valu else 2 if p.wide_store else 1)
            worst = max(worst, req - dist)
            dist += p.slots
            if dist > 16: break
        if worst > 0: self.e(f"s_nop {worst-1}")
    def e(self, text):
        for t in text.strip().split("\n"):
            t = t.strip()
            if not t or t.startswith(";"): continue
            cur = Ins(t)
            dist = 0; pad = 0
            for p in reversed(self.hist):
                pad = max(pad, need(p, cur) - dist)
                dist += p.slots
                if dist > 16: break
            if pad > 0:
                nop = Ins(f"s_nop {pad-1}")
                self.lines.append(f"    s_nop {pad-1}")
                self.hist.append(nop); self.nops += pad
            self.lines.append("    " + t)
            self.hist.append(cur)
            if len(self.hist) > 40: self.hist = self.hist[-24:]
    def text(self):
        return "\n".join(self.lines) + "\n"

def vr(a, n=1):
    return f"v{a}" if n == 1 else f"v[{a}:{a+n-1}]"
def sr(a, n=1):
    return f"s{a}" if n == 1 else f"s[{a}:{a+n-1}]"

def interleave(main, fill):
    out = []
    n = len(main); k = 0
    for i, g in enumerate(main):
        out += g
        tgt = (len(fill) * (i + 1)) // n
        out += fill[k:tgt]; k = tgt
    return out

def kd(name, vgpr, sgpr=102):
    return f""".p2align 6
.amdhsa_kernel {name}
  .amdhsa_next_free_vgpr {vgpr}
  .amdhsa_next_free_sgpr {sgpr}
  .amdhsa_accum_offset {(vgpr+3)//4*4}
  .amdhsa_group_segment_fixed_size 0
  .amdhsa_kernarg_size 96
  .amdhsa_user_sgpr_count 2
  .amdhsa_user_sgpr_kernarg_segment_ptr 1
  .amdhsa_system_sgpr_workgroup_id_x 1
  .amdhsa_float_denorm_mode_32 3
  .amdhsa_float_denorm_mode_16_64 3
.end_amdhsa_kernel
"""
```

```python
from asmlib import *
WS_Q, WS_KV, WS_ACT, WS_WF, WS_P = 0x0, 0x200000, 0x400000, 0xD00000, 0x1000000
WS_SIZE = 0x2000000
LOG2E = 1.4426950408889634
import struct
def f32(x): return "0x%08x" % struct.unpack("<I", struct.pack("<f", x))[0]

def srd(a, d, lo, size):
    a.e(f"s_mov_b32 s{d}, s{lo}\ns_mov_b32 s{d+1}, s{lo+1}\ns_mov_b32 s{d+2}, {size}\ns_mov_b32 s{d+3}, 0x20000")

SLOT = 16384
MISC = 9 * SLOT
CS = MISC
RS = MISC + 8192
def slot_of(item): return (item % 9) * SLOT
def XI(c): return 2 * c
def WI(c): return 2 * c + 1
def VI(c): return 14 + c

class Win:
    def __init__(self, regs): self.regs = regs; self.cur = 0
    def off(self, addr, span=16384):
        fix = []
        if not (0 <= addr - self.cur and addr - self.cur + span <= 65536):
            new = (addr // 49152) * 49152
            d = new - self.cur
            for r in self.regs:
                fix.append(f"v_add_u32 v{r}, {d & 0xffffffff}, v{r}")
            self.cur = new
        return fix, addr - self.cur

def a_addr_setup(a, dst, lane, t1, t2):
    a.e(f"""v_bfe_u32 v{t1}, v{lane}, 4, 1
    v_lshlrev_b32 v{dst}, 13, v{t1}
    v_bfe_u32 v{t2}, v{lane}, 2, 2
    v_lshl_add_u32 v{dst}, v{t2}, 7, v{dst}
    v_and_b32 v{t2}, 2, v{t2}
    v_xor_b32 v{t1}, v{t1}, v{t2}
    v_lshl_add_u32 v{dst}, v{t1}, 5, v{dst}
    v_lshrrev_b32 v{t1}, 5, v{lane}
    v_lshl_add_u32 v{dst}, v{t1}, 10, v{dst}
    v_and_b32 v{t1}, 3, v{lane}
    v_lshl_add_u32 v{dst}, v{t1}, 3, v{dst}""")

X0 = 16
ACC = [128, 144, 160, 176, 192, 208, 128, 144]
FR = 224

def ffn_epi(A, sbase, imm):
    o = []
    for r in range(8): o.append(f"v_mul_f32 v{A+r}, v12, v{A+r}")
    for r in range(8): o.append(f"v_exp_f32 v{A+r}, v{A+r}")
    for r in range(8): o.append(f"v_fma_f32 v{A+r}, v{A+r}, v13, v13")
    for r in range(8): o.append(f"v_rcp_f32 v{A+r}, v{A+r}")
    for r in range(8): o.append(f"v_mul_f32 v{A+r}, v{A+r}, v{A+8+r}")
    for i in range(4): o.append(f"v_cvt_pk_bf16_f32 v{A+8+i}, v{A+2*i}, v{A+2*i+1}")
    o.append(f"buffer_store_dwordx4 v[{A+8}:{A+11}], v0, s[52:55], s{sbase} offen offset:{imm}")
    return o

def q_epi(A, t, sA, sB):
    o = []
    for r in range(16): o.append(f"v_mul_f32 v{A+r}, v14, v{A+r}")
    for i in range(8): o.append(f"v_cvt_pk_bf16_f32 v{A+i}, v{A+2*i}, v{A+2*i+1}")
    for g in range(4):
        o.append(f"buffer_store_dwordx2 v[{A+2*g}:{A+2*g+1}], v15, s[52:55], s{sA if g < 2 else sB} offen offset:{(4*t + 2*(g&1))*256}")
    return o

def gen_k1(name="k1_kernel"):
    a = Asm()
    a.raw(f".p2align 8\n.globl {name}\n.type {name},@function\n{name}:")
    a.e(f"""s_cmp_ge_u32 s2, 256
    s_cbranch_scc1 K1_END
    s_load_dwordx16 s[8:23], s[0:1], 0
    s_load_dwordx8 s[24:31], s[0:1], 64
    v_lshrrev_b32 v1, 6, v0
    v_and_b32 v0, 63, v0
    s_and_b32 s3, s2, 7
    s_lshr_b32 s4, s2, 3
    v_readfirstlane_b32 s62, v1
    s_and_b32 s60, s3, 1
    s_lshl_b32 s60, s60, 3
    s_and_b32 s5, s4, 7
    s_add_u32 s60, s60, s5
    s_lshr_b32 s61, s3, 1
    s_lshl_b32 s61, s61, 2
    s_lshr_b32 s5, s4, 3
    s_add_u32 s61, s61, s5
    s_mov_b32 s63, 0x3f803f80
    s_waitcnt lgkmcnt(0)""")
    srd(a, 52, 30, WS_SIZE)
    a.e("s_cmp_ge_u32 s62, 4\ns_cbranch_scc1 K1_LOADER")
    a_addr_setup(a, 1, 0, 5, 6)
    a.e("""v_xor_b32 v2, 32, v1
    v_xor_b32 v3, 64, v1
    v_xor_b32 v4, 0x60, v1
    v_and_b32 v5, 31, v0
    v_bfe_u32 v6, v5, 1, 3
    v_lshrrev_b32 v7, 5, v0
    v_xor_b32 v6, v6, v7
    v_lshlrev_b32 v8, 7, v5
    v_lshl_add_u32 v8, v6, 4, v8
    s_lshl_b32 s5, s62, 12
    v_add_u32 v8, s5, v8
    v_xor_b32 v9, 32, v8
    v_xor_b32 v10, 64, v8
    v_xor_b32 v11, 0x60, v8
    v_mov_b32 v5, 0
    v_mov_b32 v6, 0
    v_lshlrev_b32 v15, 3, v0
    v_lshlrev_b32 v0, 4, v0
    s_lshl_b32 s64, s60, 2
    s_add_u32 s64, s64, s62            ; tt
    s_mul_i32 s65, s64, 144
    s_lshl_b32 s5, s61, 3
    s_add_u32 s65, s65, s5
    s_lshl_b32 s65, s65, 10""")
    a.e(f"s_add_u32 s65, s65, {WS_ACT}\ns_add_u32 s66, s65, 4096")
    a.e(f"""s_mul_i32 s67, s64, {112*256}
    s_sub_u32 s5, s61, 14
    s_lshl_b32 s5, s5, 14              ; (j-14)*64 cgs*256
    s_add_u32 s67, s67, s5
    s_add_u32 s68, s67, {16*256}
    s_add_u32 s69, s67, {32*256}
    s_cmp_eq_u32 s61, 15
    s_mov_b32 s5, {16*256}
    s_cselect_b32 s5, {8*256}, s5
    s_add_u32 s70, s69, s5
    s_lshl_b32 s71, s64, 12
    s_add_u32 s71, s71, {WS_KV}""")
    wa = Win([1, 2, 3, 4]); wx = Win([8, 9, 10, 11])
    def reads_sg0(n):
        c, s = divmod(n, 4)
        fx, ox = wx.off(slot_of(XI(c)))
        fa, oa = wa.off(slot_of(WI(c)))
        g = [fx + fa + [f"ds_read_b128 v[{X0+4*n}:{X0+4*n+3}], v{8+s} offset:{ox}"]]
        for t in range(4):
            b = FR + 16 * (n & 1) + 4 * t
            rd = [f"ds_read_b64_tr_b16 v[{b+2*u}:{b+2*u+1}], v{1+t} offset:{oa + s*2048 + u*512}" for u in range(2)]
            if t == 0: g[0] += rd
            else: g.append(rd)
        return g
    def stats(n, t):
        r = X0 + 4 * n + t
        return [f"v_dot2_f32_bf16 v5, v{r}, s63, v5", f"v_dot2_f32_bf16 v6, v{r}, v{r}, v6"]
    def mf(acc, fa, fb, first, swap=False):
        x, y = (fb, fa) if swap else (fa, fb)
        return f"v_mfma_f32_32x32x16_bf16 v[{acc}:{acc+15}], v[{x}:{x+3}], v[{y}:{y+3}], " + ("0" if first else f"v[{acc}:{acc+15}]")
    def reads_pair(n, e, t):
        c, s = divmod(n, 4)
        fa, oa = wa.off(slot_of(VI(c)))
        b = FR + 8 * (n & 1) + 4 * e
        return fa + [f"ds_read_b64_tr_b16 v[{b+2*u}:{b+2*u+1}], v{1+t} offset:{oa + s*2048 + u*512}" for u in range(2)]
    a.e("s_barrier")
    for g in reads_sg0(0): a.e("\n".join(g))
    for n in range(28):
        last_in_chunk = (n % 4 == 3)
        nxt = reads_sg0(n + 1) if n < 27 and not last_in_chunk else None
        for t in range(4):
            fa = FR + 16 * (n & 1) + 4 * t
            if not last_in_chunk:
                a.e(f"s_waitcnt lgkmcnt({6 if t == 0 else 7})")
            else:
                a.e(f"s_waitcnt lgkmcnt({[6, 4, 0, 15][t]})") if t < 3 else None
            a.e(mf(ACC[t], fa, X0 + 4 * n, n == 0))
            if not last_in_chunk:
                a.e("\n".join(nxt[t]))
            elif t == 2:
                a.e("s_barrier")
                if n < 27:
                    nxt = reads_sg0(n + 1)
                    a.e("\n".join(nxt[0] + nxt[1]))
                else:
                    a.e("\n".join(reads_pair(0, 0, 0) + reads_pair(0, 1, 1)))
            elif t == 3 and n < 27:
                a.e("\n".join(nxt[2] + nxt[3]))
            a.e("\n".join(stats(n, t)))
    fin = f"""v_mov_b32 v7, {CS}
    v_add_u32 v7, v7, v0
    ds_read_b128 v[240:243], v7
    ds_read_b128 v[244:247], v7 offset:1024
    ds_read_b128 v[248:251], v7 offset:2048
    ds_read_b128 v[252:255], v7 offset:3072
    v_mov_b32 v8, v5
    v_mov_b32 v9, v6
    v_permlane32_swap_b32 v5, v8
    v_permlane32_swap_b32 v6, v9
    v_add_f32 v5, v5, v8
    v_add_f32 v6, v6, v9
    v_mul_f32 v5, {f32(1/448)}, v5
    v_mul_f32 v6, {f32(1/448)}, v6
    v_fma_f32 v6, -v5, v5, v6
    v_max_f32 v6, 0, v6
    v_cvt_pk_bf16_f32 v8, -v5, -v5
    v_cvt_pk_bf16_f32 v6, v6, v6
    v_mov_b32 v9, v8
    v_lshlrev_b32 v6, 16, v6
    v_mov_b32 v10, 0
    v_add_f32 v6, {f32(1e-5)}, v6
    v_mov_b32 v11, 0
    v_cvt_pk_bf16_f32 v6, v6, v6
    v_lshlrev_b32 v6, 16, v6
    v_sqrt_f32 v6, v6
    v_cvt_pk_bf16_f32 v6, v6, v6
    v_lshlrev_b32 v13, 16, v6
    v_rcp_f32 v5, v13
    v_mul_f32 v12, {f32(-LOG2E)}, v5
    v_mul_f32 v14, {f32(LOG2E * 28 ** -0.5)}, v5""".split("\n")
    fin = [x.strip() for x in fin]
    state = dict(wa=wa.cur)
    def pair_phase(accs, tiles, swaps, fill, first_phase, next_tiles):
        groups = []
        for n in range(28):
            for e in range(2):
                g = []
                fa = FR + 8 * (n & 1) + 4 * e
                g.append("WAIT")
                g.append(mf(accs[e], fa, X0 + 4 * n, n == 0, swaps[e]))
                if first_phase and n == 11 and e == 0: g.append("s_barrier")
                if n < 27: g += reads_pair(n + 1, e, tiles[e])
                elif next_tiles is not None: g += reads_pair(0, e, next_tiles[e])
                groups.append(g)
        return groups
    def emit_counted(seq):
        pend = list(state.get("pend", []))
        for i, t in enumerate(seq):
            if t == "WAIT":
                nx = Ins(seq[i + 1])
                k = -1
                for idx, w in enumerate(pend):
                    if w & nx.r: k = idx
                if k >= 0:
                    left = len(pend) - 1 - k
                    a.e(f"s_waitcnt lgkmcnt({min(left, 15)})")
                    pend = pend[len(pend) - min(left, 15):] if left else []
                continue
            ins = Ins(t)
            if ins.ds: pend.append(set(ins.w))
            a.e(t)
        state["pend"] = pend
    base_pend = [regs_of(f"v[{FR+2*i}:{FR+2*i+1}]") for i in range(4)]
    def variant(kind):
        wa.cur = state["wa"]; state["pend"] = list(base_pend)
        epi = lambda A, sg, t: ffn_epi(A, 65 + sg, t * 1024) if kind == "ffn" else q_epi(A, t, 67 + 2 * sg, 68 + 2 * sg)
        g2 = pair_phase([ACC[4], ACC[5]], [0, 1], [False, False], None, True, [2, 3])
        seq = interleave(g2[:8], fin)
        extra = [["WAIT", mf(ACC[t], 240 + 4 * t, 8, False)] for t in range(4)]
        for i in range(4): seq += extra[i] + g2[8 + i]
        seq += g2[12] + g2[13]
        fill = []
        for t in range(4): fill += epi(ACC[t], 0, t)
        seq += interleave(g2[14:52], fill)
        seq += ["s_barrier"] + [f"ds_read_b128 v[{240+4*t}:{243+4*t}], v7 offset:{4096+1024*t}" for t in range(4)]
        for g in g2[52:]: seq += g
        seq += ["WAIT", mf(ACC[4], 240, 8, False), "WAIT", mf(ACC[5], 244, 8, False)]
        sw = [False, kind == "kv"]
        g3 = pair_phase([ACC[6], ACC[7]], [2, 3], sw, None, False, None)
        fill = epi(ACC[4], 1, 0) + epi(ACC[5], 1, 1)
        seq += g3[0] + g3[1] + g3[2] + g3[3]
        seq += interleave(g3[4:40], fill)
        for g in g3[40:]: seq += g
        seq += ["WAIT", mf(ACC[6], 248, 8, False), "WAIT", mf(ACC[7], 252, 8, False, sw[1])]
        emit_counted(seq)
        if kind != "kv":
            e0 = epi(ACC[6], 1, 2); e1 = epi(ACC[7], 1, 3)
            a.e("\n".join(e0 + e1))
        else:
            A = ACC[6]; B = ACC[7]
            a.e(f"""s_lshl_b32 s5, s62, 7
            s_add_u32 s5, s5, {RS}
            v_bfe_u32 v1, v0, 4, 5
            v_lshl_add_u32 v2, v1, 2, s5
            ds_write_b32 v2, v5
            v_lshrrev_b32 v3, 9, v0
            v_lshl_add_u32 v2, v3, 4, s5
            s_waitcnt lgkmcnt(0)
            ds_read_b128 v[224:227], v2
            ds_read_b128 v[228:231], v2 offset:32
            ds_read_b128 v[232:235], v2 offset:64
            ds_read_b128 v[236:239], v2 offset:96
            v_cmp_eq_u32 vcc, 1, v3
            v_mov_b32 v4, 0x3f803f80
            v_mov_b32 v6, 0x3f80""")
            for r in range(16): a.e(f"v_mul_f32 v{A+r}, v5, v{A+r}")
            for i in range(8): a.e(f"v_cvt_pk_bf16_f32 v{A+i}, v{A+2*i}, v{A+2*i+1}")
            a.e(f"""v_cndmask_b32 v{A+6}, v{A+6}, v4, vcc
            v_cndmask_b32 v{A+7}, v{A+7}, v6, vcc
            buffer_store_dwordx4 v[{A}:{A+3}], v0, s[52:55], s71 offen
            buffer_store_dwordx4 v[{A+4}:{A+7}], v0, s[52:55], s71 offen offset:1024
            v_cmp_eq_u32 vcc, 28, v1
            v_cmp_lt_u32 s[72:73], 27, v1
            v_mov_b32 v6, 0
            v_cndmask_b32 v6, v6, v4, vcc
            s_waitcnt lgkmcnt(0)""")
            for r in range(16): a.e(f"v_mul_f32 v{B+r}, v{224+r}, v{B+r}")
            for i in range(8): a.e(f"v_cvt_pk_bf16_f32 v{B+i}, v{B+2*i}, v{B+2*i+1}")
            for i in range(8): a.e(f"v_cndmask_b32 v{B+i}, v{B+i}, v6, s[72:73]")
            a.e(f"""buffer_store_dwordx4 v[{B}:{B+3}], v0, s[52:55], s71 offen offset:2048
            buffer_store_dwordx4 v[{B+4}:{B+7}], v0, s[52:55], s71 offen offset:3072""")
        a.e("s_endpgm")
    hist = list(a.hist)
    a.e("s_cmp_ge_u32 s61, 14\ns_cbranch_scc1 K1_QKV")
    variant("ffn")
    a.label("K1_QKV"); a.hist = list(hist)
    a.e("s_cmp_eq_u32 s61, 15\ns_cbranch_scc1 K1_KV")
    variant("q")
    a.label("K1_KV"); a.hist = list(hist)
    variant("kv")
    a.label("K1_LOADER"); a.hist = []
    srd(a, 32, 8, 1835008)
    srd(a, 44, 12, 25088)
    srd(a, 48, 14, 25088)
    a.e(f"""s_sub_u32 s62, s62, 4
    s_cmp_lt_u32 s61, 14
    s_cselect_b32 s36, s20, s10
    s_cselect_b32 s37, s21, s11
    s_cselect_b32 s40, s22, s10
    s_cselect_b32 s41, s23, s11
    s_mov_b32 s38, {448*448*2}
    s_mov_b32 s64, 896
    s_mov_b32 s6, 256
    s_cselect_b32 s38, {448*1792*2}, s38
    s_cselect_b32 s64, 3584, s64
    s_cselect_b32 s5, 0, 128
    s_cselect_b32 s6, 128, s6
    s_mov_b32 s39, 0x20000
    s_mov_b32 s42, s38
    s_mov_b32 s43, 0x20000
    s_lshl_b32 s65, s61, 8              ; ffn col byte base
    s_sub_u32 s7, s61, 14
    s_lshl_b32 s7, s7, 9
    s_cmp_lt_u32 s61, 14
    s_cselect_b32 s65, s65, s7
    s_mul_i32 s7, s62, s64
    s_lshl_b32 s7, s7, 4
    s_add_u32 s65, s65, s7              ; A sg0
    s_add_u32 s66, s65, s5              ; B sg0
    s_add_u32 s67, s65, s6              ; A sg1
    s_cmp_eq_u32 s61, 15
    s_cselect_b32 s5, 64, s5
    s_add_u32 s68, s67, s5              ; B sg1
    s_lshl_b32 s69, s64, 3              ; 8 rows
    s_lshl_b32 s70, s64, 6              ; 64 rows
    s_lshl_b32 s71, s60, 7
    s_lshl_b32 s5, s62, 5
    s_add_u32 s71, s71, s5
    s_mul_i32 s71, s71, 896
    s_lshl_b32 s72, s62, 12
    s_lshl_b32 s73, s62, 11
    s_mul_i32 s74, s62, {16*56}         ; kv row base
    v_lshrrev_b32 v1, 3, v0             ; row
    v_and_b32 v2, 7, v0                 ; p
    v_lshrrev_b32 v3, 4, v0
    v_xor_b32 v3, v3, v2
    v_mul_u32_u24 v4, 896, v1
    v_lshl_add_u32 v8, v3, 4, v4
    v_xor_b32 v3, 4, v3
    v_lshl_add_u32 v9, v3, 4, v4
    v_lshl_add_u32 v14, v2, 4, v4
    v_lshrrev_b32 v3, 1, v2             ; ps
    v_and_b32 v5, 2, v1
    v_xor_b32 v3, v3, v5                ; tA
    v_xor_b32 v5, 1, v3                 ; tB
    v_and_b32 v6, 1, v2
    v_mul_lo_u32 v4, v1, s64
    v_lshl_add_u32 v4, v6, 4, v4
    v_lshl_add_u32 v10, v3, 5, v4       ; A voff
    v_lshl_add_u32 v11, v5, 5, v4       ; B voff
    v_mul_u32_u24 v4, 56, v1
    v_lshl_add_u32 v12, v6, 4, v4       ; kv voff A
    v_add_u32 v13, 32, v12              ; kv voff B
    v_cmp_gt_u32 s[76:77], 2, v3
    v_cmp_eq_u32 s[78:79], 2, v3
    v_cmp_eq_u32 s[80:81], 3, v3
    v_cmp_gt_u32 s[82:83], 2, v5
    v_cmp_eq_u32 s[84:85], 2, v5
    v_cmp_eq_u32 s[86:87], 3, v5""")
    def issue_x(c):
        for n in range(4):
            a.e(f"""s_add_u32 m0, s72, {slot_of(XI(c)) + n*1024}
            s_add_u32 s5, s71, {n*8*896 + c*128}
            buffer_load_dwordx4 v{8 + (n&1)}, s[32:35], s5 offen lds""")
    def issue_w(item, sA, sB):
        a.e(f"""s_add_u32 m0, s73, {slot_of(item)}
        s_add_u32 s5, s{sA}, s69
        buffer_load_dwordx4 v10, s[36:39], s{sA} offen lds
        s_add_u32 m0, s73, {slot_of(item) + 1024}
        s_add_u32 s6, s{sB}, s69
        buffer_load_dwordx4 v10, s[36:39], s5 offen lds
        s_add_u32 m0, s73, {slot_of(item) + 8192}
        s_add_u32 s{sA}, s{sA}, s70
        buffer_load_dwordx4 v11, s[40:43], s{sB} offen lds
        s_add_u32 m0, s73, {slot_of(item) + 8192 + 1024}
        s_add_u32 s{sB}, s{sB}, s70
        buffer_load_dwordx4 v11, s[40:43], s6 offen lds""")
    lab = [0]
    def issue_v(c):
        item = VI(c); lab[0] += 1; L = lab[0]
        a.e(f"s_cmp_eq_u32 s61, 15\ns_cbranch_scc1 K1_VS{L}")
        issue_w(item, 67, 68)
        a.e(f"s_branch K1_VE{L}")
        a.label(f"K1_VS{L}")
        for reg, (sb, vq, vk, mk) in enumerate(((67, 10, 12, 76), (68, 11, 13, 82))):
            for n in range(2):
                a.e(f"""s_add_u32 m0, s73, {slot_of(item) + reg*8192 + n*1024}
                s_add_u32 s5, s{sb}, {n*8*896}
                s_add_u32 s6, s74, {(c*64 + n*8)*56}
                s_mov_b64 exec, s[{mk}:{mk+1}]
                buffer_load_dwordx4 v{vq}, s[36:39], s5 offen lds
                s_mov_b64 exec, s[{mk+2}:{mk+3}]
                buffer_load_dwordx4 v{vk}, s[44:47], s6 offen lds
                s_mov_b64 exec, s[{mk+4}:{mk+5}]
                buffer_load_dwordx4 v{vk}, s[48:51], s6 offen lds""")
            a.e(f"s_add_u32 s{sb}, s{sb}, s70")
        a.e("s_mov_b64 exec, -1")
        a.label(f"K1_VE{L}")
    def issue(item):
        if item >= 14: issue_v(item - 14)
        elif item % 2 == 0: issue_x(item // 2)
        else: issue_w(item, 65, 66)
    for it in range(9): issue(it)
    a_addr_setup(a, 1, 0, 5, 6)
    a.e("""s_lshl_b32 s5, s62, 5
    v_xor_b32 v1, s5, v1
    v_mov_b32 v2, 0
    v_mov_b32 v3, 0
    v_lshlrev_b32 v15, 4, v0""")
    wl = Win([1])
    def colsum(item):
        f, o = wl.off(slot_of(item))
        a.e("\n".join(f))
        for i in range(8):
            a.e(f"ds_read_b64_tr_b16 v[{16+2*i}:{17+2*i}], v1 offset:{o + (i//2)*2048 + (i&1)*512}")
        for i in range(16):
            if i % 4 == 0: a.e(f"s_waitcnt lgkmcnt({6 - i//2})")
            a.e(f"v_dot2_f32_bf16 v{2+(i&1)}, v{16+i}, s63, v{2+(i&1)}")
    def cs_write(sg):
        a.e(f"""v_add_f32 v2, v2, v3
        v_cvt_pk_bf16_f32 v4, v2, v2
        v_lshlrev_b32 v4, 16, v4
        v_sub_f32 v3, v2, v4
        v_cvt_pk_bf16_f32 v4, v3, v3
        v_lshlrev_b32 v4, 16, v4
        v_sub_f32 v5, v3, v4
        v_cvt_pk_bf16_f32 v4, v2, v3
        v_cvt_pk_bf16_f32 v5, v5, 0
        v_mov_b32 v6, 0
        v_mov_b32 v7, 0
        s_lshl_b32 s5, s62, 10
        s_add_u32 s5, s5, {CS + sg*4096}
        v_add_u32 v2, s5, v15
        ds_write_b128 v2, v[4:7]
        v_mov_b32 v2, 0
        v_mov_b32 v3, 0
        s_waitcnt lgkmcnt(0)""")
    a.e("s_waitcnt vmcnt(28)\ns_barrier")
    for c in range(7):
        if c >= 1:
            issue(7 + 2 * c); issue(8 + 2 * c)
        colsum(WI(c))
        if c == 6: cs_write(0)
        a.e(f"s_waitcnt vmcnt({20 if c < 6 else 16})\ns_barrier")
    for c in range(3): colsum(VI(c))
    a.e("s_waitcnt vmcnt(0)\ns_barrier")
    a.e(f"""s_cmp_lt_u32 s2, 112
    s_cselect_b32 s56, s24, s16
    s_cselect_b32 s57, s25, s17
    s_mov_b32 s58, {448*448*2}
    s_cselect_b32 s58, {1792*448*2}, s58
    s_mov_b32 s59, 0x20000
    s_sub_u32 s5, s2, 112
    s_lshr_b32 s6, s5, 1
    s_mul_i32 s6, s6, 28
    s_and_b32 s75, s5, 1
    s_lshl_b32 s7, s75, 4
    s_add_u32 s6, s6, s7
    s_lshl_b32 s7, s2, 4
    s_cmp_lt_u32 s2, 112
    s_cselect_b32 s6, s7, s6
    s_cselect_b32 s75, 0, s75
    s_mul_i32 s6, s6, 896
    s_lshl_b32 s7, s62, 7
    s_add_u32 s6, s6, s7
    s_cmp_ge_u32 s2, 144
    s_cbranch_scc1 K1_NOREL""")
    for blk in range(2):
        for n in range(2):
            a.e(f"""s_add_u32 m0, s72, {3*SLOT + blk*2048 + n*1024}
            s_add_u32 s5, s6, {blk*512 + n*8*896}
            buffer_load_dwordx4 v14, s[56:59], s5 offen lds""")
    a.label("K1_NOREL")
    for c in range(3, 7): colsum(VI(c))
    cs_write(1)
    a.e("s_barrier")
    a.e(f"""s_cmp_ge_u32 s2, 144
    s_cbranch_scc1 K1_END
    v_lshrrev_b32 v2, 5, v0
    v_bfe_u32 v3, v0, 2, 2
    v_lshl_add_u32 v3, v2, 2, v3
    v_lshlrev_b32 v3, 7, v3
    v_bfe_u32 v4, v0, 4, 1
    v_lshl_add_u32 v3, v4, 5, v3
    v_and_b32 v4, 3, v0
    v_lshl_add_u32 v3, v4, 3, v3
    v_add_u32 v3, s72, v3
    v_and_b32 v2, s75, v2
    v_cmp_eq_u32 vcc, 0, v2
    s_mul_i32 s5, s2, {14*1024}
    s_lshl_b32 s6, s62, 11
    s_add_u32 s5, s5, s6
    s_add_u32 s5, s5, {WS_WF}
    s_add_u32 s6, s5, 8192
    s_waitcnt vmcnt(0)""")
    for blk in range(2):
        for e in range(2):
            for u in range(2):
                b = 16 + 8 * blk + 4 * e + 2 * u
                a.e(f"ds_read_b64_tr_b16 v[{b}:{b+1}], v3 offset:{3*SLOT + blk*2048 + u*1024 + e*64}")
    a.e("s_waitcnt lgkmcnt(0)")
    for i in range(4):
        for r in (2, 3): a.e(f"v_cndmask_b32 v{16+4*i+r}, 0, v{16+4*i+r}, vcc")
    a.e("""buffer_store_dwordx4 v[16:19], v15, s[52:55], s5 offen
    buffer_store_dwordx4 v[20:23], v15, s[52:55], s5 offen offset:1024
    s_cmp_eq_u32 s62, 3
    s_cbranch_scc1 K1_END
    buffer_store_dwordx4 v[24:27], v15, s[52:55], s6 offen
    buffer_store_dwordx4 v[28:31], v15, s[52:55], s6 offen offset:1024""")
    a.label("K1_END")
    a.e("s_endpgm")
    return a
```

```python
from asmlib import *
from k1 import WS_Q, WS_KV, WS_ACT, WS_WF, WS_P, WS_SIZE, srd, f32

Q0, O0, S0, P0, KV0, KS = 16, 48, 112, 144, 160, 224
MOFF = 40.0
FLAG = 49152

def mf(d, x, y, c):
    return f"v_mfma_f32_32x32x16_bf16 v[{d}:{d+15}], v[{x}:{x+3}], v[{y}:{y+3}], " + (f"v[{c}:{c+15}]" if c is not None else "0")

def kload(b): return [f"buffer_load_dwordx4 v[{KV0+16*b+4*i}:{KV0+16*b+4*i+3}], v1, s[52:55], s21 offen offset:{1024*i}" for i in range(2)]
def vload(b): return [f"buffer_load_dwordx4 v[{KV0+16*b+4*i}:{KV0+16*b+4*i+3}], v1, s[52:55], s21 offen offset:{1024*i}" for i in (2, 3)]
ADV = ["s_add_u32 s20, s20, 4096", "s_and_b32 s20, s20, 0xffff", "s_add_u32 s21, s20, s22"]

def maxtree(a, src, dst, acc=None):
    r = list(range(src, src + 16))
    if acc is None:
        a.e(f"v_max3_f32 v{dst}, v{r[0]}, v{r[1]}, v{r[2]}"); r = r[3:]
        while len(r) >= 2:
            a.e(f"v_max3_f32 v{dst}, v{dst}, v{r[0]}, v{r[1]}"); r = r[2:]
        a.e(f"v_max_f32 v{dst}, v{dst}, v{r[0]}")
    else:
        while r:
            a.e(f"v_max3_f32 v{dst}, v{dst}, v{r[0]}, v{r[1]}"); r = r[2:]

def attention(a, wave_sgpr=62):
    a.e(f"""v_lshlrev_b32 v1, 4, v0
    v_lshlrev_b32 v2, 3, v0
    v_cmp_lt_u32 s[30:31], 31, v0
    s_mul_i32 s5, s61, {7*256}
    s_mov_b32 s24, 0
    s_lshl_b32 s22, s62, 16
    s_add_u32 s22, s22, {WS_KV}
    s_lshr_b32 s23, s2, 3
    s_and_b32 s23, s23, 15
    s_lshl_b32 s23, s23, 12              ; rotation
    s_add_u32 s7, s23, {WS_KV}""")
    for i in range(4):
        a.e(f"""s_add_u32 s6, s62, {i}
        s_and_b32 s6, s6, 3
        s_lshl_b32 s26, s60, 2
        s_add_u32 s6, s6, s26
        s_mul_i32 s6, s6, {112*256}
        s_add_u32 s6, s6, s5""")
        for f in range(4):
            a.e(f"buffer_load_dwordx2 v[{Q0+8*i+2*f}:{Q0+8*i+2*f+1}], v2, s[52:55], s6 offen offset:{2*f*256}")
    a.e(f"""buffer_load_dwordx4 v[{KS}:{KS+3}], v1, s[52:55], s7 offen
    buffer_load_dwordx4 v[{KS+4}:{KS+7}], v1, s[52:55], s7 offen offset:1024""")
    def kv_prologue():
        a.e("s_mov_b32 s20, s23\ns_add_u32 s21, s20, s22")
        for b in range(4):
            if b: a.e("\n".join(ADV))
            a.e("\n".join(kload(b)))
            if b < 3: a.e("\n".join(vload(b)))
    kv_prologue()
    a.e(f"""v_mov_b32 v3, {FLAG}
    v_mov_b32 v4, 0
    ds_write_b32 v3, v4
    s_waitcnt vmcnt(14)""")
    for i in range(4):
        for r in (6, 7): a.e(f"v_cndmask_b32 v{Q0+8*i+r}, v{Q0+8*i+r}, 0, s[30:31]")
    for i in range(4):
        a.e(mf(O0 + 16 * i, KS, Q0 + 8 * i, None))
        a.e(mf(O0 + 16 * i, KS + 4, Q0 + 8 * i + 4, O0 + 16 * i))
    for i in range(4): maxtree(a, O0 + 16 * i, 4 + i)
    for i in range(4): a.e(f"v_mov_b32 v{8+i}, v{4+i}")
    for i in range(4): a.e(f"v_permlane32_swap_b32 v{4+i}, v{8+i}")
    for i in range(4): a.e(f"v_max_f32 v{4+i}, v{4+i}, v{8+i}")
    for i in range(4): a.e(f"v_add_f32 v{4+i}, {f32(MOFF)}, v{4+i}")
    a.fence()
    a.label("K2_SETM")
    for i in range(4):
        m = 4 + i
        a.e(f"""v_cvt_pk_bf16_f32 v8, -v{m}, -v{m}
        v_lshlrev_b32 v8, 16, v8
        v_sub_f32 v9, -v{m}, v8
        v_cvt_pk_bf16_f32 v10, v9, v9
        v_lshlrev_b32 v10, 16, v10
        v_sub_f32 v10, v9, v10
        v_cvt_pk_bf16_f32 v8, -v{m}, v9
        v_cvt_pk_bf16_f32 v10, v10, 0
        v_cndmask_b32 v{Q0+8*i+6}, v{Q0+8*i+6}, v8, s[30:31]
        v_cndmask_b32 v{Q0+8*i+7}, v{Q0+8*i+7}, v10, s[30:31]""")
    for r in range(64): a.e(f"v_mov_b32 v{O0+r}, 0")
    for r in range(8): a.e(f"v_mov_b32 v{P0+8+r}, 0")
    for r in range(8): a.e(f"v_mov_b32 v{KV0+48+8+r}, 0")
    a.e("s_waitcnt vmcnt(12)")
    a.e(mf(S0, KV0, Q0, None)); a.e(mf(S0, KV0 + 4, Q0 + 4, S0))
    a.e("s_mov_b32 s25, 4")
    a.fence()
    a.raw(".p2align 6")
    def body():
        for u in range(16):
            n = (u + 1) % 16; p = (u - 1) % 16
            Sn = S0 + 16 * ((u + 1) & 1); Sc = S0 + 16 * (u & 1)
            Pc = P0 + 8 * (u & 1); Pp = P0 + 8 * ((u - 1) & 1)
            kb = KV0 + 16 * (n // 4); vb = KV0 + 16 * (p // 4) + 8
            qn = Q0 + 8 * (n % 4); op = O0 + 16 * (p % 4)
            ms = [mf(Sn, kb, qn, None), mf(Sn, kb + 4, qn + 4, Sn), mf(op, vb, Pp, op), mf(op, vb + 4, Pp + 4, op)]
            pre = [[], [], [], []]; post = [[], [], [], []]
            if n % 4 == 0: pre[0].append("s_waitcnt vmcnt(12)")
            if p % 4 == 0: pre[2].append("s_waitcnt vmcnt(12)")
            if u % 4 == 2: post[0] += ADV; post[1] += kload(u // 4)
            if u % 4 == 0: post[3] += vload(((u // 4) - 1) % 4)
            for g in range(4):
                a.e("\n".join(pre[g] + [ms[g]] + post[g]))
                for r in range(4): a.e(f"v_exp_f32 v{Sc+4*g+r}, v{Sc+4*g+r}")
                if g >= 1:
                    for h in range(2): a.e(f"v_cvt_pk_bf16_f32 v{Pc+2*(g-1)+h}, v{Sc+4*(g-1)+2*h}, v{Sc+4*(g-1)+2*h+1}")
                if g == 3:
                    if u == 15: a.e("s_sub_u32 s25, s25, 1\ns_cmp_lg_u32 s25, 0")
                    for h in range(2): a.e(f"v_cvt_pk_bf16_f32 v{Pc+6+h}, v{Sc+12+2*h}, v{Sc+12+2*h+1}")
    a.label("K2_LOOP")
    n0 = a.nops
    body()
    assert a.nops == n0, "unexpected nops in attention loop"
    a.e("s_cbranch_scc1 K2_LOOP")
    t = Asm(); t.hist = list(a.hist); sv = a;
    a2 = Asm(); a2.hist = list(a.hist)
    vb = KV0 + 48 + 8
    a.e(mf(O0 + 48, vb, P0 + 8, O0 + 48)); a.e(mf(O0 + 48, vb + 4, P0 + 12, O0 + 48))
    for i in (1, 2, 3):
        a.e(f"""s_add_u32 s6, s62, {i}
        s_and_b32 s6, s6, 3
        s_mul_i32 s6, s6, {3*4096}
        v_add_u32 v3, s6, v1""")
        for g in range(4):
            a.e(f"ds_write_b128 v3, v[{O0+16*i+4*g}:{O0+16*i+4*g+3}] offset:{(i-1)*4096 + g*1024}")
    a.e(f"""s_mul_i32 s6, s62, {3*4096}
    v_add_u32 v3, s6, v1
    s_waitcnt lgkmcnt(0)
    s_barrier""")
    for i in range(3):
        for g in range(4):
            a.e(f"ds_read_b128 v[{O0+16+16*i+4*g}:{O0+16+16*i+4*g+3}], v3 offset:{i*4096 + g*1024}")
    a.e(f"""s_lshl_b32 s6, s60, 2
    s_add_u32 s6, s6, s62
    s_mul_i32 s6, s6, 144
    s_lshl_b32 s7, s61, 1
    s_add_u32 s6, s6, s7
    s_lshl_b32 s6, s6, 10
    s_add_u32 s6, s6, {WS_ACT + 112*1024}""")
    for i in range(3):
        a.e(f"s_waitcnt lgkmcnt({8 - 4*i})")
        for r in range(16): a.e(f"v_add_f32 v{O0+r}, v{O0+r}, v{O0+16+16*i+r}")
    a.e(f"""v_mov_b32 v4, v{O0+12}
    v_mov_b32 v5, v{O0+12}
    v_mul_f32 v6, 0, v{O0}
    v_permlane32_swap_b32 v4, v5
    v_rcp_f32 v5, v5""")
    for r in range(1, 16): a.e(f"v_fmac_f32 v6, 0, v{O0+r}")
    for r in range(16): a.e(f"v_mul_f32 v{O0+r}, v5, v{O0+r}")
    for i in range(8): a.e(f"v_cvt_pk_bf16_f32 v{O0+i}, v{O0+2*i}, v{O0+2*i+1}")
    a.e(f"""v_cmp_u_f32 vcc, v6, v6
    buffer_store_dwordx4 v[{O0}:{O0+3}], v1, s[52:55], s6 offen
    buffer_store_dwordx4 v[{O0+4}:{O0+7}], v1, s[52:55], s6 offen offset:1024
    s_cmp_lg_u32 s24, 0
    s_cbranch_scc1 K2_END
    v_mov_b32 v3, {FLAG}
    s_cmp_eq_u64 vcc, 0
    s_cbranch_scc1 K2_OK
    v_mov_b32 v4, 1
    ds_write_b32 v3, v4""")
    a.label("K2_OK")
    a.e(f"""s_waitcnt lgkmcnt(0)
    s_barrier
    ds_read_b32 v4, v3
    s_waitcnt lgkmcnt(0)
    v_readfirstlane_b32 s6, v4
    s_cmp_eq_u32 s6, 0
    s_cbranch_scc1 K2_END""")
    a.e("s_mov_b32 s24, 1\ns_mov_b32 s25, 16\ns_mov_b32 s21, s22\ns_waitcnt vmcnt(0)")
    for i in range(4):
        for r in (6, 7): a.e(f"v_cndmask_b32 v{Q0+8*i+r}, v{Q0+8*i+r}, 0, s[30:31]")
        a.e(f"v_mov_b32 v{4+i}, 0xff800000")
    a.fence()
    a.label("K2_MAXLOOP")
    a.e("\n".join(kload(0)))
    a.e("s_add_u32 s21, s21, 4096\ns_waitcnt vmcnt(0)")
    for i in range(4):
        a.e(mf(O0 + 16 * i, KV0, Q0 + 8 * i, None))
        a.e(mf(O0 + 16 * i, KV0 + 4, Q0 + 8 * i + 4, O0 + 16 * i))
    for i in range(4): maxtree(a, O0 + 16 * i, 4 + i, acc=True)
    a.e("s_sub_u32 s25, s25, 1\ns_cmp_lg_u32 s25, 0")
    a.fence()
    a.e("s_cbranch_scc1 K2_MAXLOOP")
    for i in range(4): a.e(f"v_mov_b32 v{8+i}, v{4+i}")
    for i in range(4): a.e(f"v_permlane32_swap_b32 v{4+i}, v{8+i}")
    for i in range(4): a.e(f"v_max_f32 v{4+i}, v{4+i}, v{8+i}")
    a.e("v_lshlrev_b32 v12, 2, v0")
    for i in range(4):
        a.e(f"""s_add_u32 s6, s62, {i}
        s_and_b32 s6, s6, 3
        s_lshl_b32 s6, s6, 10
        s_add_u32 s6, s6, {FLAG + 256}
        v_add_u32 v{8+i}, s6, v12
        s_lshl_b32 s7, s62, 8
        v_add_u32 v13, s7, v{8+i}
        ds_write_b32 v13, v{4+i}""")
    a.e("s_waitcnt lgkmcnt(0)\ns_barrier")
    for i in range(4):
        for w in range(4): a.e(f"ds_read_b32 v{O0+4*i+w}, v{8+i} offset:{w*256}")
    a.e("s_waitcnt lgkmcnt(0)")
    for i in range(4):
        a.e(f"v_max3_f32 v{4+i}, v{O0+4*i}, v{O0+4*i+1}, v{O0+4*i+2}\nv_max_f32 v{4+i}, v{4+i}, v{O0+4*i+3}")
    kv_prologue()
    a.fence()
    a.e("s_branch K2_SETM")

def gen_k2(name="k2_kernel"):
    a = Asm()
    a.raw(f".p2align 8\n.globl {name}\n.type {name},@function\n{name}:")
    a.e(f"""s_cmp_ge_u32 s2, 256
    s_cbranch_scc1 K2_END
    s_load_dwordx2 s[28:29], s[0:1], 88
    v_lshrrev_b32 v1, 6, v0
    v_and_b32 v0, 63, v0
    s_lshr_b32 s60, s2, 4
    s_and_b32 s61, s2, 15
    v_readfirstlane_b32 s62, v1
    s_waitcnt lgkmcnt(0)""")
    srd(a, 52, 28, WS_SIZE)
    attention(a)
    a.label("K2_END")
    a.e("s_endpgm")
    return a
```

```python
from asmlib import *
from k1 import WS_Q, WS_KV, WS_ACT, WS_WF, WS_P, WS_SIZE, srd, f32
from k2 import mf
D = 6; NK = 36
AC = 16; BUF = 80
RST = 272
def gen_k3(name="k3_kernel"):
    a = Asm()
    a.raw(f".p2align 8\n.globl {name}\n.type {name},@function\n{name}:")
    a.e(f"""s_cmp_ge_u32 s2, 224
    s_cbranch_scc1 K3_END
    s_load_dwordx2 s[8:9], s[0:1], 0
    s_load_dwordx2 s[26:27], s[0:1], 72
    s_load_dwordx2 s[28:29], s[0:1], 88
    v_mov_b32 v15, v0
    v_lshrrev_b32 v1, 6, v0
    v_and_b32 v0, 63, v0
    s_and_b32 s3, s2, 7
    s_lshr_b32 s4, s2, 3
    s_mul_i32 s5, s4, 37
    s_lshr_b32 s5, s5, 8                ; r/7
    s_mul_i32 s6, s5, 7
    s_sub_u32 s61, s4, s6               ; np
    s_lshl_b32 s60, s3, 2
    s_add_u32 s60, s60, s5              ; tp
    v_readfirstlane_b32 s62, v1
    v_lshlrev_b32 v1, 4, v0
    s_mul_i32 s20, s60, {2*144*1024}
    s_mul_i32 s5, s62, {NK*1024}
    s_add_u32 s20, s20, s5
    s_add_u32 s20, s20, {WS_ACT}
    s_add_u32 s21, s20, {144*1024}
    s_mul_i32 s22, s62, {NK*14*1024}
    s_lshl_b32 s5, s61, 11
    s_add_u32 s22, s22, s5
    s_add_u32 s22, s22, {WS_WF}
    s_waitcnt lgkmcnt(0)""")
    srd(a, 52, 28, WS_SIZE); srd(a, 32, 8, 1835008); srd(a, 36, 26, 1835008)
    def loads(b):
        r = BUF + 16 * b
        return f"""buffer_load_dwordx4 v[{r}:{r+3}], v1, s[52:55], s22 offen
        buffer_load_dwordx4 v[{r+4}:{r+7}], v1, s[52:55], s22 offen offset:1024
        buffer_load_dwordx4 v[{r+8}:{r+11}], v1, s[52:55], s20 offen
        buffer_load_dwordx4 v[{r+12}:{r+15}], v1, s[52:55], s21 offen
        s_add_u32 s20, s20, 1024
        s_add_u32 s21, s21, 1024
        s_add_u32 s22, s22, {14*1024}"""
    a.e(f"""v_lshrrev_b32 v2, 3, v15
    v_and_b32 v3, 7, v15
    v_mul_u32_u24 v4, 896, v2
    v_lshl_add_u32 v4, v3, 4, v4
    s_mul_i32 s23, s60, {64*896}
    s_lshl_b32 s5, s61, 7
    s_add_u32 s23, s23, s5
    s_add_u32 s24, s23, {32*896}
    buffer_load_dwordx4 v[8:11], v4, s[32:35], s23 offen
    buffer_load_dwordx4 v[176:179], v4, s[32:35], s24 offen""")
    for b in range(D): a.e(loads(b))
    for r in range(64): a.e(f"v_mov_b32 v{AC+r}, 0")
    a.e(f"s_mov_b32 s25, {NK//D}")
    a.fence()
    a.label("K3_LOOP")
    for b in range(D):
        r = BUF + 16 * b
        a.e(f"s_waitcnt vmcnt({4*(D-1)})")
        for e in range(2):
            for t in range(2):
                acc = AC + 16 * (2 * t + e)
                a.e(mf(acc, r + 4 * e, r + 8 + 4 * t, acc))
        a.e(loads(b))
    a.e("s_sub_u32 s25, s25, 1\ns_cmp_lg_u32 s25, 0\ns_cbranch_scc1 K3_LOOP")
    a.e(f"""v_and_b32 v5, 31, v0
    v_mul_u32_u24 v5, {RST}, v5
    v_lshrrev_b32 v6, 5, v0
    v_lshl_add_u32 v5, v6, 4, v5
    s_mul_i32 s5, s62, {64*RST}
    v_add_u32 v5, s5, v5
    v_mul_u32_u24 v6, {RST}, v2
    v_lshl_add_u32 v6, v3, 5, v6""")
    a.fence()
    for t in range(2):
        for e in range(2):
            for g in range(4):
                acc = AC + 16 * (2 * t + e) + 4 * g
                a.e(f"ds_write_b128 v5, v[{acc}:{acc+3}] offset:{t*32*RST + e*128 + g*32}")
    a.e("s_waitcnt vmcnt(0) lgkmcnt(0)\ns_barrier")
    for i in range(2):
        for w in range(4):
            for h in range(2):
                r = AC + 32 * i + 8 * w + 4 * h
                off = w * 64 * RST + i * 32 * RST + h * 16
                a.e(f"ds_read_b128 v[{r}:{r+3}], v6 offset:{off}")
    for i in range(2):
        xr = 8 if i == 0 else 176
        a.e(f"s_waitcnt lgkmcnt({8 - 8*i})")
        b = AC + 32 * i
        for w in (1, 2, 3):
            for r in range(8): a.e(f"v_add_f32 v{b+r}, v{b+r}, v{b+8*w+r}")
        for r in range(4):
            a.e(f"""v_lshlrev_b32 v12, 16, v{xr+r}
            v_and_b32 v13, 0xffff0000, v{xr+r}
            v_add_f32 v{b+2*r}, v{b+2*r}, v12
            v_add_f32 v{b+2*r+1}, v{b+2*r+1}, v13
            v_cvt_pk_bf16_f32 v{xr+r}, v{b+2*r}, v{b+2*r+1}""")
        a.e(f"buffer_store_dwordx4 v[{xr}:{xr+3}], v4, s[36:39], s{23+i} offen")
    a.label("K3_END")
    a.e("s_endpgm")
    return a
```

```python
import sys
from asmlib import *
import k1, k2, k3
NAME = "parallel_sum__grouped_kv_mqa__glu_gated_glu__prompt"
hdr = open(f"cdna_kernels/{NAME}.s.ref").read().split("; Override launch")[0]
A1, A2, A3 = k1.gen_k1(), k2.gen_k2(), k3.gen_k3()
out = hdr + f"""; @launch kernel=k1_kernel grid=(256,1,1) block=(512,1,1) lds=163840
; @launch kernel=k2_kernel grid=(256,1,1) block=(256,1,1) lds=54272
; @launch kernel=k3_kernel grid=(224,1,1) block=(256,1,1) lds={4*64*k3.RST}
.amdgcn_target "amdgcn-amd-amdhsa--gfx950"
.text
""" + A1.text() + A2.text() + A3.text() + '.section .rodata,"a"\n' + kd("k1_kernel", 256) + kd("k2_kernel", 232) + kd("k3_kernel", 180)
dst = sys.argv[1] if len(sys.argv) > 1 else f"cdna_kernels/{NAME}.s"
open(dst, "w").write(out)
print("nops", A1.nops, A2.nops, A3.nops, "lines", len(A1.lines), len(A2.lines), len(A3.lines))
```

```python
import re

TRANS = ("v_exp_f32", "v_log_f32", "v_rcp_f32", "v_rsq_f32", "v_sqrt_f32", "v_sin_f32", "v_cos_f32")

def regs_of(tok):
    tok = tok.strip().lstrip("-")
    m = re.fullmatch(r"\|?([vsa])(\d+)\|?", tok)
    if m: return {(m.group(1), int(m.group(2)))}
    m = re.fullmatch(r"\|?([vsa])\[(\d+):(\d+)\]\|?", tok)
    if m: return {(m.group(1), i) for i in range(int(m.group(2)), int(m.group(3)) + 1)}
    if tok == "vcc": return {("s", "vcc")}
    if tok == "exec": return {("s", "exec")}
    if tok == "m0": return {("s", "m0")}
    return set()

class Ins:
    def __init__(self, text):
        self.text = text
        t = text.split(";")[0].strip()
        parts = t.split(None, 1)
        self.op = parts[0]
        ops = [o.strip() for o in parts[1].split(",")] if len(parts) > 1 else []
        if ops:
            ops[-1] = ops[-1].split()[0] if ops[-1].split() else ops[-1]
        self.ops = ops
        op = self.op
        self.mfma = op.startswith("v_mfma")
        self.valu = op.startswith("v_") and not self.mfma
        self.trans = op.replace("_e32", "").replace("_e64", "") in TRANS
        self.dot = op.startswith("v_dot")
        self.ds = op.startswith("ds_")
        self.vmem = op.startswith("buffer_") or op.startswith("global_")
        self.salu = op.startswith("s_")
        self.lds_dma = self.vmem and (" lds" in t or "_lds_" in op)
        self.w = set(); self.r = set(); self.srcc = set(); self.ab = set()
        R = [regs_of(o) for o in ops]
        if self.mfma:
            self.w = R[0]; self.ab = R[1] | R[2]; self.srcc = R[3]; self.r = self.ab | self.srcc
            self.passes = 8 if "32x32x16" in op else 4
        elif self.valu:
            nd = 1
            if op.startswith(("v_add_co", "v_sub_co", "v_addc_co", "v_subb_co")): nd = 2
            for x in R[:nd]: self.w |= x
            for x in R[nd:]: self.r |= x
            if op.startswith(("v_fmac", "v_dot2c")): self.r |= R[0]
            if op.startswith("v_permlane") and "swap" in op:
                self.w = R[0] | R[1]; self.r = R[0] | R[1]
            if op.startswith("v_cmpx"): self.w |= {("s", "exec")}
            if op.startswith("v_cndmask") and len(ops) == 3: self.r |= {("s", "vcc")}
        elif self.ds:
            if op.startswith(("ds_write", "ds_add_f32", "ds_add_u32")) :
                for x in R: self.r |= x
            else:
                self.w = R[0]
                for x in R[1:]: self.r |= x
        elif self.vmem:
            if "store" in op or self.lds_dma or ("atomic" in op):
                for x in R: self.r |= x
                if self.lds_dma: self.r |= {("s", "m0")}
            else:
                self.w = R[0]
                for x in R[1:]: self.r |= x
        elif self.salu:
            if op.startswith(("s_cmp", "s_cbranch", "s_branch", "s_waitcnt", "s_barrier", "s_nop", "s_endpgm", "s_setprio", "s_sleep")):
                for x in R: self.r |= x
            else:
                if R: self.w = R[0]
                for x in R[1:]: self.r |= x
                if "saveexec" in op: self.w |= {("s", "exec")}
        self.slots = 1
        if op == "s_nop": self.slots = int(ops[0]) + 1
        self.wide_store = self.vmem and "store" in op and ("x4" in op or "x3" in op)
        self.store_data = R[0] if (self.wide_store and op.startswith("buffer")) else (R[1] if self.wide_store else set())

def need(prev, cur):
    n = 0
    vw = {x for x in prev.w if x[0] in "va"}
    sw = {x for x in prev.w if x[0] == "s"}
    if prev.valu:
        if cur.mfma and vw & cur.r: n = max(n, 2)
        if prev.trans and cur.valu and not cur.trans and vw & cur.r: n = max(n, 1)
        if prev.trans and (cur.ds or cur.vmem) and vw & cur.r: n = max(n, 1)
        if cur.op.startswith(("v_readfirstlane", "v_readlane")) and vw & cur.r: n = max(n, 1)
        if cur.op.startswith("v_permlane") and vw & cur.r: n = max(n, 2)
        if "dpp" in cur.text or "quad_perm" in cur.text or "row_" in cur.text:
            if vw & cur.r: n = max(n, 2)
        if sw and cur.valu and sw & cur.r: n = max(n, 2)
        if sw and cur.vmem and sw & cur.r: n = max(n, 5)
        if sw and cur.salu and sw & cur.r: n = max(n, 1)
        if ("s", "exec") in sw and (cur.mfma or cur.op.startswith(("v_readlane", "v_readfirstlane", "v_permlane"))): n = max(n, 4)
        if prev.dot:
            if (cur.valu or cur.mfma or cur.ds or cur.vmem) and vw & (cur.r | cur.w):
                same_acc = cur.op == prev.op and not (vw & (regs_of(cur.ops[1]) | regs_of(cur.ops[2])))
                if not same_acc: n = max(n, 3)
    if prev.mfma:
        big = 12 if prev.passes == 8 else 8
        if cur.mfma:
            if prev.w & cur.ab: n = max(n, big)
            if prev.w & cur.srcc and not (prev.w == cur.srcc and prev.passes == cur.passes): n = max(n, big - 2)
            if prev.w & cur.w and not (prev.w == cur.srcc): n = max(n, big)
        elif cur.valu or cur.ds or cur.vmem:
            if prev.w & (cur.r | cur.w): n = max(n, big)
            if cur.valu and prev.srcc & cur.w: n = max(n, 7 if prev.passes == 8 else 3)
    if prev.salu and ("s", "m0") in prev.w and cur.lds_dma: n = max(n, 1)
    if prev.wide_store and prev.store_data & cur.w: n = max(n, 2)
    return n

import os
STAMP = bool(os.environ.get("STAMP"))
WS_DBG = 0x1800000
class Asm:
    def stamp(self, i):
        if not STAMP: return
        self.e(f"s_memtime s[100:101]\ns_waitcnt lgkmcnt(0)\ns_mov_b32 s{88+i}, s100" if i not in (10, 11) else
               f"s_memrealtime s[100:101]\ns_waitcnt lgkmcnt(0)\ns_mov_b32 s{88+i}, s100")
    def dump(self, kidx, wave_sgpr, nw, wadd=0):
        if not STAMP: return
        self.stamp(9); self.stamp(11)
        self.e(f"s_mul_i32 s100, s2, {nw}\ns_add_u32 s100, s100, s{wave_sgpr}\ns_add_u32 s100, s100, {wadd}\ns_lshl_b32 s100, s100, 6\ns_add_u32 s100, s100, {WS_DBG + kidx*0x40000}")
        self.e("s_nop 7\ns_nop 7\nv_mov_b32 v1, 0")
        for g in range(3):
            for r in range(4): self.e(f"v_mov_b32 v{4+r}, s{88+4*g+r}")
            self.e(f"buffer_store_dwordx4 v[4:7], v1, s[52:55], s100 offen offset:{16*g}")
    def __init__(self):
        self.lines = []
        self.hist = []
        self.nops = 0
    def raw(self, s):
        self.lines.append(s)
    def label(self, name, keep=False):
        self.lines.append(name + ":")
    def fence(self, n=12):
        worst = 0; dist = 0
        for p in reversed(self.hist):
            req = 12 if p.mfma else (5 if p.valu else 2 if p.wide_store else 1)
            worst = max(worst, req - dist)
            dist += p.slots
            if dist > 16: break
        if worst > 0: self.e(f"s_nop {worst-1}")
    def e(self, text):
        for t in text.strip().split("\n"):
            t = t.strip()
            if not t or t.startswith(";"): continue
            if t.endswith(":"):
                self.lines.append(t); continue
            cur = Ins(t)
            dist = 0; pad = 0
            for p in reversed(self.hist):
                pad = max(pad, need(p, cur) - dist)
                dist += p.slots
                if dist > 16: break
            if pad > 0:
                nop = Ins(f"s_nop {pad-1}")
                self.lines.append(f"    s_nop {pad-1}")
                self.hist.append(nop); self.nops += pad
            self.lines.append("    " + t)
            self.hist.append(cur)
            if len(self.hist) > 40: self.hist = self.hist[-24:]
    def text(self):
        return "\n".join(self.lines) + "\n"

def vr(a, n=1):
    return f"v{a}" if n == 1 else f"v[{a}:{a+n-1}]"
def sr(a, n=1):
    return f"s{a}" if n == 1 else f"s[{a}:{a+n-1}]"

def interleave(main, fill):
    out = []
    n = len(main); k = 0
    for i, g in enumerate(main):
        out += g
        tgt = (len(fill) * (i + 1)) // n
        out += fill[k:tgt]; k = tgt
    return out

def kd(name, vgpr, sgpr=102):
    return f""".p2align 6
.amdhsa_kernel {name}
  .amdhsa_next_free_vgpr {vgpr}
  .amdhsa_next_free_sgpr {sgpr}
  .amdhsa_accum_offset {(vgpr+3)//4*4}
  .amdhsa_group_segment_fixed_size 0
  .amdhsa_kernarg_size 96
  .amdhsa_user_sgpr_count 2
  .amdhsa_user_sgpr_kernarg_segment_ptr 1
  .amdhsa_system_sgpr_workgroup_id_x 1
  .amdhsa_float_denorm_mode_32 3
  .amdhsa_float_denorm_mode_16_64 3
.end_amdhsa_kernel
"""
```

```python
from asmlib import *
WS_Q, WS_KV, WS_ACT, WS_WF, WS_P = 0x0, 0x200000, 0x400000, 0xD00000, 0x1000000
WS_SIZE = 0x2000000
LOG2E = 1.4426950408889634
import struct
def f32(x): return "0x%08x" % struct.unpack("<I", struct.pack("<f", x))[0]
SC = " sc1" if os.environ.get("NOSC1") is None else ""

def srd(a, d, lo, size):
    a.e(f"s_mov_b32 s{d}, s{lo}\ns_mov_b32 s{d+1}, s{lo+1}\ns_mov_b32 s{d+2}, {size}\ns_mov_b32 s{d+3}, 0x20000")

SLOT = 16384
WSLOT = [7, 8, 9, 0, 1, 2, 3]
VSLOT = [4, 5, 6, 7, 8, 9, 0]
VT = 1 * SLOT

class Win:
    def __init__(self, regs): self.regs = regs; self.cur = 0
    def off(self, addr, span=16384):
        fix = []
        if not (0 <= addr - self.cur and addr - self.cur + span <= 65536):
            new = min((addr // 16384) * 16384, 6 * 16384)
            d = new - self.cur
            for r in self.regs:
                fix.append(f"v_add_u32 v{r}, {d & 0xffffffff}, v{r}")
            self.cur = new
        return fix, addr - self.cur

def a_addr_setup(a, dst, lane, t1, t2):
    a.e(f"""v_bfe_u32 v{t1}, v{lane}, 4, 1
    v_lshlrev_b32 v{dst}, 13, v{t1}
    v_bfe_u32 v{t2}, v{lane}, 2, 2
    v_lshl_add_u32 v{dst}, v{t2}, 7, v{dst}
    v_and_b32 v{t2}, 2, v{t2}
    v_xor_b32 v{t1}, v{t1}, v{t2}
    v_lshl_add_u32 v{dst}, v{t1}, 5, v{dst}
    v_lshrrev_b32 v{t1}, 5, v{lane}
    v_lshl_add_u32 v{dst}, v{t1}, 10, v{dst}
    v_and_b32 v{t1}, 3, v{lane}
    v_lshl_add_u32 v{dst}, v{t1}, 3, v{dst}""")

X0 = 16
ACC = [128, 144, 160, 176, 192, 208, 128, 144]
FR = 224

def ffn_epi(A, sbase, imm):
    o = []
    for r in range(8): o.append(f"v_mul_f32 v{A+r}, s75, v{A+r}")
    for r in range(8): o.append(f"v_exp_f32 v{A+r}, v{A+r}")
    for r in range(8): o.append(f"v_add_f32 v{A+r}, 1.0, v{A+r}")
    for r in range(8): o.append(f"v_rcp_f32 v{A+r}, v{A+r}")
    for r in range(8): o.append(f"v_mul_f32 v{A+r}, v{A+r}, v{A+8+r}")
    for i in range(4): o.append(f"v_cvt_pk_bf16_f32 v{A+8+i}, v{A+2*i}, v{A+2*i+1}")
    o.append(f"buffer_store_dwordx4 v[{A+8}:{A+11}], v0, s[52:55], s{sbase} offen offset:{imm}{SC}")
    return o

def q_epi(A, cbA, cbB):
    o = []
    for r in range(16): o.append(f"v_mul_f32 v{A+r}, s76, v{A+r}")
    for i in range(8): o.append(f"v_cvt_pk_bf16_f32 v{A+i}, v{A+2*i}, v{A+2*i+1}")
    for g, cb in ((0, cbA), (1, cbB)):
        o.append(f"buffer_store_dwordx4 v[{A+4*g}:{A+4*g+3}], v0, s[52:55], s{67 + cb//4} offen offset:{(cb%4)*1024}{SC}")
    return o

def k_epi(A):
    o = ["v_cmp_lt_u32 vcc, 511, v0", "v_mov_b32 v5, 0x3f803f80", "v_mov_b32 v6, 0x3f80"]
    for i in range(8): o.append(f"v_cvt_pk_bf16_f32 v{A+i}, v{A+2*i}, v{A+2*i+1}")
    o += [f"v_cndmask_b32 v{A+6}, v{A+6}, v5, vcc", f"v_cndmask_b32 v{A+7}, v{A+7}, v6, vcc",
          f"buffer_store_dwordx4 v[{A}:{A+3}], v0, s[52:55], s71 offen{SC}",
          f"buffer_store_dwordx4 v[{A+4}:{A+7}], v0, s[52:55], s71 offen offset:1024{SC}"]
    return o

def v_epi(A):
    o = []
    for i in range(8): o.append(f"v_cvt_pk_bf16_f32 v{A+i}, v{A+2*i}, v{A+2*i+1}")
    o += [f"v_cndmask_b32 v{A+6}, v{A+6}, v6, vcc", f"v_cndmask_b32 v{A+7}, v{A+7}, 0, vcc",
          "s_lshl_b32 s5, s62, 11", f"s_add_u32 s5, s5, {VT}",
          "v_bfe_u32 v8, v0, 4, 5", "v_lshlrev_b32 v8, 6, v8", "v_lshrrev_b32 v9, 9, v0",
          "v_lshl_add_u32 v8, v9, 3, v8", "v_add_u32 v8, s5, v8"]
    for g in range(4): o.append(f"ds_write_b64 v8, v[{A+2*g}:{A+2*g+1}] offset:{16*g}")
    o += ["v_bfe_u32 v10, v0, 6, 2", "v_lshl_add_u32 v10, v9, 2, v10", "v_lshlrev_b32 v10, 6, v10",
          "v_bfe_u32 v11, v0, 8, 1", "v_lshl_add_u32 v10, v11, 5, v10", "v_bfe_u32 v11, v0, 4, 2",
          "v_lshl_add_u32 v10, v11, 3, v10", "v_add_u32 v10, s5, v10"]
    for i in range(4): o.append(f"ds_read_b64_tr_b16 v[{A+8+2*i}:{A+9+2*i}], v10 offset:{i*512}")
    o += ["WAIT", f"buffer_store_dwordx4 v[{A+8}:{A+11}], v0, s[52:55], s71 offen offset:2048{SC}",
          "WAIT", f"buffer_store_dwordx4 v[{A+12}:{A+15}], v0, s[52:55], s71 offen offset:3072{SC}"]
    return o

def mf(acc, fa, fb, first):
    return f"v_mfma_f32_32x32x16_bf16 v[{acc}:{acc+15}], v[{fa}:{fa+3}], v[{fb}:{fb+3}], " + ("0" if first else f"v[{acc}:{acc+15}]")

class Counted:
    def __init__(self, a): self.a = a; self.pend = []
    def emit(self, seq):
        a = self.a
        for i, t in enumerate(seq):
            if t.startswith("WAIT"):
                rs = set(Ins(seq[i + 1]).r)
                if len(t) > 4: rs |= regs_of(t[5:])
                k = -1
                for idx, w in enumerate(self.pend):
                    if w & rs: k = idx
                if k >= 0:
                    left = min(len(self.pend) - 1 - k, 15)
                    a.e(f"s_waitcnt lgkmcnt({left})")
                    self.pend = self.pend[len(self.pend) - left:] if left else []
                continue
            if t == "DRAIN":
                a.e("s_waitcnt lgkmcnt(0)"); self.pend = []; continue
            if t.startswith("STAMP"):
                a.stamp(int(t[5:]))
                if STAMP: self.pend = []
                continue
            ins = Ins(t)
            if ins.ds: self.pend.append(set(ins.w))
            a.e(t)

def k1_entry(a, endlab):
    a.e(f"""s_cmp_ge_u32 s2, 256
    s_cbranch_scc1 {endlab}
    s_load_dwordx16 s[8:23], s[0:1], 0
    s_load_dwordx8 s[24:31], s[0:1], 64
    v_lshrrev_b32 v1, 6, v0
    v_and_b32 v0, 63, v0
    s_and_b32 s3, s2, 7
    s_lshr_b32 s4, s2, 3
    v_readfirstlane_b32 s62, v1
    s_and_b32 s60, s3, 3
    s_lshl_b32 s60, s60, 2
    s_and_b32 s5, s4, 3
    s_add_u32 s60, s60, s5             ; mt
    s_lshr_b32 s61, s3, 2
    s_lshl_b32 s61, s61, 3
    s_lshr_b32 s6, s4, 2
    s_add_u32 s61, s61, s6             ; j
    s_lshl_b32 s5, s5, 1
    s_add_u32 s63, s5, s6
    s_cmp_ge_u32 s63, 7
    s_cselect_b32 s6, 7, 0
    s_sub_u32 s63, s63, s6
    v_lshrrev_b32 v2, 3, v0
    v_and_b32 v3, 7, v0                ; p
    s_waitcnt lgkmcnt(0)""")
    srd(a, 52, 30, WS_SIZE)

def k1_compute(a, tail_hook=None, mid_hook=None):
    srd(a, 32, 8, 1835008)
    a.e(f"""v_lshrrev_b32 v4, 4, v0
    v_xor_b32 v4, v4, v3
    v_mul_u32_u24 v5, 896, v2
    v_lshl_add_u32 v12, v4, 4, v5
    v_xor_b32 v4, 4, v4
    v_lshl_add_u32 v13, v4, 4, v5
    s_lshl_b32 s64, s60, 2
    s_add_u32 s64, s64, s62            ; tt
    s_mul_i32 s72, s64, {32*896}
    s_lshl_b32 s73, s63, 7
    s_mul_i32 s74, s62, 28672""")
    def issue_x(c):
        a.e(f"s_add_u32 s6, s72, s73")
        for n in range(4):
            a.e(f"""s_add_u32 m0, s74, {c*4096 + n*1024}
            s_add_u32 s5, s6, {n*8*896}
            buffer_load_dwordx4 v{12 + (n&1)}, s[32:35], s5 offen lds""")
        a.e("s_add_u32 s73, s73, 128\ns_cmp_eq_u32 s73, 896\ns_cselect_b32 s73, 0, s73")
    for c in range(4): issue_x(c)
    a_addr_setup(a, 1, 0, 5, 6)
    a.e(f"""v_xor_b32 v2, 32, v1
    v_xor_b32 v3, 64, v1
    v_xor_b32 v4, 0x60, v1
    v_mov_b32 v200, v1
    s_cmp_lg_u32 s61, 3
    s_cbranch_scc1 K1_NJ3
    v_and_b32 v1, 0x1fff, v1
    v_xor_b32 v2, 64, v1
    v_add_u32 v3, 0x2000, v1
    v_add_u32 v4, 0x2000, v2
    K1_NJ3:
    v_and_b32 v5, 31, v0
    v_bfe_u32 v6, v5, 1, 3
    v_lshrrev_b32 v7, 5, v0
    v_xor_b32 v6, v6, v7
    v_lshlrev_b32 v8, 7, v5
    v_lshl_add_u32 v8, v6, 4, v8
    v_add_u32 v8, s74, v8
    v_xor_b32 v9, 32, v8
    v_xor_b32 v10, 64, v8
    v_xor_b32 v11, 0x60, v8
    v_mov_b32 v5, 0
    v_mov_b32 v6, 0
    v_mov_b32 v7, 0
    v_mov_b32 v14, 0
    v_lshlrev_b32 v15, 3, v0
    v_lshlrev_b32 v0, 4, v0
    s_mov_b32 s77, 0x3f803f80
    s_mov_b32 s78, 0xffff0000
    s_mov_b32 s75, {f32(-LOG2E)}
    s_mov_b32 s76, {f32(LOG2E * 28 ** -0.5)}
    s_mul_i32 s65, s64, {144*1024}
    s_add_u32 s65, s65, {WS_ACT}
    s_add_u32 s5, s61, 24
    s_lshl_b32 s6, s61, 1
    s_sub_u32 s6, s6, 7
    s_cmp_lt_u32 s61, 4
    s_cselect_b32 s5, s5, s6
    s_lshl_b32 s5, s5, 12
    s_add_u32 s66, s65, s5
    s_sub_u32 s65, s66, 4096           ; act base sg0 (ffn only)
    s_mul_i32 s67, s64, {112*256}
    s_lshl_b32 s5, s61, 13             ; j*32 cgs*256
    s_add_u32 s67, s67, s5
    s_add_u32 s68, s67, 4096
    s_lshl_b32 s71, s64, 12
    s_add_u32 s71, s71, {WS_KV}""")
    for c in range(7):
        left = min(3, 6 - c)
        a.e(f"s_waitcnt vmcnt({4*left})")
        for s in range(4):
            n = 4 * c + s
            a.e(f"ds_read_b128 v[{X0+4*n}:{X0+4*n+3}], v{8+s} offset:{c*4096}")
        if c + 4 < 7: issue_x(c + 4)
        for s in range(4):
            a.e(f"s_waitcnt lgkmcnt({3-s})")
            for t in range(4):
                r = X0 + 16 * c + 4 * s + t
                a.e(f"v_dot2_f32_bf16 v{5 if t&1 else 7}, v{r}, s77, v{5 if t&1 else 7}")
                a.e(f"v_dot2_f32_bf16 v{6 if t&1 else 14}, v{r}, v{r}, v{6 if t&1 else 14}")
    a.stamp(2)
    a.e("s_barrier")
    a.stamp(3)
    wa = Win([1, 2, 3, 4])
    def reads_sg0(n):
        c, s = divmod(n, 4)
        fa, oa = wa.off(WSLOT[c] * SLOT)
        g = []
        for t in range(4):
            b = FR + 16 * (n & 1) + 4 * t
            rd = [f"ds_read_b64_tr_b16 v[{b+2*u}:{b+2*u+1}], v{1+t} offset:{oa + s*2048 + u*512}" for u in range(2)]
            g.append((fa if t == 0 else []) + rd)
        return g
    def norm(n, t):
        r = X0 + 4 * n + t; T = 192 + 2 * t
        return [f"v_lshlrev_b32 v{T}, 16, v{r}", f"v_and_b32 v{T+1}, s78, v{r}",
                f"v_fma_f32 v{T}, v{T}, v12, v13", f"v_fma_f32 v{T+1}, v{T+1}, v12, v13",
                f"v_cvt_pk_bf16_f32 v{r}, v{T}, v{T+1}"]
    def reads_pair(n, e, t):
        c, s = divmod(n, 4)
        fa, oa = wa.off(VSLOT[c] * SLOT)
        b = FR + 8 * (n & 3) + 4 * e
        return fa + [f"ds_read_b64_tr_b16 v[{b+2*u}:{b+2*u+1}], v{1+t} offset:{oa + s*2048 + u*512}" for u in range(2)]
    C = Counted(a)
    seq = []
    for g in reads_sg0(0): seq += g
    seq += [x.strip() for x in f"""v_add_f32 v5, v5, v7
    v_add_f32 v6, v6, v14
    v_mov_b32 v8, v5
    v_mov_b32 v9, v6
    v_permlane32_swap_b32 v5, v8
    v_permlane32_swap_b32 v6, v9
    v_add_f32 v5, v5, v8
    v_add_f32 v6, v6, v9
    v_mul_f32 v5, {f32(1/448)}, v5
    v_mul_f32 v6, {f32(1/448)}, v6
    v_fma_f32 v6, -v5, v5, v6
    v_max_f32 v6, 0, v6
    v_cvt_pk_bf16_f32 v5, v5, v5
    v_cvt_pk_bf16_f32 v6, v6, v6
    v_lshlrev_b32 v5, 16, v5
    v_lshlrev_b32 v6, 16, v6
    v_add_f32 v6, {f32(1e-5)}, v6
    v_cvt_pk_bf16_f32 v6, v6, v6
    v_lshlrev_b32 v6, 16, v6
    v_sqrt_f32 v6, v6
    v_cvt_pk_bf16_f32 v6, v6, v6
    v_lshlrev_b32 v6, 16, v6
    v_rcp_f32 v12, v6
    v_mul_f32 v13, -v5, v12""".split("\n")]
    nrm = [norm(0, t) for t in range(4)]
    for i in range(5):
        for t in range(4): seq.append(nrm[t][i])
    for n in range(28):
        c = n // 4
        bar = (n % 4 == 3) and (c % 2 == 0)
        nxt = reads_sg0(n + 1) if (n < 27 and not bar) else None
        nl = []
        if n < 27:
            nn = [norm(n + 1, t) for t in range(4)]
            for p in (0, 2):
                for i in range(5): nl += [nn[p][i], nn[p + 1][i]]
        for t in range(4):
            fa = FR + 16 * (n & 1) + 4 * t
            if bar and t == 2: seq.append("DRAIN")
            elif t % 2 == 0: seq.append(f"WAIT v[{fa+4}:{fa+7}]")
            seq.append(mf(ACC[t], fa, X0 + 4 * n, n == 0))
            if not bar:
                if nxt: seq += nxt[t]
            elif t == 2:
                seq.append("s_barrier")
                if n < 27:
                    nxt = reads_sg0(n + 1); seq += nxt[0] + nxt[1]
                else:
                    wa.cur = 4 * SLOT
                    seq += ["STAMP5", f"v_add_u32 v1, {4*SLOT}, v200", "v_xor_b32 v2, 32, v1", "v_xor_b32 v3, 64, v1", "v_xor_b32 v4, 0x60, v1"]
                    seq += reads_pair(0, 0, 0) + reads_pair(0, 1, 1) + reads_pair(1, 0, 0) + reads_pair(1, 1, 1)
            elif t == 3 and n < 27:
                seq += nxt[2] + nxt[3]
            seq += nl[5 * t: 5 * t + 5]
    C.emit(seq)
    def pair_phase(accs, tiles, next_tiles, first):
        groups = []
        for n in range(28):
            for e in range(2):
                fa = FR + 8 * (n & 3) + 4 * e
                g = [f"WAIT v[{fa+4}:{fa+7}]"] if e == 0 else []
                g.append(mf(accs[e], fa, X0 + 4 * n, n == 0))
                if first and n == 0: g += reads_pair(2, e, tiles[e])
                if n + 3 < 28: g += reads_pair(n + 3, e, tiles[e])
                elif next_tiles is not None: g += reads_pair(n + 3 - 28, e, next_tiles[e])
                groups.append(g)
        return groups
    save = (wa.cur, list(C.pend), None)
    def variant(kind):
        wa.cur = save[0]; C.pend = list(save[1])
        g2 = pair_phase([ACC[4], ACC[5]], [0, 1], [2, 3], True)
        g3 = pair_phase([ACC[6], ACC[7]], [2, 3], None, False)
        if kind == "ffn":
            f2 = sum((ffn_epi(ACC[t], 65, t * 1024) for t in range(3)), [])
            f3 = ffn_epi(ACC[3], 65, 3072)
        elif kind == "q":
            f2 = sum((q_epi(ACC[t], t, 4 + t) for t in range(4)), []); f3 = []
        else:
            f2 = k_epi(ACC[2]) + v_epi(ACC[3]) + q_epi(ACC[0], 0, 1) + q_epi(ACC[1], 2, 3); f3 = []
        f3 = f3 + ffn_epi(ACC[4], 66, 0) + ffn_epi(ACC[5], 66, 1024)
        def ilv(groups, fill):
            units = []
            i = 0
            while i < len(fill):
                if fill[i].startswith("WAIT"): units.append(fill[i:i+2]); i += 2
                else: units.append([fill[i]]); i += 1
            out = []; k = 0
            for gi, g in enumerate(groups):
                out += g
                tgt = (len(units) * (gi + 1)) // len(groups)
                for u in units[k:tgt]: out += u
                k = tgt
            return out
        seq = g2[0] + g2[1] + g2[2] + ilv(g2[3:56] if kind == "ffn" else g2[3:36], f2)
        if kind != "ffn":
            for g in g2[36:]: seq += g
        seq += ["STAMP6"]
        lead = 1 if kind == "ffn" else 4
        for g in g3[:lead]: seq += g
        seq += ilv(g3[lead:], f3)
        C.emit(seq)
        a.stamp(7)
        e0 = ffn_epi(ACC[6], 66, 2048); e1 = ffn_epi(ACC[7], 66, 3072)
        a.e("\n".join(e0 + e1))
        a.e("s_branch K1_CDONE")
    hist = list(a.hist)
    a.e("s_cmp_lt_u32 s61, 4\ns_cbranch_scc1 K1_QKV")
    variant("ffn")
    a.label("K1_QKV"); a.hist = list(hist)
    a.e("s_cmp_eq_u32 s61, 3\ns_cbranch_scc1 K1_KV")
    variant("q")
    a.label("K1_KV"); a.hist = list(hist)
    variant("kv")
    a.label("K1_CDONE")

def k1_loader(a):
    srd(a, 44, 12, 25088)
    srd(a, 48, 14, 25088)
    srd(a, 32, 20, 448*1792*2)
    srd(a, 56, 22, 448*1792*2)
    a.e(f"""s_sub_u32 s62, s62, 4
    s_cmp_ge_u32 s61, 4
    s_cselect_b32 s36, s20, s10
    s_cselect_b32 s37, s21, s11
    s_cselect_b32 s40, s22, s10
    s_cselect_b32 s41, s23, s11
    s_mov_b32 s38, {448*448*2}
    s_mov_b32 s64, 896
    s_cselect_b32 s38, {448*1792*2}, s38
    s_cselect_b32 s64, 3584, s64
    s_cselect_b32 s5, 0, 128
    s_mov_b32 s39, 0x20000
    s_mov_b32 s42, s38
    s_mov_b32 s43, 0x20000
    s_sub_u32 s6, s61, 4
    s_cmp_ge_u32 s61, 4
    s_cselect_b32 s6, s6, s61
    s_lshl_b32 s65, s6, 8
    s_add_u32 s7, s65, 128
    s_lshl_b32 s6, s61, 7
    s_add_u32 s6, s6, {24*128}
    s_cmp_ge_u32 s61, 4
    s_cselect_b32 s67, s7, s6
    s_mul_i32 s7, s62, s64
    s_lshl_b32 s7, s7, 4
    s_add_u32 s65, s65, s7
    s_add_u32 s66, s65, s5              ; B sg0
    s_mul_i32 s7, s62, {16*3584}
    s_add_u32 s67, s67, s7              ; sg1
    s_lshl_b32 s69, s64, 3
    s_lshl_b32 s70, s64, 6
    s_lshl_b32 s73, s62, 11
    s_mul_i32 s74, s62, {16*56}
    s_mov_b32 s71, s63
    s_mov_b32 s72, s63
    v_lshrrev_b32 v4, 1, v3             ; ps
    v_and_b32 v5, 2, v2
    v_xor_b32 v4, v4, v5                ; tA
    v_xor_b32 v5, 1, v4                 ; tB
    v_and_b32 v6, 1, v3
    v_mul_lo_u32 v7, v2, s64
    v_lshl_add_u32 v7, v6, 4, v7
    v_lshl_add_u32 v10, v4, 5, v7
    v_lshl_add_u32 v11, v5, 5, v7
    v_mul_u32_u24 v7, 3584, v2
    v_lshl_add_u32 v7, v6, 4, v7
    v_lshl_add_u32 v8, v4, 5, v7
    v_lshl_add_u32 v9, v5, 5, v7
    v_mul_u32_u24 v7, 56, v2
    v_and_b32 v6, 3, v3
    v_lshl_add_u32 v12, v6, 4, v7
    v_cmp_gt_u32 s[76:77], 2, v4
    v_cmp_le_u32 s[78:79], 2, v4""")
    def adv(s): a.e(f"s_add_u32 s{s}, s{s}, 1\ns_cmp_eq_u32 s{s}, 7\ns_cselect_b32 s{s}, 0, s{s}")
    lab = [0]
    def issue_w(c):
        base = WSLOT[c] * SLOT; lab[0] += 1; L = lab[0]
        a.e(f"""s_mul_i32 s7, s71, s70
        s_add_u32 s5, s65, s7
        s_add_u32 s6, s66, s7
        s_cmp_eq_u32 s61, 3
        s_cbranch_scc1 K1_VS{L}
        s_add_u32 m0, s73, {base}
        s_add_u32 s7, s5, s69
        buffer_load_dwordx4 v10, s[36:39], s5 offen lds
        s_add_u32 m0, s73, {base + 1024}
        s_add_u32 s3, s6, s69
        buffer_load_dwordx4 v10, s[36:39], s7 offen lds
        s_add_u32 m0, s73, {base + 8192}
        s_nop 0
        buffer_load_dwordx4 v11, s[40:43], s6 offen lds
        s_add_u32 m0, s73, {base + 8192 + 1024}
        s_nop 0
        buffer_load_dwordx4 v11, s[40:43], s3 offen lds
        s_branch K1_VE{L}""")
        a.label(f"K1_VS{L}")
        a.e(f"""s_mul_i32 s7, s71, {64*56}
        s_add_u32 s7, s7, s74
        s_add_u32 m0, s73, {base}
        s_add_u32 s3, s5, s69
        buffer_load_dwordx4 v10, s[36:39], s5 offen lds
        s_add_u32 m0, s73, {base + 1024}
        s_add_u32 s4, s7, {8*56}
        buffer_load_dwordx4 v10, s[36:39], s3 offen lds""")
        for n in range(2):
            a.e(f"""s_add_u32 m0, s73, {base + 8192 + n*1024}
            s_mov_b64 exec, s[76:77]
            buffer_load_dwordx4 v12, s[44:47], s{7 if n == 0 else 4} offen lds
            s_mov_b64 exec, s[78:79]
            buffer_load_dwordx4 v12, s[48:51], s{7 if n == 0 else 4} offen lds""")
        a.e("s_mov_b64 exec, -1")
        a.label(f"K1_VE{L}")
        adv(71)
    def issue_v(c):
        base = VSLOT[c] * SLOT
        a.e(f"""s_mul_i32 s5, s72, {64*3584}
        s_add_u32 s5, s5, s67
        s_add_u32 m0, s73, {base}
        s_add_u32 s7, s5, {8*3584}
        buffer_load_dwordx4 v8, s[32:35], s5 offen lds
        s_add_u32 m0, s73, {base + 1024}
        s_nop 0
        buffer_load_dwordx4 v8, s[32:35], s7 offen lds
        s_add_u32 m0, s73, {base + 8192}
        s_nop 0
        buffer_load_dwordx4 v9, s[56:59], s5 offen lds
        s_add_u32 m0, s73, {base + 8192 + 1024}
        s_nop 0
        buffer_load_dwordx4 v9, s[56:59], s7 offen lds""")
        adv(72)
    issue_w(0)
    a.e("s_waitcnt vmcnt(0)")
    issue_w(1); issue_w(2)
    a.e("s_barrier")
    issue_w(3)
    a.e("s_waitcnt vmcnt(4)\ns_barrier")
    issue_w(4); issue_w(5); issue_w(6); issue_v(0)
    a.e("s_waitcnt vmcnt(12)\ns_barrier")
    issue_v(1); issue_v(2); issue_v(3); issue_v(4)
    a.e("s_waitcnt vmcnt(20)\ns_barrier")
    issue_v(5); issue_v(6)
    a.e("s_waitcnt vmcnt(0)\ns_barrier")

def relayout(a, endlab):
    a.e(f"""s_cmp_ge_u32 s2, 144
    s_cbranch_scc1 {endlab}
    s_cmp_lt_u32 s2, 112
    s_cselect_b32 s56, s24, s16
    s_cselect_b32 s57, s25, s17
    s_mov_b32 s58, {448*448*2}
    s_cselect_b32 s58, {1792*448*2}, s58
    s_mov_b32 s59, 0x20000
    s_sub_u32 s5, s2, 112
    s_lshr_b32 s6, s5, 1
    s_mul_i32 s6, s6, 28
    s_and_b32 s75, s5, 1
    s_lshl_b32 s7, s75, 4
    s_add_u32 s6, s6, s7
    s_lshl_b32 s7, s2, 4
    s_cmp_lt_u32 s2, 112
    s_cselect_b32 s6, s7, s6
    s_cselect_b32 s75, 0, s75
    s_mul_i32 s6, s6, 896
    s_lshl_b32 s7, s62, 7
    s_add_u32 s6, s6, s7
    s_lshl_b32 s72, s62, 12
    v_mul_u32_u24 v14, 896, v2
    v_lshl_add_u32 v14, v3, 4, v14
    v_lshlrev_b32 v15, 4, v0""")
    for blk in range(2):
        for n in range(2):
            a.e(f"""s_add_u32 m0, s72, {2*SLOT + blk*2048 + n*1024}
            s_add_u32 s5, s6, {blk*512 + n*8*896}
            buffer_load_dwordx4 v14, s[56:59], s5 offen lds""")
    a.e(f"""v_lshrrev_b32 v2, 5, v0
    v_bfe_u32 v3, v0, 2, 2
    v_lshl_add_u32 v3, v2, 2, v3
    v_lshlrev_b32 v3, 7, v3
    v_bfe_u32 v4, v0, 4, 1
    v_lshl_add_u32 v3, v4, 5, v3
    v_and_b32 v4, 3, v0
    v_lshl_add_u32 v3, v4, 3, v3
    v_add_u32 v3, s72, v3
    v_and_b32 v2, s75, v2
    v_cmp_eq_u32 vcc, 0, v2
    s_mul_i32 s5, s2, {14*1024}
    s_lshl_b32 s6, s62, 11
    s_add_u32 s5, s5, s6
    s_add_u32 s5, s5, {WS_WF}
    s_add_u32 s6, s5, 8192
    s_waitcnt vmcnt(0)""")
    for blk in range(2):
        for e in range(2):
            for u in range(2):
                b = 16 + 8 * blk + 4 * e + 2 * u
                a.e(f"ds_read_b64_tr_b16 v[{b}:{b+1}], v3 offset:{2*SLOT + blk*2048 + u*1024 + e*64}")
    a.e("s_waitcnt lgkmcnt(0)")
    for i in range(4):
        for r in (2, 3): a.e(f"v_cndmask_b32 v{16+4*i+r}, 0, v{16+4*i+r}, vcc")
    a.e(f"""buffer_store_dwordx4 v[16:19], v15, s[52:55], s5 offen{SC}
    buffer_store_dwordx4 v[20:23], v15, s[52:55], s5 offen offset:1024{SC}
    s_cmp_eq_u32 s62, 3
    s_cbranch_scc1 {endlab}
    buffer_store_dwordx4 v[24:27], v15, s[52:55], s6 offen{SC}
    buffer_store_dwordx4 v[28:31], v15, s[52:55], s6 offen offset:1024{SC}""")

def gen_k1(name="k1_kernel"):
    a = Asm()
    a.raw(f".p2align 8\n.globl {name}\n.type {name},@function\n{name}:")
    a.stamp(0); a.stamp(10)
    k1_entry(a, "K1_END")
    a.stamp(1)
    a.e("s_cmp_ge_u32 s62, 4\ns_cbranch_scc1 K1_LOADER")
    k1_compute(a)
    a.stamp(8)
    if STAMP: a.e("s_waitcnt vmcnt(0)")
    a.dump(0, 62, 8)
    a.e("s_endpgm")
    a.label("K1_LOADER"); a.hist = []
    k1_loader(a)
    relayout(a, "K1_END")
    a.label("K1_END")
    a.e("s_endpgm")
    return a
```

```python
from asmlib import *
from k1 import WS_Q, WS_KV, WS_ACT, WS_WF, WS_P, WS_SIZE, srd, f32

Q0, O0, S0, P0, KV0, KS = 16, 48, 112, 144, 160, 224
MOFF = 40.0
FLAG = 49152

def mf(d, x, y, c):
    return f"v_mfma_f32_32x32x16_bf16 v[{d}:{d+15}], v[{x}:{x+3}], v[{y}:{y+3}], " + (f"v[{c}:{c+15}]" if c is not None else "0")

def kload(b): return [f"buffer_load_dwordx4 v[{KV0+16*b+4*i}:{KV0+16*b+4*i+3}], v1, s[52:55], s21 offen offset:{1024*i}" for i in range(2)]
def vload(b): return [f"buffer_load_dwordx4 v[{KV0+16*b+4*i}:{KV0+16*b+4*i+3}], v1, s[52:55], s21 offen offset:{1024*i}" for i in (2, 3)]
ADV = ["s_add_u32 s20, s20, 4096", "s_and_b32 s20, s20, 0xffff", "s_add_u32 s21, s20, s22"]

def maxtree(a, src, dst, acc=None):
    r = list(range(src, src + 16))
    if acc is None:
        a.e(f"v_max3_f32 v{dst}, v{r[0]}, v{r[1]}, v{r[2]}"); r = r[3:]
        while len(r) >= 2:
            a.e(f"v_max3_f32 v{dst}, v{dst}, v{r[0]}, v{r[1]}"); r = r[2:]
        a.e(f"v_max_f32 v{dst}, v{dst}, v{r[0]}")
    else:
        while r:
            a.e(f"v_max3_f32 v{dst}, v{dst}, v{r[0]}, v{r[1]}"); r = r[2:]

def attention(a, wave_sgpr=62):
    a.e(f"""v_lshlrev_b32 v1, 4, v0
    v_cmp_lt_u32 s[30:31], 31, v0
    s_mul_i32 s5, s61, 7
    v_lshrrev_b32 v2, 5, v0
    v_add_u32 v2, s5, v2
    v_and_b32 v3, 31, v0
    v_lshlrev_b32 v3, 4, v3
    s_mov_b32 s24, 0
    s_lshl_b32 s22, s62, 16
    s_add_u32 s22, s22, {WS_KV}
    s_lshr_b32 s23, s2, 3
    s_and_b32 s23, s23, 15
    s_lshl_b32 s23, s23, 12              ; rotation
    s_add_u32 s7, s23, {WS_KV}""")
    for f in range(2):
        a.e(f"""v_add_u32 v4, {2*f}, v2
        v_lshrrev_b32 v5, 2, v4
        v_lshl_add_u32 v{8+f}, v5, 10, v3
        v_and_b32 v5, 1, v4
        v_lshl_add_u32 v{8+f}, v5, 9, v{8+f}
        v_and_b32 v5, 2, v4
        v_lshl_add_u32 v{8+f}, v5, 2, v{8+f}""")
    for i in range(4):
        a.e(f"""s_add_u32 s6, s62, {i}
        s_and_b32 s6, s6, 3
        s_lshl_b32 s26, s60, 2
        s_add_u32 s6, s6, s26
        s_mul_i32 s6, s6, {112*256}""")
        for f in range(4):
            a.e(f"buffer_load_dwordx2 v[{Q0+8*i+2*f}:{Q0+8*i+2*f+1}], v{8+(f&1)}, s[52:55], s6 offen offset:{(f>>1)*1024}")
    a.e(f"""buffer_load_dwordx4 v[{KS}:{KS+3}], v1, s[52:55], s7 offen
    buffer_load_dwordx4 v[{KS+4}:{KS+7}], v1, s[52:55], s7 offen offset:1024""")
    def kv_prologue():
        a.e("s_mov_b32 s20, s23\ns_add_u32 s21, s20, s22")
        for b in range(4):
            if b: a.e("\n".join(ADV))
            a.e("\n".join(kload(b)))
            if b < 3: a.e("\n".join(vload(b)))
    kv_prologue()
    a.e(f"""v_mov_b32 v3, {FLAG}
    v_mov_b32 v4, 0
    ds_write_b32 v3, v4
    s_waitcnt vmcnt(14)""")
    a.stamp(2)
    for i in range(4):
        for r in (6, 7): a.e(f"v_cndmask_b32 v{Q0+8*i+r}, v{Q0+8*i+r}, 0, s[30:31]")
    for i in range(4):
        a.e(mf(O0 + 16 * i, KS, Q0 + 8 * i, None))
        a.e(mf(O0 + 16 * i, KS + 4, Q0 + 8 * i + 4, O0 + 16 * i))
    for i in range(4): maxtree(a, O0 + 16 * i, 4 + i)
    for i in range(4): a.e(f"v_mov_b32 v{8+i}, v{4+i}")
    for i in range(4): a.e(f"v_permlane32_swap_b32 v{4+i}, v{8+i}")
    for i in range(4): a.e(f"v_max_f32 v{4+i}, v{4+i}, v{8+i}")
    for i in range(4): a.e(f"v_add_f32 v{4+i}, {f32(MOFF)}, v{4+i}")
    a.fence()
    a.label("K2_SETM")
    for i in range(4):
        m = 4 + i
        a.e(f"""v_cvt_pk_bf16_f32 v8, -v{m}, -v{m}
        v_lshlrev_b32 v8, 16, v8
        v_sub_f32 v9, -v{m}, v8
        v_cvt_pk_bf16_f32 v10, v9, v9
        v_lshlrev_b32 v10, 16, v10
        v_sub_f32 v10, v9, v10
        v_cvt_pk_bf16_f32 v8, -v{m}, v9
        v_cvt_pk_bf16_f32 v10, v10, 0
        v_cndmask_b32 v{Q0+8*i+6}, v{Q0+8*i+6}, v8, s[30:31]
        v_cndmask_b32 v{Q0+8*i+7}, v{Q0+8*i+7}, v10, s[30:31]""")
    for r in range(64): a.e(f"v_mov_b32 v{O0+r}, 0")
    for r in range(8): a.e(f"v_mov_b32 v{P0+8+r}, 0")
    for r in range(8): a.e(f"v_mov_b32 v{KV0+48+8+r}, 0")
    a.e("s_waitcnt vmcnt(12)")
    a.e(mf(S0, KV0, Q0, None)); a.e(mf(S0, KV0 + 4, Q0 + 4, S0))
    a.e("s_mov_b32 s25, 4")
    a.stamp(3)
    a.fence()
    a.raw(".p2align 6")
    def body():
        for u in range(16):
            n = (u + 1) % 16; p = (u - 1) % 16
            Sn = S0 + 16 * ((u + 1) & 1); Sc = S0 + 16 * (u & 1)
            Pc = P0 + 8 * (u & 1); Pp = P0 + 8 * ((u - 1) & 1)
            kb = KV0 + 16 * (n // 4); vb = KV0 + 16 * (p // 4) + 8
            qn = Q0 + 8 * (n % 4); op = O0 + 16 * (p % 4)
            ms = [mf(Sn, kb, qn, None), mf(Sn, kb + 4, qn + 4, Sn), mf(op, vb, Pp, op), mf(op, vb + 4, Pp + 4, op)]
            pre = [[], [], [], []]; post = [[], [], [], []]
            if n % 4 == 0: pre[0].append("s_waitcnt vmcnt(12)")
            if p % 4 == 0: pre[2].append("s_waitcnt vmcnt(12)")
            if u % 4 == 2: post[0] += ADV; post[1] += kload(u // 4)
            if u % 4 == 0: post[3] += vload(((u // 4) - 1) % 4)
            for g in range(4):
                a.e("\n".join(pre[g] + [ms[g]] + post[g]))
                for r in range(4): a.e(f"v_exp_f32 v{Sc+4*g+r}, v{Sc+4*g+r}")
                if g >= 1:
                    for h in range(2): a.e(f"v_cvt_pk_bf16_f32 v{Pc+2*(g-1)+h}, v{Sc+4*(g-1)+2*h}, v{Sc+4*(g-1)+2*h+1}")
                if g == 3:
                    if u == 15: a.e("s_sub_u32 s25, s25, 1\ns_cmp_lg_u32 s25, 0")
                    for h in range(2): a.e(f"v_cvt_pk_bf16_f32 v{Pc+6+h}, v{Sc+12+2*h}, v{Sc+12+2*h+1}")
    a.label("K2_LOOP")
    n0 = a.nops
    body()
    assert a.nops == n0, "unexpected nops in attention loop"
    a.e("s_cbranch_scc1 K2_LOOP")
    t = Asm(); t.hist = list(a.hist); sv = a;
    a2 = Asm(); a2.hist = list(a.hist)
    a.stamp(4)
    vb = KV0 + 48 + 8
    a.e(mf(O0 + 48, vb, P0 + 8, O0 + 48)); a.e(mf(O0 + 48, vb + 4, P0 + 12, O0 + 48))
    for i in (1, 2, 3):
        a.e(f"""s_add_u32 s6, s62, {i}
        s_and_b32 s6, s6, 3
        s_mul_i32 s6, s6, {3*4096}
        v_add_u32 v3, s6, v1""")
        for g in range(4):
            a.e(f"ds_write_b128 v3, v[{O0+16*i+4*g}:{O0+16*i+4*g+3}] offset:{(i-1)*4096 + g*1024}")
    a.e(f"""s_mul_i32 s6, s62, {3*4096}
    v_add_u32 v3, s6, v1
    s_waitcnt lgkmcnt(0)
    s_barrier""")
    a.stamp(5)
    for i in range(3):
        for g in range(4):
            a.e(f"ds_read_b128 v[{O0+16+16*i+4*g}:{O0+16+16*i+4*g+3}], v3 offset:{i*4096 + g*1024}")
    a.e(f"""s_lshl_b32 s6, s60, 2
    s_add_u32 s6, s6, s62
    s_mul_i32 s6, s6, 144
    s_lshl_b32 s7, s61, 1
    s_add_u32 s6, s6, s7
    s_lshl_b32 s6, s6, 10
    s_add_u32 s6, s6, {WS_ACT + 112*1024}""")
    for i in range(3):
        a.e(f"s_waitcnt lgkmcnt({8 - 4*i})")
        for r in range(16): a.e(f"v_add_f32 v{O0+r}, v{O0+r}, v{O0+16+16*i+r}")
    a.e(f"""v_mov_b32 v4, v{O0+12}
    v_mov_b32 v5, v{O0+12}
    v_mul_f32 v6, 0, v{O0}
    v_permlane32_swap_b32 v4, v5
    v_rcp_f32 v5, v5""")
    for r in range(1, 16): a.e(f"v_fmac_f32 v6, 0, v{O0+r}")
    for r in range(16): a.e(f"v_mul_f32 v{O0+r}, v5, v{O0+r}")
    for i in range(8): a.e(f"v_cvt_pk_bf16_f32 v{O0+i}, v{O0+2*i}, v{O0+2*i+1}")
    a.e(f"""v_cmp_u_f32 vcc, v6, v6
    buffer_store_dwordx4 v[{O0}:{O0+3}], v1, s[52:55], s6 offen
    buffer_store_dwordx4 v[{O0+4}:{O0+7}], v1, s[52:55], s6 offen offset:1024
    s_cmp_lg_u32 s24, 0
    s_cbranch_scc1 K2_END
    v_mov_b32 v3, {FLAG}
    s_cmp_eq_u64 vcc, 0
    s_cbranch_scc1 K2_OK
    v_mov_b32 v4, 1
    ds_write_b32 v3, v4""")
    a.label("K2_OK")
    a.e(f"""s_waitcnt lgkmcnt(0)
    s_barrier
    ds_read_b32 v4, v3
    s_waitcnt lgkmcnt(0)
    v_readfirstlane_b32 s6, v4
    s_cmp_eq_u32 s6, 0
    s_cbranch_scc1 K2_END""")
    a.e("s_mov_b32 s24, 1\ns_mov_b32 s25, 16\ns_mov_b32 s21, s22\ns_waitcnt vmcnt(0)")
    for i in range(4):
        for r in (6, 7): a.e(f"v_cndmask_b32 v{Q0+8*i+r}, v{Q0+8*i+r}, 0, s[30:31]")
        a.e(f"v_mov_b32 v{4+i}, 0xff800000")
    a.fence()
    a.label("K2_MAXLOOP")
    a.e("\n".join(kload(0)))
    a.e("s_add_u32 s21, s21, 4096\ns_waitcnt vmcnt(0)")
    for i in range(4):
        a.e(mf(O0 + 16 * i, KV0, Q0 + 8 * i, None))
        a.e(mf(O0 + 16 * i, KV0 + 4, Q0 + 8 * i + 4, O0 + 16 * i))
    for i in range(4): maxtree(a, O0 + 16 * i, 4 + i, acc=True)
    a.e("s_sub_u32 s25, s25, 1\ns_cmp_lg_u32 s25, 0")
    a.fence()
    a.e("s_cbranch_scc1 K2_MAXLOOP")
    for i in range(4): a.e(f"v_mov_b32 v{8+i}, v{4+i}")
    for i in range(4): a.e(f"v_permlane32_swap_b32 v{4+i}, v{8+i}")
    for i in range(4): a.e(f"v_max_f32 v{4+i}, v{4+i}, v{8+i}")
    a.e("v_lshlrev_b32 v12, 2, v0")
    for i in range(4):
        a.e(f"""s_add_u32 s6, s62, {i}
        s_and_b32 s6, s6, 3
        s_lshl_b32 s6, s6, 10
        s_add_u32 s6, s6, {FLAG + 256}
        v_add_u32 v{8+i}, s6, v12
        s_lshl_b32 s7, s62, 8
        v_add_u32 v13, s7, v{8+i}
        ds_write_b32 v13, v{4+i}""")
    a.e("s_waitcnt lgkmcnt(0)\ns_barrier")
    for i in range(4):
        for w in range(4): a.e(f"ds_read_b32 v{O0+4*i+w}, v{8+i} offset:{w*256}")
    a.e("s_waitcnt lgkmcnt(0)")
    for i in range(4):
        a.e(f"v_max3_f32 v{4+i}, v{O0+4*i}, v{O0+4*i+1}, v{O0+4*i+2}\nv_max_f32 v{4+i}, v{4+i}, v{O0+4*i+3}")
    kv_prologue()
    a.fence()
    a.e("s_branch K2_SETM")

def gen_k2(name="k2_kernel"):
    a = Asm()
    a.raw(f".p2align 8\n.globl {name}\n.type {name},@function\n{name}:")
    a.stamp(0); a.stamp(10)
    a.e(f"""s_cmp_ge_u32 s2, 256
    s_cbranch_scc1 K2_END2
    s_load_dwordx2 s[28:29], s[0:1], 88
    v_lshrrev_b32 v1, 6, v0
    v_and_b32 v0, 63, v0
    s_lshr_b32 s60, s2, 4
    s_and_b32 s61, s2, 15
    v_readfirstlane_b32 s62, v1
    s_waitcnt lgkmcnt(0)""")
    srd(a, 52, 28, WS_SIZE)
    a.stamp(1)
    attention(a)
    a.label("K2_END")
    a.stamp(8)
    if STAMP: a.e("s_waitcnt vmcnt(0)")
    a.dump(1, 62, 8)
    a.label("K2_END2")
    a.e("s_endpgm")
    return a
```

```python
from asmlib import *
from k1 import WS_Q, WS_KV, WS_ACT, WS_WF, WS_P, WS_SIZE, srd, f32
from k2 import mf
D = 6; NK = 36
AC = 16; BUF = 80
RST = 272
def gen_k3(name="k3_kernel"):
    a = Asm()
    a.raw(f".p2align 8\n.globl {name}\n.type {name},@function\n{name}:")
    a.stamp(0); a.stamp(10)
    a.e(f"""s_cmp_ge_u32 s2, 224
    s_cbranch_scc1 K3_END
    s_load_dwordx2 s[8:9], s[0:1], 0
    s_load_dwordx2 s[26:27], s[0:1], 72
    s_load_dwordx2 s[28:29], s[0:1], 88
    v_mov_b32 v15, v0
    v_lshrrev_b32 v1, 6, v0
    v_and_b32 v0, 63, v0
    s_and_b32 s3, s2, 7
    s_lshr_b32 s4, s2, 3
    s_mul_i32 s5, s4, 37
    s_lshr_b32 s5, s5, 8                ; r/7
    s_mul_i32 s6, s5, 7
    s_sub_u32 s61, s4, s6               ; np
    s_lshl_b32 s60, s3, 2
    s_add_u32 s60, s60, s5              ; tp
    v_readfirstlane_b32 s62, v1
    v_lshlrev_b32 v1, 4, v0
    s_mul_i32 s20, s60, {2*144*1024}
    s_mul_i32 s5, s62, {NK*1024}
    s_add_u32 s20, s20, s5
    s_add_u32 s20, s20, {WS_ACT}
    s_add_u32 s21, s20, {144*1024}
    s_mul_i32 s22, s62, {NK*14*1024}
    s_lshl_b32 s5, s61, 11
    s_add_u32 s22, s22, s5
    s_add_u32 s22, s22, {WS_WF}
    s_waitcnt lgkmcnt(0)""")
    srd(a, 52, 28, WS_SIZE); srd(a, 32, 8, 1835008); srd(a, 36, 26, 1835008)
    a.stamp(1)
    def loads(b):
        r = BUF + 16 * b
        return f"""buffer_load_dwordx4 v[{r}:{r+3}], v1, s[52:55], s22 offen
        buffer_load_dwordx4 v[{r+4}:{r+7}], v1, s[52:55], s22 offen offset:1024
        buffer_load_dwordx4 v[{r+8}:{r+11}], v1, s[52:55], s20 offen
        buffer_load_dwordx4 v[{r+12}:{r+15}], v1, s[52:55], s21 offen
        s_add_u32 s20, s20, 1024
        s_add_u32 s21, s21, 1024
        s_add_u32 s22, s22, {14*1024}"""
    a.e(f"""v_lshrrev_b32 v2, 3, v15
    v_and_b32 v3, 7, v15
    v_mul_u32_u24 v4, 896, v2
    v_lshl_add_u32 v4, v3, 4, v4
    s_mul_i32 s23, s60, {64*896}
    s_lshl_b32 s5, s61, 7
    s_add_u32 s23, s23, s5
    s_add_u32 s24, s23, {32*896}
    buffer_load_dwordx4 v[8:11], v4, s[32:35], s23 offen
    buffer_load_dwordx4 v[176:179], v4, s[32:35], s24 offen""")
    for b in range(D): a.e(loads(b))
    for r in range(64): a.e(f"v_mov_b32 v{AC+r}, 0")
    a.e(f"s_mov_b32 s25, {NK//D}")
    a.stamp(2)
    a.fence()
    a.label("K3_LOOP")
    for b in range(D):
        r = BUF + 16 * b
        a.e(f"s_waitcnt vmcnt({4*(D-1)})")
        for e in range(2):
            for t in range(2):
                acc = AC + 16 * (2 * t + e)
                a.e(mf(acc, r + 4 * e, r + 8 + 4 * t, acc))
        a.e(loads(b))
    a.e("s_sub_u32 s25, s25, 1\ns_cmp_lg_u32 s25, 0\ns_cbranch_scc1 K3_LOOP")
    a.stamp(3)
    a.e(f"""v_and_b32 v5, 31, v0
    v_mul_u32_u24 v5, {RST}, v5
    v_lshrrev_b32 v6, 5, v0
    v_lshl_add_u32 v5, v6, 4, v5
    s_mul_i32 s5, s62, {64*RST}
    v_add_u32 v5, s5, v5
    v_mul_u32_u24 v6, {RST}, v2
    v_lshl_add_u32 v6, v3, 5, v6""")
    a.fence()
    for t in range(2):
        for e in range(2):
            for g in range(4):
                acc = AC + 16 * (2 * t + e) + 4 * g
                a.e(f"ds_write_b128 v5, v[{acc}:{acc+3}] offset:{t*32*RST + e*128 + g*32}")
    a.e("s_waitcnt vmcnt(0) lgkmcnt(0)\ns_barrier")
    for i in range(2):
        for w in range(4):
            for h in range(2):
                r = AC + 32 * i + 8 * w + 4 * h
                off = w * 64 * RST + i * 32 * RST + h * 16
                a.e(f"ds_read_b128 v[{r}:{r+3}], v6 offset:{off}")
    for i in range(2):
        xr = 8 if i == 0 else 176
        a.e(f"s_waitcnt lgkmcnt({8 - 8*i})")
        b = AC + 32 * i
        for w in (1, 2, 3):
            for r in range(8): a.e(f"v_add_f32 v{b+r}, v{b+r}, v{b+8*w+r}")
        for r in range(4):
            a.e(f"""v_lshlrev_b32 v12, 16, v{xr+r}
            v_and_b32 v13, 0xffff0000, v{xr+r}
            v_add_f32 v{b+2*r}, v{b+2*r}, v12
            v_add_f32 v{b+2*r+1}, v{b+2*r+1}, v13
            v_cvt_pk_bf16_f32 v{xr+r}, v{b+2*r}, v{b+2*r+1}""")
        a.e(f"buffer_store_dwordx4 v[{xr}:{xr+3}], v4, s[36:39], s{23+i} offen")
    a.stamp(8)
    if STAMP: a.e("s_waitcnt vmcnt(0)")
    a.dump(2, 62, 8)
    a.label("K3_END")
    a.e("s_endpgm")
    return a
```

```python
import re

TRANS = ("v_exp_f32", "v_log_f32", "v_rcp_f32", "v_rsq_f32", "v_sqrt_f32", "v_sin_f32", "v_cos_f32")

def regs_of(tok):
    tok = tok.strip().lstrip("-")
    m = re.fullmatch(r"\|?([vsa])(\d+)\|?", tok)
    if m: return {(m.group(1), int(m.group(2)))}
    m = re.fullmatch(r"\|?([vsa])\[(\d+):(\d+)\]\|?", tok)
    if m: return {(m.group(1), i) for i in range(int(m.group(2)), int(m.group(3)) + 1)}
    if tok == "vcc": return {("s", "vcc")}
    if tok == "exec": return {("s", "exec")}
    if tok == "m0": return {("s", "m0")}
    return set()

class Ins:
    def __init__(self, text):
        self.text = text
        t = text.split(";")[0].strip()
        parts = t.split(None, 1)
        self.op = parts[0]
        ops = [o.strip() for o in parts[1].split(",")] if len(parts) > 1 else []
        if ops:
            ops[-1] = ops[-1].split()[0] if ops[-1].split() else ops[-1]
        self.ops = ops
        op = self.op
        self.mfma = op.startswith("v_mfma")
        self.valu = op.startswith("v_") and not self.mfma
        self.trans = op.replace("_e32", "").replace("_e64", "") in TRANS
        self.dot = op.startswith("v_dot")
        self.ds = op.startswith("ds_")
        self.vmem = op.startswith("buffer_") or op.startswith("global_")
        self.salu = op.startswith("s_")
        self.lds_dma = self.vmem and (" lds" in t or "_lds_" in op)
        self.w = set(); self.r = set(); self.srcc = set(); self.ab = set()
        R = [regs_of(o) for o in ops]
        if self.mfma:
            self.w = R[0]; self.ab = R[1] | R[2]; self.srcc = R[3]; self.r = self.ab | self.srcc
            self.passes = 8 if "32x32x16" in op else 4
        elif self.valu:
            nd = 1
            if op.startswith(("v_add_co", "v_sub_co", "v_addc_co", "v_subb_co")): nd = 2
            for x in R[:nd]: self.w |= x
            for x in R[nd:]: self.r |= x
            if op.startswith(("v_fmac", "v_dot2c")): self.r |= R[0]
            if op.startswith("v_permlane") and "swap" in op:
                self.w = R[0] | R[1]; self.r = R[0] | R[1]
            if op.startswith("v_cmpx"): self.w |= {("s", "exec")}
            if op.startswith("v_cndmask") and len(ops) == 3: self.r |= {("s", "vcc")}
        elif self.ds:
            if op.startswith(("ds_write", "ds_add_f32", "ds_add_u32")) :
                for x in R: self.r |= x
            else:
                self.w = R[0]
                for x in R[1:]: self.r |= x
        elif self.vmem:
            if "store" in op or self.lds_dma or ("atomic" in op):
                for x in R: self.r |= x
                if self.lds_dma: self.r |= {("s", "m0")}
            else:
                self.w = R[0]
                for x in R[1:]: self.r |= x
        elif self.salu:
            if op.startswith(("s_cmp", "s_cbranch", "s_branch", "s_waitcnt", "s_barrier", "s_nop", "s_endpgm", "s_setprio", "s_sleep")):
                for x in R: self.r |= x
            else:
                if R: self.w = R[0]
                for x in R[1:]: self.r |= x
                if "saveexec" in op: self.w |= {("s", "exec")}
        self.slots = 1
        if op == "s_nop": self.slots = int(ops[0]) + 1
        self.wide_store = self.vmem and "store" in op and ("x4" in op or "x3" in op)
        self.store_data = R[0] if (self.wide_store and op.startswith("buffer")) else (R[1] if self.wide_store else set())

def need(prev, cur):
    n = 0
    vw = {x for x in prev.w if x[0] in "va"}
    sw = {x for x in prev.w if x[0] == "s"}
    if prev.valu:
        if cur.mfma and vw & cur.r: n = max(n, 2)
        if prev.trans and cur.valu and not cur.trans and vw & cur.r: n = max(n, 1)
        if prev.trans and (cur.ds or cur.vmem) and vw & cur.r: n = max(n, 1)
        if cur.op.startswith(("v_readfirstlane", "v_readlane")) and vw & cur.r: n = max(n, 1)
        if cur.op.startswith("v_permlane") and vw & cur.r: n = max(n, 2)
        if "dpp" in cur.text or "quad_perm" in cur.text or "row_" in cur.text:
            if vw & cur.r: n = max(n, 2)
        if sw and cur.valu and sw & cur.r: n = max(n, 2)
        if sw and cur.vmem and sw & cur.r: n = max(n, 5)
        if sw and cur.salu and sw & cur.r: n = max(n, 1)
        if ("s", "exec") in sw and (cur.mfma or cur.op.startswith(("v_readlane", "v_readfirstlane", "v_permlane"))): n = max(n, 4)
        if prev.dot:
            if (cur.valu or cur.mfma or cur.ds or cur.vmem) and vw & (cur.r | cur.w):
                same_acc = cur.op == prev.op and not (vw & (regs_of(cur.ops[1]) | regs_of(cur.ops[2])))
                if not same_acc: n = max(n, 3)
    if prev.mfma:
        big = 12 if prev.passes == 8 else 8
        if cur.mfma:
            if prev.w & cur.ab: n = max(n, big)
            if prev.w & cur.srcc and not (prev.w == cur.srcc and prev.passes == cur.passes): n = max(n, big - 2)
            if prev.w & cur.w and not (prev.w == cur.srcc): n = max(n, big)
        elif cur.valu or cur.ds or cur.vmem:
            if prev.w & (cur.r | cur.w): n = max(n, big)
            if cur.valu and prev.srcc & cur.w: n = max(n, 7 if prev.passes == 8 else 3)
    if prev.salu and ("s", "m0") in prev.w and cur.lds_dma: n = max(n, 1)
    if prev.wide_store and prev.store_data & cur.w: n = max(n, 2)
    return n

import os
STAMP = bool(os.environ.get("STAMP"))
WS_DBG = 0x1800000
class Asm:
    def stamp(self, i):
        if not STAMP: return False
        if self.smap is not None and i < 10:
            if i not in self.smap: return False
            i = self.smap[i]
        self.e(f"s_memtime s[100:101]\ns_waitcnt lgkmcnt(0)\ns_mov_b32 s{88+i}, s100" if i not in (10, 11) else
               f"s_memrealtime s[100:101]\ns_waitcnt lgkmcnt(0)\ns_mov_b32 s{88+i}, s100")
        return True
    def dump(self, kidx, wave_sgpr, nw, wadd=0):
        if not STAMP: return
        self.smap = None; self.stamp(9); self.stamp(11)
        self.e(f"s_mul_i32 s100, s2, {nw}\ns_add_u32 s100, s100, s{wave_sgpr}\ns_add_u32 s100, s100, {wadd}\ns_lshl_b32 s100, s100, 6\ns_add_u32 s100, s100, {WS_DBG + kidx*0x40000}")
        self.e("s_nop 7\ns_nop 7\nv_mov_b32 v1, 0")
        for g in range(3):
            for r in range(4): self.e(f"v_mov_b32 v{4+r}, s{88+4*g+r}")
            self.e(f"buffer_store_dwordx4 v[4:7], v1, s[52:55], s100 offen offset:{16*g}")
    def __init__(self):
        self.lines = []
        self.hist = []
        self.nops = 0
        self.smap = None
    def raw(self, s):
        self.lines.append(s)
    def label(self, name, keep=False):
        self.lines.append(name + ":")
    def fence(self, n=12):
        worst = 0; dist = 0
        for p in reversed(self.hist):
            req = 12 if p.mfma else (5 if p.valu else 2 if p.wide_store else 1)
            worst = max(worst, req - dist)
            dist += p.slots
            if dist > 16: break
        if worst > 0: self.e(f"s_nop {worst-1}")
    def e(self, text):
        for t in text.strip().split("\n"):
            t = t.strip()
            if not t or t.startswith(";"): continue
            if t.endswith(":"):
                self.lines.append(t); continue
            cur = Ins(t)
            dist = 0; pad = 0
            for p in reversed(self.hist):
                pad = max(pad, need(p, cur) - dist)
                dist += p.slots
                if dist > 16: break
            if pad > 0:
                nop = Ins(f"s_nop {pad-1}")
                self.lines.append(f"    s_nop {pad-1}")
                self.hist.append(nop); self.nops += pad
            self.lines.append("    " + t)
            self.hist.append(cur)
            if len(self.hist) > 40: self.hist = self.hist[-24:]
    def text(self):
        return "\n".join(self.lines) + "\n"

def vr(a, n=1):
    return f"v{a}" if n == 1 else f"v[{a}:{a+n-1}]"
def sr(a, n=1):
    return f"s{a}" if n == 1 else f"s[{a}:{a+n-1}]"

def interleave(main, fill):
    out = []
    n = len(main); k = 0
    for i, g in enumerate(main):
        out += g
        tgt = (len(fill) * (i + 1)) // n
        out += fill[k:tgt]; k = tgt
    return out

def kd(name, vgpr, sgpr=102):
    return f""".p2align 6
.amdhsa_kernel {name}
  .amdhsa_next_free_vgpr {vgpr}
  .amdhsa_next_free_sgpr {sgpr}
  .amdhsa_accum_offset {(vgpr+3)//4*4}
  .amdhsa_group_segment_fixed_size 0
  .amdhsa_kernarg_size 96
  .amdhsa_user_sgpr_count 2
  .amdhsa_user_sgpr_kernarg_segment_ptr 1
  .amdhsa_system_sgpr_workgroup_id_x 1
  .amdhsa_float_denorm_mode_32 3
  .amdhsa_float_denorm_mode_16_64 3
.end_amdhsa_kernel
"""
```

```python
from asmlib import *
WS_Q, WS_KV, WS_ACT, WS_WF, WS_P = 0x0, 0x200000, 0x400000, 0xD00000, 0x1000000
WS_SIZE = 0x2000000
LOG2E = 1.4426950408889634
import struct
def f32(x): return "0x%08x" % struct.unpack("<I", struct.pack("<f", x))[0]
SC = " sc1" if os.environ.get("NOSC1") is None else ""

def srd(a, d, lo, size):
    a.e(f"s_mov_b32 s{d}, s{lo}\ns_mov_b32 s{d+1}, s{lo+1}\ns_mov_b32 s{d+2}, {size}\ns_mov_b32 s{d+3}, 0x20000")

SLOT = 16384
PF = os.environ.get("NOPF") is None
WSLOT = [7, 8, 9, 0, 1, 2, 3]
VSLOT = [4, 5, 6, 7, 8, 9, 0]
VT = 3 * SLOT
FL = 0x1400000
FL_Q, FL_KV, FL_H, FL_O, FL_R, FL_N = [FL + 0x8000 * i for i in range(6)]
SLP = int(os.environ.get('SLP', 4))
SPIN = 400000
QF_AT = int(os.environ.get("QF_AT", 56)); QD = int(os.environ.get("QD", 18))
_lab = [0]
def newlab(p):
    _lab[0] += 1; return f"{p}{_lab[0]}"
def nonce_load(v): return f"buffer_load_dword v{v}, off, s[80:83], 0 sc1"
def nonce_check(v, st):
    L = newlab("NC")
    return [f"v_readfirstlane_b32 s{st}, v{v}", f"s_cmp_lg_u32 s{st}, 0", f"s_cbranch_scc1 {L}E", f"s_mov_b32 s{st+1}, {SPIN}",
            f"{L}:", nonce_load(v), "s_waitcnt vmcnt(0)", f"v_readfirstlane_b32 s{st}, v{v}", f"s_cmp_lg_u32 s{st}, 0",
            f"s_cbranch_scc1 {L}E", f"s_sub_u32 s{st+1}, s{st+1}, 1", f"s_cmp_lg_u32 s{st+1}, 0", f"s_cbranch_scc1 {L}", f"{L}E:"]
def poll(a, loads, vn, st, first=None):
    L = newlab("PL")
    def ld():
        for d, o, so in loads: a.e(f"buffer_load_dword v{d}, v{o}, s[52:55], s{so} offen sc1")
        a.e("s_waitcnt vmcnt(0)")
    a.e(f"s_mov_b32 s{st}, {SPIN}")
    if first:
        ld(); first(); a.e(f"s_branch {L}C")
    else:
        a.e(f"s_branch {L}F")
    a.label(L)
    if SLP: a.e(f"s_sleep {SLP}")
    a.label(L + "F"); ld()
    a.label(L + "C")
    d0 = loads[0][0]
    a.e(f"v_xor_b32 v{d0}, v{d0}, v{vn}")
    for d, o, so in loads[1:]:
        a.e(f"v_xor_b32 v{d}, v{d}, v{vn}\nv_or_b32 v{d0}, v{d0}, v{d}")
    a.e(f"v_cmp_ne_u32 vcc, 0, v{d0}\ns_sub_u32 s{st}, s{st}, 1\ns_cmp_eq_u64 vcc, 0\ns_cbranch_scc1 {L}E\ns_cmp_lg_u32 s{st}, 0\ns_cbranch_scc1 {L}")
    a.label(L + "E")


class Win:
    def __init__(self, regs): self.regs = regs; self.cur = 0
    def off(self, addr, span=16384):
        fix = []
        if not (0 <= addr - self.cur and addr - self.cur + span <= 65536):
            new = min((addr // 16384) * 16384, 6 * 16384)
            d = new - self.cur
            for r in self.regs:
                fix.append(f"v_add_u32 v{r}, {d & 0xffffffff}, v{r}")
            self.cur = new
        return fix, addr - self.cur

def a_addr_setup(a, dst, lane, t1, t2):
    a.e(f"""v_bfe_u32 v{t1}, v{lane}, 4, 1
    v_lshlrev_b32 v{dst}, 13, v{t1}
    v_bfe_u32 v{t2}, v{lane}, 2, 2
    v_lshl_add_u32 v{dst}, v{t2}, 7, v{dst}
    v_and_b32 v{t2}, 2, v{t2}
    v_xor_b32 v{t1}, v{t1}, v{t2}
    v_lshl_add_u32 v{dst}, v{t1}, 5, v{dst}
    v_lshrrev_b32 v{t1}, 5, v{lane}
    v_lshl_add_u32 v{dst}, v{t1}, 10, v{dst}
    v_and_b32 v{t1}, 3, v{lane}
    v_lshl_add_u32 v{dst}, v{t1}, 3, v{dst}""")

X0 = 16
ACC = [128, 144, 160, 176, 192, 208, 128, 144]
FR = 224

def ffn_epi(A, sbase, imm):
    o = []
    for r in range(8): o.append(f"v_mul_f32 v{A+r}, s75, v{A+r}")
    for r in range(8): o.append(f"v_exp_f32 v{A+r}, v{A+r}")
    for r in range(8): o.append(f"v_add_f32 v{A+r}, 1.0, v{A+r}")
    for r in range(8): o.append(f"v_rcp_f32 v{A+r}, v{A+r}")
    for r in range(8): o.append(f"v_mul_f32 v{A+r}, v{A+r}, v{A+8+r}")
    for i in range(4): o.append(f"v_cvt_pk_bf16_f32 v{A+8+i}, v{A+2*i}, v{A+2*i+1}")
    o.append(f"buffer_store_dwordx4 v[{A+8}:{A+11}], v0, s[52:55], s{sbase} offen offset:{imm}{SC}")
    return o

def q_epi(A, cbA, cbB):
    o = []
    for r in range(16): o.append(f"v_mul_f32 v{A+r}, s76, v{A+r}")
    for i in range(8): o.append(f"v_cvt_pk_bf16_f32 v{A+i}, v{A+2*i}, v{A+2*i+1}")
    for g, cb in ((0, cbA), (1, cbB)):
        o.append(f"buffer_store_dwordx4 v[{A+4*g}:{A+4*g+3}], v0, s[52:55], s{67 + cb//4} offen offset:{(cb%4)*1024}{SC}")
    return o

def k_epi(A):
    o = ["v_cmp_lt_u32 vcc, 511, v0", "v_mov_b32 v5, 0x3f803f80", "v_mov_b32 v6, 0x3f80"]
    for i in range(8): o.append(f"v_cvt_pk_bf16_f32 v{A+i}, v{A+2*i}, v{A+2*i+1}")
    o += [f"v_cndmask_b32 v{A+6}, v{A+6}, v5, vcc", f"v_cndmask_b32 v{A+7}, v{A+7}, v6, vcc",
          f"buffer_store_dwordx4 v[{A}:{A+3}], v0, s[52:55], s71 offen{SC}",
          f"buffer_store_dwordx4 v[{A+4}:{A+7}], v0, s[52:55], s71 offen offset:1024{SC}"]
    return o

def v_epi(A):
    o = []
    for i in range(8): o.append(f"v_cvt_pk_bf16_f32 v{A+i}, v{A+2*i}, v{A+2*i+1}")
    o += [f"v_cndmask_b32 v{A+6}, v{A+6}, v6, vcc", f"v_cndmask_b32 v{A+7}, v{A+7}, 0, vcc",
          "s_lshl_b32 s5, s62, 11", f"s_add_u32 s5, s5, {VT}",
          "v_bfe_u32 v8, v0, 4, 5", "v_lshlrev_b32 v8, 6, v8", "v_lshrrev_b32 v9, 9, v0",
          "v_lshl_add_u32 v8, v9, 3, v8", "v_add_u32 v8, s5, v8"]
    for g in range(4): o.append(f"ds_write_b64 v8, v[{A+2*g}:{A+2*g+1}] offset:{16*g}")
    o += ["v_bfe_u32 v10, v0, 6, 2", "v_lshl_add_u32 v10, v9, 2, v10", "v_lshlrev_b32 v10, 6, v10",
          "v_bfe_u32 v11, v0, 8, 1", "v_lshl_add_u32 v10, v11, 5, v10", "v_bfe_u32 v11, v0, 4, 2",
          "v_lshl_add_u32 v10, v11, 3, v10", "v_add_u32 v10, s5, v10"]
    for i in range(4): o.append(f"ds_read_b64_tr_b16 v[{A+8+2*i}:{A+9+2*i}], v10 offset:{i*512}")
    o += ["WAIT", f"buffer_store_dwordx4 v[{A+8}:{A+11}], v0, s[52:55], s71 offen offset:2048{SC}",
          "WAIT", f"buffer_store_dwordx4 v[{A+12}:{A+15}], v0, s[52:55], s71 offen offset:3072{SC}"]
    return o

def mf(acc, fa, fb, first):
    return f"v_mfma_f32_32x32x16_bf16 v[{acc}:{acc+15}], v[{fa}:{fa+3}], v[{fb}:{fb+3}], " + ("0" if first else f"v[{acc}:{acc+15}]")

class Counted:
    def __init__(self, a): self.a = a; self.pend = []
    def emit(self, seq):
        a = self.a
        for i, t in enumerate(seq):
            if t.startswith("WAIT"):
                rs = set(Ins(seq[i + 1]).r)
                if len(t) > 4: rs |= regs_of(t[5:])
                k = -1
                for idx, w in enumerate(self.pend):
                    if w & rs: k = idx
                if k >= 0:
                    left = min(len(self.pend) - 1 - k, 15)
                    a.e(f"s_waitcnt lgkmcnt({left})")
                    self.pend = self.pend[len(self.pend) - left:] if left else []
                continue
            if t == "DRAIN":
                a.e("s_waitcnt lgkmcnt(0)"); self.pend = []; continue
            if t.startswith("STAMP"):
                if a.stamp(int(t[5:])): self.pend = []
                continue
            if t.endswith(":"):
                a.e(t); continue
            ins = Ins(t)
            if ins.ds: self.pend.append(set(ins.w))
            a.e(t)

def k1_entry(a, endlab):
    a.e(f"""s_cmp_ge_u32 s2, 256
    s_cbranch_scc1 {endlab}
    s_load_dwordx16 s[8:23], s[0:1], 0
    s_load_dwordx8 s[24:31], s[0:1], 64""")
    if PF:
        a.e(f"""s_bitcmp1_b32 s2, 3
        s_cbranch_scc1 F_NOPF
        s_bitcmp1_b32 s2, 4
        s_cbranch_scc1 F_NOPF
        s_getpc_b64 s[6:7]
        F_PC:
        v_lshlrev_b32 v1, 7, v0
        v_min_u32 v1, F_CODE_END-F_PC-4, v1
        global_load_dword v255, v1, s[6:7]
        F_NOPF:""")
    a.e(f"""
    v_lshrrev_b32 v1, 6, v0
    v_and_b32 v0, 63, v0
    s_and_b32 s3, s2, 7
    s_lshr_b32 s4, s2, 3
    v_readfirstlane_b32 s62, v1
    s_and_b32 s60, s3, 3
    s_lshl_b32 s60, s60, 2
    s_and_b32 s5, s4, 3
    s_add_u32 s60, s60, s5             ; mt
    s_lshr_b32 s61, s3, 2
    s_lshl_b32 s61, s61, 3
    s_lshr_b32 s6, s4, 2
    s_add_u32 s61, s61, s6             ; j
    s_lshl_b32 s5, s5, 1
    s_add_u32 s63, s5, s6
    s_cmp_ge_u32 s63, 7
    s_cselect_b32 s6, 7, 0
    s_sub_u32 s63, s63, s6
    v_lshrrev_b32 v2, 3, v0
    v_and_b32 v3, 7, v0                ; p
    s_waitcnt lgkmcnt(0)""")
    srd(a, 52, 30, WS_SIZE)
    srd(a, 80, 28, 256)

def k1_compute(a, tail_hook=None, mid_hook=None):
    srd(a, 32, 8, 1835008)
    a.e(f"""v_lshrrev_b32 v4, 4, v0
    v_xor_b32 v4, v4, v3
    v_mul_u32_u24 v5, 896, v2
    v_lshl_add_u32 v12, v4, 4, v5
    v_xor_b32 v4, 4, v4
    v_lshl_add_u32 v13, v4, 4, v5
    s_lshl_b32 s64, s60, 2
    s_add_u32 s64, s64, s62            ; tt
    s_mul_i32 s72, s64, {32*896}
    s_lshl_b32 s73, s63, 7
    s_mul_i32 s74, s62, 28672""")
    def issue_x(c):
        a.e(f"s_add_u32 s6, s72, s73")
        for n in range(4):
            a.e(f"""s_add_u32 m0, s74, {c*4096 + n*1024}
            s_add_u32 s5, s6, {n*8*896}
            buffer_load_dwordx4 v{12 + (n&1)}, s[32:35], s5 offen lds""")
        a.e("s_add_u32 s73, s73, 128\ns_cmp_eq_u32 s73, 896\ns_cselect_b32 s73, 0, s73")
    for c in range(4): issue_x(c)
    a_addr_setup(a, 1, 0, 5, 6)
    a.e(f"""v_xor_b32 v2, 32, v1
    v_xor_b32 v3, 64, v1
    v_xor_b32 v4, 0x60, v1
    v_mov_b32 v200, v1
    s_cmp_lg_u32 s61, 3
    s_cbranch_scc1 K1_NJ3
    v_and_b32 v1, 0x1fff, v1
    v_xor_b32 v2, 64, v1
    v_add_u32 v3, 0x2000, v1
    v_add_u32 v4, 0x2000, v2
    K1_NJ3:
    v_and_b32 v5, 31, v0
    v_bfe_u32 v6, v5, 1, 3
    v_lshrrev_b32 v7, 5, v0
    v_xor_b32 v6, v6, v7
    v_lshlrev_b32 v8, 7, v5
    v_lshl_add_u32 v8, v6, 4, v8
    v_add_u32 v8, s74, v8
    v_xor_b32 v9, 32, v8
    v_xor_b32 v10, 64, v8
    v_xor_b32 v11, 0x60, v8
    v_mov_b32 v5, 0
    v_mov_b32 v6, 0
    v_mov_b32 v7, 0
    v_mov_b32 v14, 0
    v_lshlrev_b32 v15, 3, v0
    v_lshlrev_b32 v0, 4, v0
    s_mov_b32 s77, 0x3f803f80
    s_mov_b32 s78, 0xffff0000
    s_mov_b32 s75, {f32(-LOG2E)}
    s_mov_b32 s76, {f32(LOG2E * 28 ** -0.5)}
    s_mul_i32 s65, s64, {144*1024}
    s_add_u32 s65, s65, {WS_ACT}
    s_add_u32 s5, s61, 24
    s_lshl_b32 s6, s61, 1
    s_sub_u32 s6, s6, 7
    s_cmp_lt_u32 s61, 4
    s_cselect_b32 s5, s5, s6
    s_lshl_b32 s5, s5, 12
    s_add_u32 s66, s65, s5
    s_sub_u32 s65, s66, 4096           ; act base sg0 (ffn only)
    s_mul_i32 s67, s64, {112*256}
    s_lshl_b32 s5, s61, 13             ; j*32 cgs*256
    s_add_u32 s67, s67, s5
    s_add_u32 s68, s67, 4096
    s_lshl_b32 s71, s64, 12
    s_add_u32 s71, s71, {WS_KV}""")
    for c in range(7):
        left = min(3, 6 - c)
        a.e(f"s_waitcnt vmcnt({4*left})")
        for s in range(4):
            n = 4 * c + s
            a.e(f"ds_read_b128 v[{X0+4*n}:{X0+4*n+3}], v{8+s} offset:{c*4096}")
        if c + 4 < 7: issue_x(c + 4)
        for s in range(4):
            a.e(f"s_waitcnt lgkmcnt({3-s})")
            for t in range(4):
                r = X0 + 16 * c + 4 * s + t
                a.e(f"v_dot2_f32_bf16 v{5 if t&1 else 7}, v{r}, s77, v{5 if t&1 else 7}")
                a.e(f"v_dot2_f32_bf16 v{6 if t&1 else 14}, v{r}, v{r}, v{6 if t&1 else 14}")
    a.stamp(2)
    a.e("s_barrier")
    a.stamp(3)
    wa = Win([1, 2, 3, 4])
    def reads_sg0(n):
        c, s = divmod(n, 4)
        fa, oa = wa.off(WSLOT[c] * SLOT)
        g = []
        for t in range(4):
            b = FR + 16 * (n & 1) + 4 * t
            rd = [f"ds_read_b64_tr_b16 v[{b+2*u}:{b+2*u+1}], v{1+t} offset:{oa + s*2048 + u*512}" for u in range(2)]
            g.append((fa if t == 0 else []) + rd)
        return g
    def norm(n, t):
        r = X0 + 4 * n + t; T = 192 + 2 * t
        return [f"v_lshlrev_b32 v{T}, 16, v{r}", f"v_and_b32 v{T+1}, s78, v{r}",
                f"v_fma_f32 v{T}, v{T}, v12, v13", f"v_fma_f32 v{T+1}, v{T+1}, v12, v13",
                f"v_cvt_pk_bf16_f32 v{r}, v{T}, v{T+1}"]
    def reads_pair(n, e, t):
        c, s = divmod(n, 4)
        fa, oa = wa.off(VSLOT[c] * SLOT)
        b = FR + 8 * (n & 3) + 4 * e
        return fa + [f"ds_read_b64_tr_b16 v[{b+2*u}:{b+2*u+1}], v{1+t} offset:{oa + s*2048 + u*512}" for u in range(2)]
    C = Counted(a)
    seq = []
    for g in reads_sg0(0): seq += g
    seq += [x.strip() for x in f"""v_add_f32 v5, v5, v7
    v_add_f32 v6, v6, v14
    v_mov_b32 v8, v5
    v_mov_b32 v9, v6
    v_permlane32_swap_b32 v5, v8
    v_permlane32_swap_b32 v6, v9
    v_add_f32 v5, v5, v8
    v_add_f32 v6, v6, v9
    v_mul_f32 v5, {f32(1/448)}, v5
    v_mul_f32 v6, {f32(1/448)}, v6
    v_fma_f32 v6, -v5, v5, v6
    v_max_f32 v6, 0, v6
    v_cvt_pk_bf16_f32 v5, v5, v5
    v_cvt_pk_bf16_f32 v6, v6, v6
    v_lshlrev_b32 v5, 16, v5
    v_lshlrev_b32 v6, 16, v6
    v_add_f32 v6, {f32(1e-5)}, v6
    v_cvt_pk_bf16_f32 v6, v6, v6
    v_lshlrev_b32 v6, 16, v6
    v_sqrt_f32 v6, v6
    v_cvt_pk_bf16_f32 v6, v6, v6
    v_lshlrev_b32 v6, 16, v6
    v_rcp_f32 v12, v6
    v_mul_f32 v13, -v5, v12""".split("\n")]
    nrm = [norm(0, t) for t in range(4)]
    for i in range(5):
        for t in range(4): seq.append(nrm[t][i])
    for n in range(28):
        c = n // 4
        bar = (n % 4 == 3) and (c % 2 == 0)
        nxt = reads_sg0(n + 1) if (n < 27 and not bar) else None
        nl = []
        if n < 27:
            nn = [norm(n + 1, t) for t in range(4)]
            for p in (0, 2):
                for i in range(5): nl += [nn[p][i], nn[p + 1][i]]
        for t in range(4):
            fa = FR + 16 * (n & 1) + 4 * t
            if bar and t == 2: seq.append("DRAIN")
            elif t % 2 == 0: seq.append(f"WAIT v[{fa+4}:{fa+7}]")
            seq.append(mf(ACC[t], fa, X0 + 4 * n, n == 0))
            if not bar:
                if nxt: seq += nxt[t]
            elif t == 2:
                seq.append("s_barrier")
                if n < 27:
                    nxt = reads_sg0(n + 1); seq += nxt[0] + nxt[1]
                else:
                    wa.cur = 4 * SLOT
                    seq += ["STAMP5", f"v_add_u32 v1, {4*SLOT}, v200", "v_xor_b32 v2, 32, v1", "v_xor_b32 v3, 64, v1", "v_xor_b32 v4, 0x60, v1"]
                    seq += reads_pair(0, 0, 0) + reads_pair(0, 1, 1) + reads_pair(1, 0, 0) + reads_pair(1, 1, 1)
            elif t == 3 and n < 27:
                seq += nxt[2] + nxt[3]
            seq += nl[5 * t: 5 * t + 5]
    C.emit(seq)
    def pair_phase(accs, tiles, next_tiles, first):
        groups = []
        for n in range(28):
            for e in range(2):
                fa = FR + 8 * (n & 3) + 4 * e
                g = [f"WAIT v[{fa+4}:{fa+7}]"] if e == 0 else []
                g.append(mf(accs[e], fa, X0 + 4 * n, n == 0))
                if first and n == 0: g += reads_pair(2, e, tiles[e])
                if n + 3 < 28: g += reads_pair(n + 3, e, tiles[e])
                elif next_tiles is not None: g += reads_pair(n + 3 - 28, e, next_tiles[e])
                groups.append(g)
        return groups
    save = (wa.cur, list(C.pend), None)
    def variant(kind):
        wa.cur = save[0]; C.pend = list(save[1])
        g2 = pair_phase([ACC[4], ACC[5]], [0, 1], [2, 3], True)
        g3 = pair_phase([ACC[6], ACC[7]], [2, 3], None, False)
        if kind == "ffn":
            f2 = sum((ffn_epi(ACC[t], 65, t * 1024) for t in range(3)), [])
            f3 = ffn_epi(ACC[3], 65, 3072)
        elif kind == "q":
            f2 = sum((q_epi(ACC[t], t, 4 + t) for t in range(4)), []); f3 = []
        else:
            f2 = k_epi(ACC[2]) + v_epi(ACC[3]) + q_epi(ACC[0], 0, 1) + q_epi(ACC[1], 2, 3); f3 = []
        f3 = f3 + ffn_epi(ACC[4], 66, 0) + ffn_epi(ACC[5], 66, 1024)
        def ilv(groups, fill):
            units = []
            i = 0
            while i < len(fill):
                if fill[i].startswith("WAIT"): units.append(fill[i:i+2]); i += 2
                else: units.append([fill[i]]); i += 1
            out = []; k = 0
            for gi, g in enumerate(groups):
                out += g
                tgt = (len(units) * (gi + 1)) // len(groups)
                for u in units[k:tgt]: out += u
                k = tgt
            return out
        seq = [nonce_load(14)] + g2[0] + g2[1] + g2[2] + ilv(g2[3:56] if kind == "ffn" else g2[3:QD], f2)
        if kind != "ffn":
            if kind == "q":
                pre = ["s_lshl_b32 s5, s60, 10", "s_lshl_b32 s6, s61, 8", "s_add_u32 s5, s5, s6", "s_lshl_b32 s6, s62, 2",
                       "s_add_u32 s5, s5, s6", f"s_add_u32 s79, s5, {FL_Q}", "v_mov_b32 v7, 0"]
                msk = "1"
            else:
                pre = ["s_lshl_b32 s5, s60, 10", "s_lshl_b32 s6, s62, 2", f"s_add_u32 s5, s5, {3*256}", "s_add_u32 s5, s5, s6",
                       "s_lshr_b32 s6, s64, 4", "s_lshl_b32 s6, s6, 8", "s_and_b32 s4, s64, 15", "s_lshl_b32 s4, s4, 2",
                       "s_add_u32 s6, s6, s4", f"s_add_u32 s6, s6, {FL_KV - FL_Q}",
                       "v_lshlrev_b32 v7, 6, v0", "v_add_u32 v7, s6, v7", "v_mov_b32 v12, s5",
                       "v_cmp_lt_u32 vcc, 255, v0", "v_cndmask_b32 v7, v7, v12, vcc", f"s_mov_b32 s79, {FL_Q}"]
                msk = "0x1ffff"
            pub = ["STAMP8", "s_waitcnt vmcnt(0)"] + nonce_check(14, 4) + [f"s_mov_b64 exec, {msk}",
                   "buffer_store_dword v14, v7, s[52:55], s79 offen sc1", "s_mov_b64 exec, -1"]
            seq += ["STAMP4"] + ilv(g2[QD:QD+6], pre)
            for gi in range(QD+6, 56):
                if gi == QF_AT: seq += pub
                seq += g2[gi]
            if QF_AT >= 56: seq += pub
        seq += ["STAMP6"]
        lead = 1 if kind == "ffn" else 4
        for g in g3[:lead]: seq += g
        seq += ilv(g3[lead:], f3)
        C.emit(seq)
        a.stamp(7)
        e0 = ffn_epi(ACC[6], 66, 2048); e1 = ffn_epi(ACC[7], 66, 3072)
        a.e("\n".join(e0 + e1))
        a.e("s_branch K1_CDONE")
    hist = list(a.hist)
    a.e("s_cmp_lt_u32 s61, 4\ns_cbranch_scc1 K1_QKV")
    variant("ffn")
    a.label("K1_QKV"); a.hist = list(hist)
    a.e("s_cmp_eq_u32 s61, 3\ns_cbranch_scc1 K1_KV")
    variant("q")
    a.label("K1_KV"); a.hist = list(hist)
    variant("kv")
    a.label("K1_CDONE")

def k1_loader(a):
    srd(a, 44, 12, 25088)
    srd(a, 48, 14, 25088)
    srd(a, 32, 20, 448*1792*2)
    srd(a, 56, 22, 448*1792*2)
    a.e(f"""s_sub_u32 s62, s62, 4
    s_cmp_ge_u32 s61, 4
    s_cselect_b32 s36, s20, s10
    s_cselect_b32 s37, s21, s11
    s_cselect_b32 s40, s22, s10
    s_cselect_b32 s41, s23, s11
    s_mov_b32 s38, {448*448*2}
    s_mov_b32 s64, 896
    s_cselect_b32 s38, {448*1792*2}, s38
    s_cselect_b32 s64, 3584, s64
    s_cselect_b32 s5, 0, 128
    s_mov_b32 s39, 0x20000
    s_mov_b32 s42, s38
    s_mov_b32 s43, 0x20000
    s_sub_u32 s6, s61, 4
    s_cmp_ge_u32 s61, 4
    s_cselect_b32 s6, s6, s61
    s_lshl_b32 s65, s6, 8
    s_add_u32 s7, s65, 128
    s_lshl_b32 s6, s61, 7
    s_add_u32 s6, s6, {24*128}
    s_cmp_ge_u32 s61, 4
    s_cselect_b32 s67, s7, s6
    s_mul_i32 s7, s62, s64
    s_lshl_b32 s7, s7, 4
    s_add_u32 s65, s65, s7
    s_add_u32 s66, s65, s5              ; B sg0
    s_mul_i32 s7, s62, {16*3584}
    s_add_u32 s67, s67, s7              ; sg1
    s_lshl_b32 s69, s64, 3
    s_lshl_b32 s70, s64, 6
    s_lshl_b32 s73, s62, 11
    s_mul_i32 s74, s62, {16*56}
    s_mov_b32 s71, s63
    s_mov_b32 s72, s63
    v_lshrrev_b32 v4, 1, v3             ; ps
    v_and_b32 v5, 2, v2
    v_xor_b32 v4, v4, v5                ; tA
    v_xor_b32 v5, 1, v4                 ; tB
    v_and_b32 v6, 1, v3
    v_mul_lo_u32 v7, v2, s64
    v_lshl_add_u32 v7, v6, 4, v7
    v_lshl_add_u32 v10, v4, 5, v7
    v_lshl_add_u32 v11, v5, 5, v7
    v_mul_u32_u24 v7, 3584, v2
    v_lshl_add_u32 v7, v6, 4, v7
    v_lshl_add_u32 v8, v4, 5, v7
    v_lshl_add_u32 v9, v5, 5, v7
    v_mul_u32_u24 v7, 56, v2
    v_and_b32 v6, 3, v3
    v_lshl_add_u32 v12, v6, 4, v7
    v_cmp_gt_u32 s[76:77], 2, v4
    v_cmp_le_u32 s[78:79], 2, v4""")
    def adv(s): a.e(f"s_add_u32 s{s}, s{s}, 1\ns_cmp_eq_u32 s{s}, 7\ns_cselect_b32 s{s}, 0, s{s}")
    lab = [0]
    def issue_w(c):
        base = WSLOT[c] * SLOT; lab[0] += 1; L = lab[0]
        a.e(f"""s_mul_i32 s7, s71, s70
        s_add_u32 s5, s65, s7
        s_add_u32 s6, s66, s7
        s_cmp_eq_u32 s61, 3
        s_cbranch_scc1 K1_VS{L}
        s_add_u32 m0, s73, {base}
        s_add_u32 s7, s5, s69
        buffer_load_dwordx4 v10, s[36:39], s5 offen lds
        s_add_u32 m0, s73, {base + 1024}
        s_add_u32 s3, s6, s69
        buffer_load_dwordx4 v10, s[36:39], s7 offen lds
        s_add_u32 m0, s73, {base + 8192}
        s_nop 0
        buffer_load_dwordx4 v11, s[40:43], s6 offen lds
        s_add_u32 m0, s73, {base + 8192 + 1024}
        s_nop 0
        buffer_load_dwordx4 v11, s[40:43], s3 offen lds
        s_branch K1_VE{L}""")
        a.label(f"K1_VS{L}")
        a.e(f"""s_mul_i32 s7, s71, {64*56}
        s_add_u32 s7, s7, s74
        s_add_u32 m0, s73, {base}
        s_add_u32 s3, s5, s69
        buffer_load_dwordx4 v10, s[36:39], s5 offen lds
        s_add_u32 m0, s73, {base + 1024}
        s_add_u32 s4, s7, {8*56}
        buffer_load_dwordx4 v10, s[36:39], s3 offen lds""")
        for n in range(2):
            a.e(f"""s_add_u32 m0, s73, {base + 8192 + n*1024}
            s_mov_b64 exec, s[76:77]
            buffer_load_dwordx4 v12, s[44:47], s{7 if n == 0 else 4} offen lds
            s_mov_b64 exec, s[78:79]
            buffer_load_dwordx4 v12, s[48:51], s{7 if n == 0 else 4} offen lds""")
        a.e("s_mov_b64 exec, -1")
        a.label(f"K1_VE{L}")
        adv(71)
    def issue_v(c):
        base = VSLOT[c] * SLOT
        a.e(f"""s_mul_i32 s5, s72, {64*3584}
        s_add_u32 s5, s5, s67
        s_add_u32 m0, s73, {base}
        s_add_u32 s7, s5, {8*3584}
        buffer_load_dwordx4 v8, s[32:35], s5 offen lds
        s_add_u32 m0, s73, {base + 1024}
        s_nop 0
        buffer_load_dwordx4 v8, s[32:35], s7 offen lds
        s_add_u32 m0, s73, {base + 8192}
        s_nop 0
        buffer_load_dwordx4 v9, s[56:59], s5 offen lds
        s_add_u32 m0, s73, {base + 8192 + 1024}
        s_nop 0
        buffer_load_dwordx4 v9, s[56:59], s7 offen lds""")
        adv(72)
    issue_w(0)
    a.e(f"""s_lshl_b32 s3, s2, 2
    s_xor_b32 s3, s3, 3
    s_mov_b32 s4, {FL_N}
    s_cmp_lg_u32 s3, s62
    s_cbranch_scc1 F_NN
    buffer_load_dword v20, off, s[52:55], s4 sc1
    s_waitcnt vmcnt(0)
    v_add_u32 v20, 1, v20
    v_or_b32 v20, 0x80000000, v20
    s_mov_b64 exec, 1
    buffer_store_dword v20, off, s[80:83], 0 sc1
    buffer_store_dword v20, off, s[52:55], s4 sc1
    s_mov_b64 exec, -1
    s_branch F_NN2
    F_NN:
    s_waitcnt vmcnt(0)
    F_NN2:""")
    issue_w(1); issue_w(2)
    a.e("s_barrier")
    issue_w(3)
    a.e("s_waitcnt vmcnt(4)\ns_barrier")
    issue_w(4); issue_w(5); issue_w(6); issue_v(0)
    a.e("s_waitcnt vmcnt(12)\ns_barrier")
    issue_v(1); issue_v(2); issue_v(3); issue_v(4)
    a.e("s_waitcnt vmcnt(20)\ns_barrier")
    issue_v(5); issue_v(6)
    relayout_a(a)
    a.e(nonce_load(14))
    a.e("s_waitcnt vmcnt(0)\ns_barrier")

def relayout_a(a):
    a.e(f"""s_cmp_ge_u32 s2, 144
    s_cbranch_scc1 F_RL1
    s_cmp_lt_u32 s2, 112
    s_cselect_b32 s84, s24, s16
    s_cselect_b32 s85, s25, s17
    s_mov_b32 s86, {448*448*2}
    s_cselect_b32 s86, {1792*448*2}, s86
    s_mov_b32 s87, 0x20000
    s_sub_u32 s5, s2, 112
    s_lshr_b32 s6, s5, 1
    s_mul_i32 s6, s6, 28
    s_and_b32 s75, s5, 1
    s_lshl_b32 s7, s75, 4
    s_add_u32 s6, s6, s7
    s_lshl_b32 s7, s2, 4
    s_cmp_lt_u32 s2, 112
    s_cselect_b32 s6, s7, s6
    s_cselect_b32 s75, 0, s75
    s_mul_i32 s6, s6, 896
    s_lshl_b32 s7, s62, 7
    s_add_u32 s6, s6, s7
    s_lshl_b32 s72, s62, 12
    v_mul_u32_u24 v13, 896, v2
    v_lshl_add_u32 v13, v3, 4, v13""")
    for blk in range(2):
        for n in range(2):
            a.e(f"""s_add_u32 m0, s72, {1*SLOT + blk*2048 + n*1024}
            s_add_u32 s5, s6, {blk*512 + n*8*896}
            buffer_load_dwordx4 v13, s[84:87], s5 offen lds""")
    a.label("F_RL1")

def relayout_b(a):
    a.e(f"""s_cmp_ge_u32 s2, 144
    s_cbranch_scc1 F_RL2
    v_lshlrev_b32 v15, 4, v0
    v_lshrrev_b32 v2, 5, v0
    v_bfe_u32 v3, v0, 2, 2
    v_lshl_add_u32 v3, v2, 2, v3
    v_lshlrev_b32 v3, 7, v3
    v_bfe_u32 v4, v0, 4, 1
    v_lshl_add_u32 v3, v4, 5, v3
    v_and_b32 v4, 3, v0
    v_lshl_add_u32 v3, v4, 3, v3
    v_add_u32 v3, s72, v3
    v_and_b32 v2, s75, v2
    v_cmp_eq_u32 vcc, 0, v2
    s_mul_i32 s5, s2, {14*1024}
    s_lshl_b32 s6, s62, 11
    s_add_u32 s5, s5, s6
    s_add_u32 s5, s5, {WS_WF}
    s_add_u32 s6, s5, 8192""")
    for blk in range(2):
        for e in range(2):
            for u in range(2):
                b = 16 + 8 * blk + 4 * e + 2 * u
                a.e(f"ds_read_b64_tr_b16 v[{b}:{b+1}], v3 offset:{1*SLOT + blk*2048 + u*1024 + e*64}")
    a.e("s_waitcnt lgkmcnt(0)")
    for i in range(4):
        for r in (2, 3): a.e(f"v_cndmask_b32 v{16+4*i+r}, 0, v{16+4*i+r}, vcc")
    a.e(f"""buffer_store_dwordx4 v[16:19], v15, s[52:55], s5 offen{SC}
    buffer_store_dwordx4 v[20:23], v15, s[52:55], s5 offen offset:1024{SC}
    s_cmp_eq_u32 s62, 3
    s_cbranch_scc1 F_RL2
    buffer_store_dwordx4 v[24:27], v15, s[52:55], s6 offen{SC}
    buffer_store_dwordx4 v[28:31], v15, s[52:55], s6 offen offset:1024{SC}""")

    a.label("F_RL2")
```

```python
from asmlib import *
from k1 import WS_Q, WS_KV, WS_ACT, WS_WF, WS_P, WS_SIZE, srd, f32, SLOT, FL_Q, FL_KV, FL_O, FL_R, poll, nonce_check

Q0, O0, S0, P0, KV0, KS = 16, 48, 112, 144, 160, 224
MOFF = 40.0
PRIO = int(os.environ.get("PRIO", 2))
FLAG = 6 * SLOT
PART = SLOT

def mf(d, x, y, c):
    return f"v_mfma_f32_32x32x16_bf16 v[{d}:{d+15}], v[{x}:{x+3}], v[{y}:{y+3}], " + (f"v[{c}:{c+15}]" if c is not None else "0")

def kload(b): return [f"buffer_load_dwordx4 v[{KV0+16*b+4*i}:{KV0+16*b+4*i+3}], v1, s[52:55], s21 offen offset:{1024*i} sc1" for i in range(2)]
def vload(b): return [f"buffer_load_dwordx4 v[{KV0+16*b+4*i}:{KV0+16*b+4*i+3}], v1, s[52:55], s21 offen offset:{1024*i} sc1" for i in (2, 3)]
ADV = ["s_add_u32 s20, s20, 4096", "s_and_b32 s20, s20, 0xffff", "s_add_u32 s21, s20, s22"]

def maxtree(a, src, dst, acc=None):
    r = list(range(src, src + 16))
    if acc is None:
        a.e(f"v_max3_f32 v{dst}, v{r[0]}, v{r[1]}, v{r[2]}"); r = r[3:]
        while len(r) >= 2:
            a.e(f"v_max3_f32 v{dst}, v{dst}, v{r[0]}, v{r[1]}"); r = r[2:]
        a.e(f"v_max_f32 v{dst}, v{dst}, v{r[0]}")
    else:
        while r:
            a.e(f"v_max3_f32 v{dst}, v{dst}, v{r[0]}, v{r[1]}"); r = r[2:]

def flagread(a, donelab):
    a.e(f"""v_mov_b32 v3, {FLAG}
    ds_read_b128 v[4:7], v3
    s_waitcnt lgkmcnt(0)
    v_or3_b32 v4, v4, v5, v6
    v_or_b32 v4, v4, v7
    v_readfirstlane_b32 s6, v4
    s_cmp_eq_u32 s6, 0
    s_cbranch_scc1 {donelab}""")

def attention(a, wave_sgpr=62):
    a.e(f"""v_lshlrev_b32 v1, 4, v0
    v_cmp_lt_u32 s[30:31], 31, v0
    s_mul_i32 s5, s61, 7
    v_lshrrev_b32 v2, 5, v0
    v_add_u32 v2, s5, v2
    v_and_b32 v3, 31, v0
    v_lshlrev_b32 v3, 4, v3
    s_mov_b32 s24, 0
    s_lshl_b32 s22, s62, 16
    s_add_u32 s22, s22, {WS_KV}
    s_lshr_b32 s23, s2, 3
    s_and_b32 s23, s23, 15
    s_lshl_b32 s23, s23, 12              ; rotation
    s_lshl_b32 s7, s60, 2
    s_and_b32 s5, s61, 3
    s_add_u32 s7, s7, s5
    s_lshl_b32 s7, s7, 12
    s_add_u32 s7, s7, {WS_KV}""")
    for f in range(2):
        a.e(f"""v_add_u32 v4, {2*f}, v2
        v_lshrrev_b32 v5, 2, v4
        v_lshl_add_u32 v{8+f}, v5, 10, v3
        v_and_b32 v5, 1, v4
        v_lshl_add_u32 v{8+f}, v5, 9, v{8+f}
        v_and_b32 v5, 2, v4
        v_lshl_add_u32 v{8+f}, v5, 2, v{8+f}""")
    if PRIO: a.e("s_setprio 3")
    a.e("\n".join(nonce_check(14, 4)))
    a.e(f"""s_mov_b32 s27, 0                     ; o published
    s_mul_i32 s5, s61, 28
    v_bfe_u32 v4, v0, 2, 2
    v_mul_u32_u24 v4, 27, v4
    v_add_u32 v4, s5, v4
    v_lshrrev_b32 v4, 7, v4
    v_bfe_u32 v5, v0, 3, 1
    v_mul_u32_u24 v5, 3, v5
    v_or_b32 v4, v4, v5
    v_and_b32 v4, 3, v4
    v_and_b32 v5, 3, v0
    v_lshlrev_b32 v5, 2, v5
    v_lshl_add_u32 v4, v4, 8, v5
    v_and_b32 v5, 15, v0
    v_lshlrev_b32 v12, 2, v5
    s_lshl_b32 s29, s60, 10
    s_lshl_b32 s28, s62, 8
    s_add_u32 s28, s28, s29
    s_add_u32 s28, s28, {FL_KV}
    s_add_u32 s29, s29, {FL_Q}""")
    def rflag():
        a.e(f"""s_cmp_ge_u32 s2, 144
        s_cbranch_scc1 F_RF
        s_lshl_b32 s5, s62, 10
        s_lshl_b32 s6, s2, 2
        s_add_u32 s5, s5, s6
        s_add_u32 s5, s5, {FL_R}
        s_mov_b64 exec, 1
        buffer_store_dword v14, off, s[52:55], s5 sc1
        s_mov_b64 exec, -1
        F_RF:""")
    poll(a, [(6, 4, 29)], 14, 4, first=rflag)
    a.stamp(2)
    for i in range(4):
        a.e(f"""s_add_u32 s6, s62, {i}
        s_and_b32 s6, s6, 3
        s_lshl_b32 s26, s60, 2
        s_add_u32 s6, s6, s26
        s_mul_i32 s6, s6, {112*256}""")
        for f in range(4):
            a.e(f"buffer_load_dwordx2 v[{Q0+8*i+2*f}:{Q0+8*i+2*f+1}], v{8+(f&1)}, s[52:55], s6 offen offset:{(f>>1)*1024} sc1")
    a.e(f"""buffer_load_dwordx4 v[{KS}:{KS+3}], v1, s[52:55], s7 offen sc1
    buffer_load_dwordx4 v[{KS+4}:{KS+7}], v1, s[52:55], s7 offen offset:1024 sc1""")
    poll(a, [(6, 12, 28)], 14, 4)
    a.stamp(3)
    def kv_prologue():
        a.e("s_mov_b32 s20, s23\ns_add_u32 s21, s20, s22")
        for b in range(4):
            if b: a.e("\n".join(ADV))
            a.e("\n".join(kload(b)))
            if b < 3: a.e("\n".join(vload(b)))
    kv_prologue()
    for i in range(4):
        for r in (6, 7): a.e(f"v_cndmask_b32 v{Q0+8*i+r}, v{Q0+8*i+r}, 0, s[30:31]")
    for i in range(4):
        a.e(mf(O0 + 16 * i, KS, Q0 + 8 * i, None))
        a.e(mf(O0 + 16 * i, KS + 4, Q0 + 8 * i + 4, O0 + 16 * i))
    for i in range(4): maxtree(a, O0 + 16 * i, 4 + i)
    for i in range(4): a.e(f"v_mov_b32 v{8+i}, v{4+i}")
    for i in range(4): a.e(f"v_permlane32_swap_b32 v{4+i}, v{8+i}")
    for i in range(4): a.e(f"v_max_f32 v{4+i}, v{4+i}, v{8+i}")
    for i in range(4): a.e(f"v_add_f32 v{4+i}, {f32(MOFF)}, v{4+i}")
    a.fence()
    a.label("K2_SETM")
    for i in range(4):
        m = 4 + i
        a.e(f"""v_cvt_pk_bf16_f32 v8, -v{m}, -v{m}
        v_lshlrev_b32 v8, 16, v8
        v_sub_f32 v9, -v{m}, v8
        v_cvt_pk_bf16_f32 v10, v9, v9
        v_lshlrev_b32 v10, 16, v10
        v_sub_f32 v10, v9, v10
        v_cvt_pk_bf16_f32 v8, -v{m}, v9
        v_cvt_pk_bf16_f32 v10, v10, 0
        v_cndmask_b32 v{Q0+8*i+6}, v{Q0+8*i+6}, v8, s[30:31]
        v_cndmask_b32 v{Q0+8*i+7}, v{Q0+8*i+7}, v10, s[30:31]""")
    for r in range(64): a.e(f"v_mov_b32 v{O0+r}, 0")
    for r in range(8): a.e(f"v_mov_b32 v{P0+8+r}, 0")
    for r in range(8): a.e(f"v_mov_b32 v{KV0+48+8+r}, 0")
    a.e("s_waitcnt vmcnt(12)")
    a.e(mf(S0, KV0, Q0, None)); a.e(mf(S0, KV0 + 4, Q0 + 4, S0))
    a.e("s_mov_b32 s25, 4")
    if PRIO == 1: a.e("s_setprio 0")
    a.stamp(4)
    a.fence()
    a.raw(".p2align 6")
    def body():
        for u in range(16):
            n = (u + 1) % 16; p = (u - 1) % 16
            Sn = S0 + 16 * ((u + 1) & 1); Sc = S0 + 16 * (u & 1)
            Pc = P0 + 8 * (u & 1); Pp = P0 + 8 * ((u - 1) & 1)
            kb = KV0 + 16 * (n // 4); vb = KV0 + 16 * (p // 4) + 8
            qn = Q0 + 8 * (n % 4); op = O0 + 16 * (p % 4)
            ms = [mf(Sn, kb, qn, None), mf(Sn, kb + 4, qn + 4, Sn), mf(op, vb, Pp, op), mf(op, vb + 4, Pp + 4, op)]
            pre = [[], [], [], []]; post = [[], [], [], []]
            if n % 4 == 0: pre[0].append("s_waitcnt vmcnt(12)")
            if p % 4 == 0: pre[2].append("s_waitcnt vmcnt(12)")
            pr = (lambda l: ["s_setprio 3"] + l + ["s_setprio 0"]) if PRIO == 1 else (lambda l: l)
            if u % 4 == 2: post[0] += ADV; post[1] += pr(kload(u // 4))
            if u % 4 == 0: post[3] += pr(vload(((u // 4) - 1) % 4))
            for g in range(4):
                a.e("\n".join(pre[g] + [ms[g]] + post[g]))
                for r in range(4): a.e(f"v_exp_f32 v{Sc+4*g+r}, v{Sc+4*g+r}")
                if g >= 1:
                    for h in range(2): a.e(f"v_cvt_pk_bf16_f32 v{Pc+2*(g-1)+h}, v{Sc+4*(g-1)+2*h}, v{Sc+4*(g-1)+2*h+1}")
                if g == 3:
                    if u == 15: a.e("s_sub_u32 s25, s25, 1\ns_cmp_lg_u32 s25, 0")
                    for h in range(2): a.e(f"v_cvt_pk_bf16_f32 v{Pc+6+h}, v{Sc+12+2*h}, v{Sc+12+2*h+1}")
    a.label("K2_LOOP")
    n0 = a.nops
    body()
    assert a.nops == n0, "unexpected nops in attention loop"
    a.e("s_cbranch_scc1 K2_LOOP")
    t = Asm(); t.hist = list(a.hist); sv = a;
    a2 = Asm(); a2.hist = list(a.hist)
    a.stamp(5)
    if PRIO: a.e("s_setprio 3")
    vb = KV0 + 48 + 8
    a.e(mf(O0 + 48, vb, P0 + 8, O0 + 48)); a.e(mf(O0 + 48, vb + 4, P0 + 12, O0 + 48))
    for i in (1, 2, 3):
        a.e(f"""s_add_u32 s6, s62, {i}
        s_and_b32 s6, s6, 3
        s_mul_i32 s6, s6, {3*4096}
        v_add_u32 v3, s6, v1""")
        for g in range(4):
            a.e(f"ds_write_b128 v3, v[{O0+16*i+4*g}:{O0+16*i+4*g+3}] offset:{PART + (i-1)*4096 + g*1024}")
    a.e(f"""s_mul_i32 s6, s62, {3*4096}
    v_add_u32 v3, s6, v1
    s_waitcnt lgkmcnt(0)
    s_barrier""")
    a.stamp(6)
    for i in range(3):
        for g in range(4):
            a.e(f"ds_read_b128 v[{O0+16+16*i+4*g}:{O0+16+16*i+4*g+3}], v3 offset:{PART + i*4096 + g*1024}")
    a.e(f"""s_lshl_b32 s6, s60, 2
    s_add_u32 s6, s6, s62
    s_mul_i32 s6, s6, 144
    s_lshl_b32 s7, s61, 1
    s_add_u32 s6, s6, s7
    s_lshl_b32 s6, s6, 10
    s_add_u32 s6, s6, {WS_ACT + 112*1024}""")
    for i in range(3):
        a.e(f"s_waitcnt lgkmcnt({8 - 4*i})")
        for r in range(16): a.e(f"v_add_f32 v{O0+r}, v{O0+r}, v{O0+16+16*i+r}")
    a.e(f"""v_mov_b32 v4, v{O0+12}
    v_mov_b32 v5, v{O0+12}
    v_mul_f32 v6, 0, v{O0}
    v_permlane32_swap_b32 v4, v5
    v_rcp_f32 v5, v5""")
    for r in range(1, 16): a.e(f"v_fmac_f32 v6, 0, v{O0+r}")
    for r in range(16): a.e(f"v_mul_f32 v{O0+r}, v5, v{O0+r}")
    for i in range(8): a.e(f"v_cvt_pk_bf16_f32 v{O0+i}, v{O0+2*i}, v{O0+2*i+1}")
    a.e(f"""v_cmp_u_f32 vcc, v6, v6
    s_lshl_b32 s7, s60, 1
    s_lshr_b32 s5, s62, 1
    s_add_u32 s7, s7, s5
    s_lshl_b32 s7, s7, 10
    s_lshr_b32 s5, s61, 2
    s_lshl_b32 s5, s5, 8
    s_add_u32 s7, s7, s5
    s_and_b32 s5, s61, 3
    s_lshl_b32 s5, s5, 3
    s_add_u32 s7, s7, s5
    s_and_b32 s5, s62, 1
    s_lshl_b32 s5, s5, 2
    s_add_u32 s7, s7, s5
    s_add_u32 s7, s7, {FL_O}
    s_cmp_lg_u64 vcc, 0
    s_cselect_b32 s5, 1, 0
    s_andn2_b32 s5, s5, s24
    s_lshl_b32 s4, s62, 2
    s_add_u32 s4, s4, {FLAG}
    v_mov_b32 v3, s4
    v_mov_b32 v4, s5
    ds_write_b32 v3, v4
    s_or_b32 s4, s5, s27
    s_cmp_lg_u32 s4, 0
    s_cbranch_scc1 K2_OK
    buffer_store_dwordx4 v[{O0}:{O0+3}], v1, s[52:55], s6 offen sc1
    buffer_store_dwordx4 v[{O0+4}:{O0+7}], v1, s[52:55], s6 offen offset:1024 sc1
    s_mov_b32 s27, 1
    s_waitcnt vmcnt(0)
    s_mov_b64 exec, 1
    buffer_store_dword v14, off, s[52:55], s7 sc1
    s_mov_b64 exec, -1""")
    a.label("K2_OK")
    a.stamp(7)
    a.e(f"""s_waitcnt lgkmcnt(0)
    s_barrier""")
    flagread(a, "K2_END")
    a.e("s_mov_b32 s24, 1\ns_mov_b32 s25, 16\ns_mov_b32 s21, s22\ns_waitcnt vmcnt(0)")
    for i in range(4):
        for r in (6, 7): a.e(f"v_cndmask_b32 v{Q0+8*i+r}, v{Q0+8*i+r}, 0, s[30:31]")
        a.e(f"v_mov_b32 v{4+i}, 0xff800000")
    a.fence()
    a.label("K2_MAXLOOP")
    a.e("\n".join(kload(0)))
    a.e("s_add_u32 s21, s21, 4096\ns_waitcnt vmcnt(0)")
    for i in range(4):
        a.e(mf(O0 + 16 * i, KV0, Q0 + 8 * i, None))
        a.e(mf(O0 + 16 * i, KV0 + 4, Q0 + 8 * i + 4, O0 + 16 * i))
    for i in range(4): maxtree(a, O0 + 16 * i, 4 + i, acc=True)
    a.e("s_sub_u32 s25, s25, 1\ns_cmp_lg_u32 s25, 0")
    a.fence()
    a.e("s_cbranch_scc1 K2_MAXLOOP")
    for i in range(4): a.e(f"v_mov_b32 v{8+i}, v{4+i}")
    for i in range(4): a.e(f"v_permlane32_swap_b32 v{4+i}, v{8+i}")
    for i in range(4): a.e(f"v_max_f32 v{4+i}, v{4+i}, v{8+i}")
    a.e("v_lshlrev_b32 v12, 2, v0")
    for i in range(4):
        a.e(f"""s_add_u32 s6, s62, {i}
        s_and_b32 s6, s6, 3
        s_lshl_b32 s6, s6, 10
        s_add_u32 s6, s6, {FLAG + 256}
        v_add_u32 v{8+i}, s6, v12
        s_lshl_b32 s7, s62, 8
        v_add_u32 v13, s7, v{8+i}
        ds_write_b32 v13, v{4+i}""")
    a.e("s_waitcnt lgkmcnt(0)\ns_barrier")
    for i in range(4):
        for w in range(4): a.e(f"ds_read_b32 v{O0+4*i+w}, v{8+i} offset:{w*256}")
    a.e("s_waitcnt lgkmcnt(0)")
    for i in range(4):
        a.e(f"v_max3_f32 v{4+i}, v{O0+4*i}, v{O0+4*i+1}, v{O0+4*i+2}\nv_max_f32 v{4+i}, v{4+i}, v{O0+4*i+3}")
    kv_prologue()
    a.fence()
    a.e("s_branch K2_SETM")
```

```python
from asmlib import *
from k1 import WS_Q, WS_KV, WS_ACT, WS_WF, WS_P, WS_SIZE, srd, f32, FL_H, FL_O, FL_R, poll, nonce_check
from k2 import mf, flagread
D = int(os.environ.get('D3', 4)); NK = 28
AC = 16; BUF = 80; XR = [208, 212]
RST = 272
def ffn2(a, endlab):
    a.e(f"""s_lshl_b32 s7, s60, 1
    s_lshr_b32 s5, s62, 1
    s_add_u32 s7, s7, s5
    s_lshl_b32 s7, s7, 10
    s_lshl_b32 s5, s61, 3
    s_add_u32 s7, s7, s5
    s_and_b32 s5, s62, 1
    s_lshl_b32 s5, s5, 2
    s_add_u32 s7, s7, s5
    s_add_u32 s7, s7, {FL_H}
    s_lshl_b32 s5, s61, 1
    s_sub_u32 s5, s5, 8
    v_bfe_u32 v7, v0, 4, 1
    v_add_u32 v7, s5, v7
    v_min_u32 v7, 27, v7
    v_mul_u32_u24 v7, 37, v7
    v_and_b32 v7, 0x300, v7
    s_lshr_b32 s3, s61, 3                ; half
    s_lshl_b32 s63, s60, 1
    s_add_u32 s63, s63, s3               ; tp
    s_and_b32 s64, s61, 7
    s_cmp_lt_u32 s61, 8
    s_cselect_b32 s3, 3, 7
    s_cmp_gt_u32 s64, s3
    s_cselect_b32 s6, 1, 0
    s_sub_u32 s65, s64, s6               ; np
    v_mov_b32 v1, v0
    v_lshrrev_b32 v0, 4, v0
    s_lshl_b32 s5, s62, 6
    v_add_u32 v15, s5, v0                ; tid
    s_mul_i32 s20, s63, {2*144*1024}
    s_add_u32 s20, s20, {WS_ACT}
    s_lshl_b32 s5, s62, 13
    s_add_u32 s66, s20, s5
    s_add_u32 s66, s66, {112*1024}
    s_add_u32 s67, s66, {144*1024}
    s_mul_i32 s5, s62, {NK*1024}
    s_add_u32 s20, s20, s5
    s_add_u32 s21, s20, {144*1024}
    s_lshl_b32 s5, s65, 11
    s_add_u32 s5, s5, {WS_WF}
    s_mul_i32 s22, s62, {NK*14*1024}
    s_add_u32 s22, s22, s5
    s_mul_i32 s68, s62, {8*14*1024}
    s_add_u32 s68, s68, s5
    s_add_u32 s68, s68, {112*14*1024}
    s_lshl_b32 s69, s63, 10
    s_lshl_b32 s5, s62, 8
    s_add_u32 s69, s69, s5
    s_add_u32 s70, s69, {FL_O}
    s_add_u32 s69, s69, {FL_H}
    s_and_b32 s71, s65, 3
    s_lshl_b32 s71, s71, 10
    s_add_u32 s71, s71, {FL_R}
    v_and_b32 v8, 7, v0
    v_lshlrev_b32 v8, 2, v8
    s_mul_i32 s5, s62, 7
    v_lshrrev_b32 v3, 1, v0
    v_min_u32 v3, 6, v3
    v_add_u32 v3, s5, v3                 ; sg
    v_lshrrev_b32 v4, 1, v3
    v_add_u32 v4, 4, v4
    v_subrev_u32 v5, 24, v3
    v_cmp_gt_u32 vcc, 24, v3
    v_cndmask_b32 v3, v5, v4, vcc        ; j
    v_and_b32 v4, 1, v0
    v_lshlrev_b32 v4, 2, v4
    v_lshl_add_u32 v3, v3, 3, v4
    s_mul_i32 s5, s62, 28
    v_min_u32 v9, 35, v0
    v_add_u32 v10, s5, v9
    s_lshl_b32 s5, s62, 3
    s_add_u32 s5, s5, {112 - 28}
    v_add_u32 v11, s5, v9
    v_cmp_gt_u32 vcc, 28, v9
    v_cndmask_b32 v9, v11, v10, vcc
    v_lshlrev_b32 v9, 2, v9
    s_waitcnt vmcnt(0)""")
    a.e("\n".join(nonce_check(14, 4)))
    a.e(f"""s_mov_b64 exec, 3
    buffer_store_dword v14, v7, s[52:55], s7 offen sc1
    s_mov_b64 exec, -1""")
    a.stamp(4)
    a.e(f"s_cmp_eq_u32 s64, s3\ns_cbranch_scc1 {endlab}")
    srd(a, 36, 26, 1835008)
    def loads(b):
        r = BUF + 16 * b
        return f"""buffer_load_dwordx4 v[{r}:{r+3}], v1, s[52:55], s22 offen sc1
        buffer_load_dwordx4 v[{r+4}:{r+7}], v1, s[52:55], s22 offen offset:1024 sc1
        buffer_load_dwordx4 v[{r+8}:{r+11}], v1, s[52:55], s20 offen sc1
        buffer_load_dwordx4 v[{r+12}:{r+15}], v1, s[52:55], s21 offen sc1
        s_add_u32 s20, s20, 1024
        s_add_u32 s21, s21, 1024
        s_add_u32 s22, s22, {14*1024}"""
    a.e(f"""v_lshrrev_b32 v2, 3, v15
    v_and_b32 v13, 7, v15
    v_mul_u32_u24 v12, 896, v2
    v_lshl_add_u32 v12, v13, 4, v12
    s_mul_i32 s23, s63, {64*896}
    s_lshl_b32 s5, s65, 7
    s_add_u32 s23, s23, s5
    s_add_u32 s24, s23, {32*896}
    buffer_load_dwordx4 v[{XR[0]}:{XR[0]+3}], v12, s[32:35], s23 offen
    buffer_load_dwordx4 v[{XR[1]}:{XR[1]+3}], v12, s[32:35], s24 offen""")
    poll(a, [(6, 3, 69), (7, 9, 71)], 14, 4)
    a.stamp(5)
    for b in range(D): a.e(loads(b))
    for r in range(64): a.e(f"v_mov_b32 v{AC+r}, 0")
    a.e(f"s_mov_b32 s25, {NK//D - 1}")
    a.fence()
    def mms(r):
        for e in range(2):
            for t in range(2):
                acc = AC + 16 * (2 * t + e)
                a.e(mf(acc, r + 4 * e, r + 8 + 4 * t, acc))
    a.label("K3_LOOP")
    for b in range(D):
        a.e(f"s_waitcnt vmcnt({4*(D-1)})")
        mms(BUF + 16 * b)
        a.e(loads(b))
    a.e("s_sub_u32 s25, s25, 1\ns_cmp_lg_u32 s25, 0\ns_cbranch_scc1 K3_LOOP")
    def wo(b):
        r = BUF + 16 * b
        return f"""buffer_load_dwordx4 v[{r}:{r+3}], v1, s[52:55], s68 offen sc1
        buffer_load_dwordx4 v[{r+4}:{r+7}], v1, s[52:55], s68 offen offset:1024 sc1
        s_add_u32 s68, s68, {14*1024}"""
    for b in range(D):
        a.e(f"s_waitcnt vmcnt({4*(D-1-b) + 2*b})")
        mms(BUF + 16 * b)
        a.e(wo(b))
    for b in range(D, 8): a.e(wo(b))
    a.stamp(6)
    a.e(f"""v_and_b32 v10, 31, v0
    v_mul_u32_u24 v10, {RST}, v10
    v_lshrrev_b32 v11, 5, v0
    v_lshl_add_u32 v10, v11, 4, v10
    s_mul_i32 s5, s62, {64*RST}
    v_add_u32 v10, s5, v10
    v_mul_u32_u24 v11, {RST}, v2
    v_lshl_add_u32 v11, v13, 5, v11
    s_barrier
    s_barrier""")
    flagread(a, "K3_NOFB")
    a.e("s_barrier\ns_barrier\ns_barrier")
    a.label("K3_NOFB")
    a.stamp(7)
    poll(a, [(6, 8, 70)], 14, 4)
    a.stamp(8)
    for b in range(8):
        r = BUF + 16 * b
        a.e(f"""buffer_load_dwordx4 v[{r+8}:{r+11}], v1, s[52:55], s66 offen offset:{(b&3)*1024} sc1
        buffer_load_dwordx4 v[{r+12}:{r+15}], v1, s[52:55], s67 offen offset:{(b&3)*1024} sc1""")
        if b == 3: a.e("s_add_u32 s66, s66, 4096\ns_add_u32 s67, s67, 4096")
    for b in range(8):
        a.e(f"s_waitcnt vmcnt({2*(7-b)})")
        mms(BUF + 16 * b)
    for t in range(2):
        for e in range(2):
            for g in range(4):
                acc = AC + 16 * (2 * t + e) + 4 * g
                a.e(f"ds_write_b128 v10, v[{acc}:{acc+3}] offset:{t*32*RST + e*128 + g*32}")
    a.e("s_waitcnt lgkmcnt(0)\ns_barrier")
    for i in range(2):
        for w in range(4):
            for h in range(2):
                r = AC + 32 * i + 8 * w + 4 * h
                off = w * 64 * RST + i * 32 * RST + h * 16
                a.e(f"ds_read_b128 v[{r}:{r+3}], v11 offset:{off}")
    for i in range(2):
        xr = XR[i]
        a.e(f"s_waitcnt lgkmcnt({8 - 8*i})")
        b = AC + 32 * i
        for w in (1, 2, 3):
            for r in range(8): a.e(f"v_add_f32 v{b+r}, v{b+r}, v{b+8*w+r}")
        for r in range(4):
            a.e(f"""v_lshlrev_b32 v4, 16, v{xr+r}
            v_and_b32 v5, 0xffff0000, v{xr+r}
            v_add_f32 v{b+2*r}, v{b+2*r}, v4
            v_add_f32 v{b+2*r+1}, v{b+2*r+1}, v5
            v_cvt_pk_bf16_f32 v{xr+r}, v{b+2*r}, v{b+2*r+1}""")
        a.e(f"buffer_store_dwordx4 v[{xr}:{xr+3}], v12, s[36:39], s{23+i} offen")
```

```python
import sys
from asmlib import *
import k1, k2, k3
NAME = "parallel_sum__grouped_kv_mqa__glu_gated_glu__prompt"
hdr = open(f"cdna_kernels/{NAME}.s.ref").read().split("; Override launch")[0]
name = NAME + "_kernel"
a = Asm()
a.raw(f".p2align 8\n.globl {name}\n.type {name},@function\n{name}:")
a.stamp(0); a.stamp(10)
if STAMP:
    for i in range(1, 10): a.e(f's_mov_b32 s{88+i}, s88')
k1.k1_entry(a, "F_END")
a.e("s_cmp_lt_u32 s62, 4\ns_cbranch_scc1 F_COMPUTE")
k1.k1_loader(a)
a.stamp(1)
k2.attention(a)
a.label("K2_END")
if STAMP: a.e("s_waitcnt vmcnt(0)")
a.dump(0, 62, 8, 4)
a.e("s_endpgm")
a.label("F_COMPUTE"); a.hist = []
a.smap = {5: 1, 6: 2, 7: 3, 8: 8, 4: 7, 3: 6, 9: 5}
k1.k1_compute(a)
a.smap = None
a.fence()
k3.ffn2(a, "F_END" if os.environ.get("PROBE") else "F_CEND")
a.label("F_CEND")
if STAMP: a.e("s_waitcnt vmcnt(0)")
a.dump(0, 62, 8)
a.label("F_END")
a.e("s_endpgm")
a.label("F_CODE_END")
out = hdr + f"""; @launch grid=(256,1,1) block=(512,1,1) lds=163840
.amdgcn_target "amdgcn-amd-amdhsa--gfx950"
.text
""" + a.text() + '.section .rodata,"a"\n' + kd(name, 256)
dst = sys.argv[1] if len(sys.argv) > 1 else f"cdna_kernels/{NAME}.s"
open(dst, "w").write(out)
print("nops", a.nops, "lines", len(a.lines))
```

```python
import re

TRANS = ("v_exp_f32", "v_log_f32", "v_rcp_f32", "v_rsq_f32", "v_sqrt_f32", "v_sin_f32", "v_cos_f32")

def regs_of(tok):
    tok = tok.strip().lstrip("-")
    m = re.fullmatch(r"\|?([vsa])(\d+)\|?", tok)
    if m: return {(m.group(1), int(m.group(2)))}
    m = re.fullmatch(r"\|?([vsa])\[(\d+):(\d+)\]\|?", tok)
    if m: return {(m.group(1), i) for i in range(int(m.group(2)), int(m.group(3)) + 1)}
    if tok in ("vcc", "vcc_lo"): return {("s", "vcc")}
    if tok == "exec": return {("s", "exec")}
    if tok == "m0": return {("s", "m0")}
    return set()

class Ins:
    def __init__(self, text):
        self.text = text
        t = text.split(";")[0].split(" op_sel")[0].strip()
        parts = t.split(None, 1)
        self.op = parts[0]
        ops = [o.strip() for o in parts[1].split(",")] if len(parts) > 1 else []
        if ops:
            ops[-1] = ops[-1].split()[0] if ops[-1].split() else ops[-1]
        self.ops = ops
        op = self.op
        self.mfma = op.startswith("v_mfma")
        self.valu = op.startswith("v_") and not self.mfma
        self.trans = op.replace("_e32", "").replace("_e64", "") in TRANS
        self.dot = op.startswith("v_dot")
        self.ds = op.startswith("ds_")
        self.vmem = op.startswith("buffer_") or op.startswith("global_")
        self.salu = op.startswith("s_")
        self.lds_dma = self.vmem and (" lds" in t or "_lds_" in op)
        self.w = set(); self.r = set(); self.srcc = set(); self.ab = set()
        R = [regs_of(o) for o in ops]
        if self.mfma:
            self.w = R[0]; self.ab = R[1] | R[2]; self.srcc = R[3]; self.r = self.ab | self.srcc
            self.passes = 8 if "32x32x16" in op else 4
        elif self.valu:
            nd = 1
            if op.startswith(("v_add_co", "v_sub_co", "v_addc_co", "v_subb_co")): nd = 2
            for x in R[:nd]: self.w |= x
            for x in R[nd:]: self.r |= x
            if op.startswith(("v_fmac", "v_dot2c")): self.r |= R[0]
            if op.startswith("v_permlane") and "swap" in op:
                self.w = R[0] | R[1]; self.r = R[0] | R[1]
            if op.startswith("v_cmpx"): self.w |= {("s", "exec")}
            if op.startswith("v_cndmask") and len(ops) == 3: self.r |= {("s", "vcc")}
        elif self.ds:
            if op.startswith(("ds_write", "ds_add_f32", "ds_add_u32")) :
                for x in R: self.r |= x
            else:
                self.w = R[0]
                for x in R[1:]: self.r |= x
        elif self.vmem:
            if "store" in op or self.lds_dma or ("atomic" in op):
                for x in R: self.r |= x
                if self.lds_dma: self.r |= {("s", "m0")}
            else:
                self.w = R[0]
                for x in R[1:]: self.r |= x
        elif self.salu:
            if op.startswith(("s_cmp", "s_cbranch", "s_branch", "s_waitcnt", "s_barrier", "s_nop", "s_endpgm", "s_setprio", "s_sleep")):
                for x in R: self.r |= x
            else:
                if R: self.w = R[0]
                for x in R[1:]: self.r |= x
                if "saveexec" in op: self.w |= {("s", "exec")}
        self.slots = 1
        if op == "s_nop": self.slots = int(ops[0]) + 1
        self.wide_store = self.vmem and "store" in op and ("x4" in op or "x3" in op)
        self.store_data = R[0] if (self.wide_store and op.startswith("buffer")) else (R[1] if self.wide_store else set())

def need(prev, cur):
    n = 0
    vw = {x for x in prev.w if x[0] in "va"}
    sw = {x for x in prev.w if x[0] == "s"}
    if prev.valu:
        if cur.mfma and vw & cur.r: n = max(n, 2)
        if prev.trans and cur.valu and not cur.trans and vw & cur.r: n = max(n, 1)
        if prev.trans and (cur.ds or cur.vmem) and vw & cur.r: n = max(n, 1)
        if cur.op.startswith(("v_readfirstlane", "v_readlane")) and vw & cur.r: n = max(n, 1)
        if cur.op.startswith("v_permlane") and vw & cur.r: n = max(n, 2)
        if "dpp" in cur.text or "quad_perm" in cur.text or "row_" in cur.text:
            if vw & cur.r: n = max(n, 2)
        if sw and cur.valu and sw & cur.r: n = max(n, 2)
        if sw and cur.vmem and sw & cur.r: n = max(n, 5)
        if sw and cur.salu and sw & cur.r: n = max(n, 1)
        if ("s", "exec") in sw and (cur.mfma or cur.op.startswith(("v_readlane", "v_readfirstlane", "v_permlane"))): n = max(n, 4)
        if prev.dot:
            if (cur.valu or cur.mfma or cur.ds or cur.vmem) and vw & (cur.r | cur.w):
                same_acc = cur.op == prev.op and not (vw & (regs_of(cur.ops[1]) | regs_of(cur.ops[2])))
                if not same_acc: n = max(n, 3)
    if prev.mfma:
        big = 12 if prev.passes == 8 else 8
        if cur.mfma:
            if prev.w & cur.ab: n = max(n, big)
            if prev.w & cur.srcc and not (prev.w == cur.srcc and prev.passes == cur.passes): n = max(n, big - 2)
            if prev.w & cur.w and not (prev.w == cur.srcc): n = max(n, big)
        elif cur.valu or cur.ds or cur.vmem:
            if prev.w & (cur.r | cur.w): n = max(n, big)
            if cur.valu and prev.srcc & cur.w: n = max(n, 7 if prev.passes == 8 else 3)
    if prev.salu and ("s", "m0") in prev.w and cur.lds_dma: n = max(n, 1)
    if prev.wide_store and prev.store_data & cur.w: n = max(n, 2)
    return n

import os
STAMP = bool(os.environ.get("STAMP"))
WS_DBG = 0x1800000
class Asm:
    def stamp(self, i):
        if not STAMP: return False
        if self.smap is not None and i < 10:
            if i not in self.smap: return False
            i = self.smap[i]
        self.e(f"s_memtime s[100:101]\ns_waitcnt lgkmcnt(0)\ns_mov_b32 s{88+i}, s100" if i not in (10, 11) else
               f"s_memrealtime s[100:101]\ns_waitcnt lgkmcnt(0)\ns_mov_b32 s{88+i}, s100")
        return True
    def dump(self, kidx, wave_sgpr, nw, wadd=0):
        if not STAMP: return
        self.smap = None; self.stamp(9); self.stamp(11)
        if os.environ.get("HDBG"):
            idx = [1, 2, 4, 5, 6, 8, 9] if wadd == 0 else [2, 3, 4, 5, 7]
            base = 3 if wadd == 0 else 10
            self.e("s_mov_b64 exec, 1\ns_not_b32 s98, s98\nv_mov_b32 v4, s98\nv_mov_b32 v5, s99")
            self.e("buffer_atomic_umax v4, off, s[80:83], 0 offset:4\nbuffer_atomic_umax v5, off, s[80:83], 0 offset:8")
            for k, i in enumerate(idx):
                self.e(f"s_sub_u32 s100, s{88+i}, s88\nv_mov_b32 v{6+k}, s100\nbuffer_atomic_umax v{6+k}, off, s[80:83], 0 offset:{4*(base+k)}")
            return
        self.e(f"s_mul_i32 s100, s2, {nw}\ns_add_u32 s100, s100, s{wave_sgpr}\ns_add_u32 s100, s100, {wadd}\ns_lshl_b32 s100, s100, 6\ns_add_u32 s100, s100, {WS_DBG + kidx*0x40000}")
        self.e("s_nop 7\ns_nop 7\nv_mov_b32 v1, 0")
        for g in range(3):
            for r in range(4): self.e(f"v_mov_b32 v{4+r}, s{88+4*g+r}")
            self.e(f"buffer_store_dwordx4 v[4:7], v1, s[52:55], s100 offen offset:{16*g}")
    def __init__(self):
        self.lines = []
        self.hist = []
        self.nops = 0
        self.smap = None
    def raw(self, s):
        self.lines.append(s)
    def label(self, name, keep=False):
        self.lines.append(name + ":")
    def fence(self, n=12):
        worst = 0; dist = 0
        for p in reversed(self.hist):
            req = 12 if p.mfma else (5 if p.valu else 2 if p.wide_store else 1)
            worst = max(worst, req - dist)
            dist += p.slots
            if dist > 16: break
        if worst > 0: self.e(f"s_nop {worst-1}")
    def e(self, text):
        for t in text.strip().split("\n"):
            t = t.strip()
            if not t or t.startswith(";"): continue
            if t.endswith(":"):
                self.lines.append(t); continue
            cur = Ins(t)
            dist = 0; pad = 0
            for p in reversed(self.hist):
                pad = max(pad, need(p, cur) - dist)
                dist += p.slots
                if dist > 16: break
            if pad > 0:
                nop = Ins(f"s_nop {pad-1}")
                self.lines.append(f"    s_nop {pad-1}")
                self.hist.append(nop); self.nops += pad
            self.lines.append("    " + t)
            self.hist.append(cur)
            if len(self.hist) > 40: self.hist = self.hist[-24:]
    def text(self):
        return "\n".join(self.lines) + "\n"

def vr(a, n=1):
    return f"v{a}" if n == 1 else f"v[{a}:{a+n-1}]"
def sr(a, n=1):
    return f"s{a}" if n == 1 else f"s[{a}:{a+n-1}]"

def interleave(main, fill):
    out = []
    n = len(main); k = 0
    for i, g in enumerate(main):
        out += g
        tgt = (len(fill) * (i + 1)) // n
        out += fill[k:tgt]; k = tgt
    return out

def kd(name, vgpr, sgpr=102):
    return f""".p2align 6
.amdhsa_kernel {name}
  .amdhsa_next_free_vgpr {vgpr}
  .amdhsa_next_free_sgpr {sgpr}
  .amdhsa_accum_offset {(vgpr+3)//4*4}
  .amdhsa_group_segment_fixed_size 0
  .amdhsa_kernarg_size 96
  .amdhsa_user_sgpr_count 2
  .amdhsa_user_sgpr_kernarg_segment_ptr 1
  .amdhsa_system_sgpr_workgroup_id_x 1
  .amdhsa_float_denorm_mode_32 3
  .amdhsa_float_denorm_mode_16_64 3
.end_amdhsa_kernel
"""
```

```python
from asmlib import *
WS_Q, WS_KV, WS_ACT, WS_WF, WS_P = 0x0, 0x200000, 0x400000, 0xD00000, 0x1000000
WS_SIZE = 0x2000000
LOG2E = 1.4426950408889634
import struct
def f32(x): return "0x%08x" % struct.unpack("<I", struct.pack("<f", x))[0]
SC = " sc1" if os.environ.get("NOSC1") is None else ""

def srd(a, d, lo, size):
    a.e(f"s_mov_b32 s{d}, s{lo}\ns_mov_b32 s{d+1}, s{lo+1}\ns_mov_b32 s{d+2}, {size}\ns_mov_b32 s{d+3}, 0x20000")

SLOT = 16384
PF = os.environ.get("NOPF") is None
WSLOT = [7, 8, 9, 0, 1, 2, 3]
VSLOT = [4, 5, 6, 7, 8, 9, 0]
VT = 3 * SLOT
FL = 0x1400000
FL_Q, FL_N, FL_H, FL_R = FL, FL + 0x8000, FL + 0x10000, FL + 0x30000
B8 = int(os.environ.get('B8', 34))
SLP = int(os.environ.get('SLP', 4))
SPIN = 400000
QF_AT = int(os.environ.get("QF_AT", 26)); QD = int(os.environ.get("QD", 4))
_lab = [0]
def newlab(p):
    _lab[0] += 1; return f"{p}{_lab[0]}"
def nonce_load(v): return f"buffer_load_dword v{v}, off, s[80:83], 0 sc1"
def nonce_check(v, st):
    L = newlab("NC")
    return [f"v_readfirstlane_b32 s{st}, v{v}", f"s_cmp_lg_u32 s{st}, 0", f"s_cbranch_scc1 {L}E", f"s_mov_b32 s{st+1}, {SPIN}",
            f"{L}:", nonce_load(v), "s_waitcnt vmcnt(0)", f"v_readfirstlane_b32 s{st}, v{v}", f"s_cmp_lg_u32 s{st}, 0",
            f"s_cbranch_scc1 {L}E", f"s_sub_u32 s{st+1}, s{st+1}, 1", f"s_cmp_lg_u32 s{st+1}, 0", f"s_cbranch_scc1 {L}", f"{L}E:"]
def poll(a, loads, vn, st, first=None, lanes=64):
    L = newlab("PL")
    def ld():
        if lanes < 64: a.e(f"s_bfm_b64 exec, {lanes}, 0")
        for d, o, so in loads: a.e(f"buffer_load_dword v{d}, v{o}, s[52:55], s{so} offen sc1")
        a.e("s_waitcnt vmcnt(0)")
    a.e(f"s_mov_b32 s{st}, {SPIN}")
    if first:
        ld()
        if lanes < 64: a.e("s_mov_b64 exec, -1")
        first()
        if lanes < 64: a.e(f"s_bfm_b64 exec, {lanes}, 0")
        a.e(f"s_branch {L}C")
    else:
        a.e(f"s_branch {L}F")
    a.label(L)
    if SLP: a.e(f"s_sleep {SLP}")
    a.label(L + "F"); ld()
    a.label(L + "C")
    d0 = loads[0][0]
    a.e(f"v_xor_b32 v{d0}, v{d0}, v{vn}")
    for d, o, so in loads[1:]:
        a.e(f"v_xor_b32 v{d}, v{d}, v{vn}\nv_or_b32 v{d0}, v{d0}, v{d}")
    a.e(f"v_cmp_ne_u32 vcc, 0, v{d0}\ns_sub_u32 s{st}, s{st}, 1\ns_cmp_eq_u64 vcc, 0\ns_cbranch_scc1 {L}E\ns_cmp_lg_u32 s{st}, 0\ns_cbranch_scc1 {L}")
    a.label(L + "E")
    if lanes < 64: a.e("s_mov_b64 exec, -1")


RD = 12
def ring_off(k):
    i = k % RD
    return i * 2048 if i < 6 else 3 * SLOT + (i - 6) * 2048
def wd_load(k):
    o = ring_off(k)
    return [f"s_add_u32 m0, s74, {o}", f"s_add_u32 s72, s73, {16*896}", "buffer_load_dwordx4 v12, s[40:43], s73 offen lds",
            f"s_add_u32 m0, s74, {o + 1024}", f"s_cmp_eq_u32 s72, {28*16*896}", "buffer_load_dwordx4 v13, s[40:43], s73 offen lds",
            "s_cselect_b32 s73, 0, s72"]
def ring_setup(skip=6):
    t = Asm(); srd(t, 40, 24, 1792*448*2); tile_np(t, 70, 4)
    t.e(f"""s_and_b32 s5, s60, 3
    s_mul_i32 s5, s5, 7
    s_lshl_b32 s6, s70, 2
    s_add_u32 s5, s5, s6
    s_cmp_ge_u32 s5, 28
    s_cselect_b32 s6, 28, 0
    s_sub_u32 s63, s5, s6
    s_add_u32 s5, s63, {skip}
    s_cmp_ge_u32 s5, 28
    s_cselect_b32 s6, 28, 0
    s_sub_u32 s5, s5, s6
    s_mul_i32 s73, s5, {16*896}
    s_mul_i32 s74, s62, 12288
    s_add_u32 s74, s74, {SLOT}
    s_lshl_b32 s5, s70, 7
    s_mul_i32 s6, s62, {448*896}
    s_add_u32 s5, s5, s6
    v_lshrrev_b32 v7, 7, v0
    v_mul_u32_u24 v7, 896, v7
    v_and_b32 v13, 0x70, v0
    v_add_u32 v7, v7, v13
    v_add_u32 v12, s5, v7
    v_add_u32 v13, {8*896}, v12""")
    return [l.strip() for l in t.lines]

class Win:
    def __init__(self, regs): self.regs = regs; self.cur = 0
    def off(self, addr, span=16384):
        fix = []
        if not (0 <= addr - self.cur and addr - self.cur + span <= 65536):
            new = min((addr // 16384) * 16384, 6 * 16384)
            d = new - self.cur
            for r in self.regs:
                fix.append(f"v_add_u32 v{r}, {d & 0xffffffff}, v{r}")
            self.cur = new
        return fix, addr - self.cur

def a_addr_setup(a, dst, lane, t1, t2):
    a.e(f"""v_bfe_u32 v{t1}, v{lane}, 4, 1
    v_lshlrev_b32 v{dst}, 13, v{t1}
    v_bfe_u32 v{t2}, v{lane}, 2, 2
    v_lshl_add_u32 v{dst}, v{t2}, 7, v{dst}
    v_and_b32 v{t2}, 2, v{t2}
    v_xor_b32 v{t1}, v{t1}, v{t2}
    v_lshl_add_u32 v{dst}, v{t1}, 5, v{dst}
    v_lshrrev_b32 v{t1}, 5, v{lane}
    v_lshl_add_u32 v{dst}, v{t1}, 10, v{dst}
    v_and_b32 v{t1}, 3, v{lane}
    v_lshl_add_u32 v{dst}, v{t1}, 3, v{dst}""")

X0 = 16
ACC = [128, 144, 160, 176, 192, 208, 128, 144]
FR = 224

def ffn_epi(A, sbase, imm):
    o = []
    for r in range(8): o.append(f"v_mul_f32 v{A+r}, s75, v{A+r}")
    for r in range(8): o.append(f"v_exp_f32 v{A+r}, v{A+r}")
    for r in range(8): o.append(f"v_add_f32 v{A+r}, 1.0, v{A+r}")
    for r in range(8): o.append(f"v_rcp_f32 v{A+r}, v{A+r}")
    for r in range(8): o.append(f"v_mul_f32 v{A+r}, v{A+r}, v{A+8+r}")
    for i in range(4): o.append(f"v_cvt_pk_bf16_f32 v{A+8+i}, v{A+2*i}, v{A+2*i+1}")
    o.append(f"buffer_store_dwordx4 v[{A+8}:{A+11}], v0, s[52:55], s{sbase} offen offset:{imm}{SC}")
    return o

def q_epi(A, cbA, cbB):
    o = []
    for i in range(8): o.append(f"v_cvt_pk_bf16_f32 v{A+i}, v{A+2*i}, v{A+2*i+1}")
    for g, cb in ((0, cbA), (1, cbB)):
        o.append(f"buffer_store_dwordx4 v[{A+4*g}:{A+4*g+3}], v0, s[52:55], s{67 + cb//4} offen offset:{(cb%4)*1024}{SC}")
    return o

def k_epi(A):
    o = []
    for r in range(16): o.append(f"v_mul_f32 v{A+r}, s76, v{A+r}")
    for i in range(8): o.append(f"v_cvt_pk_bf16_f32 v{A+i}, v{A+2*i}, v{A+2*i+1}")
    o += [f"v_cndmask_b32 v{A+6}, v{A+6}, v5, vcc", f"v_cndmask_b32 v{A+7}, v{A+7}, v6, vcc",
          f"buffer_store_dwordx4 v[{A}:{A+3}], v0, s[52:55], s71 offen{SC}",
          f"buffer_store_dwordx4 v[{A+4}:{A+7}], v0, s[52:55], s71 offen offset:1024{SC}"]
    return o

def v_pre():
    return ["v_cmp_lt_u32 vcc, 511, v0", "v_mov_b32 v5, 0x3f803f80", "v_mov_b32 v6, 0x3f80",
          "s_lshl_b32 s5, s62, 11", f"s_add_u32 s5, s5, {VT}",
          "v_bfe_u32 v8, v0, 4, 5", "v_lshlrev_b32 v8, 6, v8", "v_lshrrev_b32 v9, 9, v0",
          "v_lshl_add_u32 v8, v9, 3, v8", "v_add_u32 v8, s5, v8",
          "v_bfe_u32 v10, v0, 6, 2", "v_lshl_add_u32 v10, v9, 2, v10", "v_lshlrev_b32 v10, 6, v10",
          "v_bfe_u32 v11, v0, 8, 1", "v_lshl_add_u32 v10, v11, 5, v10", "v_bfe_u32 v11, v0, 4, 2",
          "v_lshl_add_u32 v10, v11, 3, v10", "v_add_u32 v10, s5, v10"]

def v_epi(A):
    o = []
    for i in range(8): o.append(f"v_cvt_pk_bf16_f32 v{A+i}, v{A+2*i}, v{A+2*i+1}")
    o += [f"v_cndmask_b32 v{A+6}, v{A+6}, v6, vcc", f"v_cndmask_b32 v{A+7}, v{A+7}, 0, vcc"]
    for g in range(4): o.append(f"ds_write_b64 v8, v[{A+2*g}:{A+2*g+1}] offset:{16*g}")
    for i in range(4): o.append(f"ds_read_b64_tr_b16 v[{A+8+2*i}:{A+9+2*i}], v10 offset:{i*512}")
    o += ["WAIT", f"buffer_store_dwordx4 v[{A+8}:{A+11}], v0, s[52:55], s71 offen offset:2048{SC}",
          "WAIT", f"buffer_store_dwordx4 v[{A+12}:{A+15}], v0, s[52:55], s71 offen offset:3072{SC}"]
    return o

def mf(acc, fa, fb, first):
    return f"v_mfma_f32_32x32x16_bf16 v[{acc}:{acc+15}], v[{fa}:{fa+3}], v[{fb}:{fb+3}], " + ("0" if first else f"v[{acc}:{acc+15}]")

class Counted:
    def __init__(self, a): self.a = a; self.pend = []
    def emit(self, seq):
        a = self.a
        for i, t in enumerate(seq):
            if t.startswith("WAIT"):
                rs = set(Ins(seq[i + 1]).r)
                if len(t) > 4: rs |= regs_of(t[5:])
                k = -1
                for idx, w in enumerate(self.pend):
                    if w & rs: k = idx
                if k >= 0:
                    left = min(len(self.pend) - 1 - k, 15)
                    a.e(f"s_waitcnt lgkmcnt({left})")
                    self.pend = self.pend[len(self.pend) - left:] if left else []
                continue
            if t == "DRAIN":
                a.e("s_waitcnt lgkmcnt(0)"); self.pend = []; continue
            if t.startswith("STAMP"):
                if a.stamp(int(t[5:])): self.pend = []
                continue
            if t.endswith(":"):
                a.e(t); continue
            ins = Ins(t)
            if ins.ds: self.pend.append(set(ins.w))
            a.e(t)

def k1_entry(a, endlab):
    a.e(f"""s_cmp_ge_u32 s2, 256
    s_cbranch_scc1 {endlab}
    s_load_dwordx16 s[8:23], s[0:1], 0
    s_load_dwordx8 s[24:31], s[0:1], 64""")
    if PF:
        a.e(f"""s_cmp_lt_u32 s2, 192
        s_cbranch_scc1 F_NOPF
        s_getpc_b64 s[6:7]
        F_PC:
        v_lshlrev_b32 v1, 7, v0
        v_min_u32 v1, F_CODE_END-F_PC-4, v1
        global_load_dword v255, v1, s[6:7]
        F_NOPF:""")
    a.e(f"""
    v_lshrrev_b32 v1, 6, v0
    v_and_b32 v0, 63, v0
    s_and_b32 s3, s2, 7
    s_lshr_b32 s4, s2, 3
    v_readfirstlane_b32 s62, v1
    s_and_b32 s60, s3, 3
    s_lshl_b32 s60, s60, 2
    s_and_b32 s5, s4, 3
    s_add_u32 s60, s60, s5             ; mt
    s_lshr_b32 s61, s3, 2
    s_lshl_b32 s61, s61, 3
    s_lshr_b32 s6, s4, 2
    s_add_u32 s61, s61, s6             ; j
    s_lshl_b32 s5, s5, 1
    s_add_u32 s63, s5, s6
    s_cmp_ge_u32 s63, 7
    s_cselect_b32 s6, 7, 0
    s_sub_u32 s63, s63, s6
    v_lshrrev_b32 v2, 3, v0
    v_and_b32 v3, 7, v0                ; p
    s_waitcnt lgkmcnt(0)""")
    srd(a, 52, 30, WS_SIZE)
    srd(a, 80, 28, 256)

def k1_compute(a, tail_hook=None, mid_hook=None):
    srd(a, 32, 8, 1835008)
    a.e("s_setprio 3")
    a.e(f"""v_lshrrev_b32 v4, 4, v0
    v_xor_b32 v4, v4, v3
    v_mul_u32_u24 v5, 896, v2
    v_lshl_add_u32 v12, v4, 4, v5
    v_xor_b32 v4, 4, v4
    v_lshl_add_u32 v13, v4, 4, v5
    s_lshl_b32 s64, s60, 2
    s_add_u32 s64, s64, s62            ; tt
    s_mul_i32 s72, s64, {32*896}
    s_lshl_b32 s73, s63, 7
    s_mul_i32 s74, s62, 28672""")
    def issue_x(c):
        a.e(f"s_add_u32 s6, s72, s73")
        for n in range(4):
            a.e(f"""s_add_u32 m0, s74, {c*4096 + n*1024}
            s_add_u32 s5, s6, {n*8*896}
            buffer_load_dwordx4 v{12 + (n&1)}, s[32:35], s5 offen lds""")
        a.e("s_add_u32 s73, s73, 128\ns_cmp_eq_u32 s73, 896\ns_cselect_b32 s73, 0, s73")
    for c in range(4): issue_x(c)
    a_addr_setup(a, 1, 0, 5, 6)
    a.e(f"""v_xor_b32 v2, 32, v1
    v_xor_b32 v3, 64, v1
    v_xor_b32 v4, 0x60, v1
    v_mov_b32 v200, v1
    s_cmp_lg_u32 s61, 3
    s_cbranch_scc1 K1_NJ3
    v_and_b32 v1, 0x1fff, v1
    v_xor_b32 v2, 64, v1
    v_add_u32 v3, 0x2000, v1
    v_add_u32 v4, 0x2000, v2
    K1_NJ3:
    v_and_b32 v5, 31, v0
    v_bfe_u32 v6, v5, 1, 3
    v_lshrrev_b32 v7, 5, v0
    v_xor_b32 v6, v6, v7
    v_lshlrev_b32 v8, 7, v5
    v_lshl_add_u32 v8, v6, 4, v8
    v_add_u32 v8, s74, v8
    v_xor_b32 v9, 32, v8
    v_xor_b32 v10, 64, v8
    v_xor_b32 v11, 0x60, v8
    v_mov_b32 v5, 0
    v_mov_b32 v6, 0
    v_mov_b32 v7, 0
    v_mov_b32 v14, 0
    v_lshlrev_b32 v15, 3, v0
    v_lshlrev_b32 v0, 4, v0
    s_mov_b32 s77, 0x3f803f80
    s_mov_b32 s78, 0xffff0000
    s_mov_b32 s75, {f32(-LOG2E)}
    s_mov_b32 s76, {f32(LOG2E * 28 ** -0.5)}
    s_mul_i32 s65, s64, {144*1024}
    s_add_u32 s65, s65, {WS_ACT}
    s_add_u32 s5, s61, 24
    s_lshl_b32 s6, s61, 1
    s_sub_u32 s6, s6, 7
    s_cmp_lt_u32 s61, 4
    s_cselect_b32 s5, s5, s6
    s_lshl_b32 s5, s5, 12
    s_add_u32 s66, s65, s5
    s_sub_u32 s65, s66, 4096           ; act base sg0 (ffn only)
    s_mul_i32 s67, s64, {112*256}
    s_lshl_b32 s5, s61, 13             ; j*32 cgs*256
    s_add_u32 s67, s67, s5
    s_add_u32 s68, s67, 4096
    s_lshl_b32 s71, s64, 12
    s_add_u32 s71, s71, {WS_KV}""")
    for c in range(7):
        left = min(3, 6 - c)
        a.e(f"s_waitcnt vmcnt({4*left})")
        for s in range(4):
            n = 4 * c + s
            a.e(f"ds_read_b128 v[{X0+4*n}:{X0+4*n+3}], v{8+s} offset:{c*4096}")
        if c + 4 < 7: issue_x(c + 4)
        for s in range(4):
            a.e(f"s_waitcnt lgkmcnt({3-s})")
            for t in range(4):
                r = X0 + 16 * c + 4 * s + t
                a.e(f"v_dot2_f32_bf16 v{5 if t&1 else 7}, v{r}, s77, v{5 if t&1 else 7}")
                a.e(f"v_dot2_f32_bf16 v{6 if t&1 else 14}, v{r}, v{r}, v{6 if t&1 else 14}")
    a.stamp(2)
    a.e("s_barrier")
    a.stamp(3)
    wa = Win([1, 2, 3, 4])
    def reads_sg0(n):
        c, s = divmod(n, 4)
        fa, oa = wa.off(WSLOT[c] * SLOT)
        g = []
        for t in range(4):
            b = FR + 16 * (n & 1) + 4 * t
            rd = [f"ds_read_b64_tr_b16 v[{b+2*u}:{b+2*u+1}], v{1+t} offset:{oa + s*2048 + u*512}" for u in range(2)]
            g.append((fa if t == 0 else []) + rd)
        return g
    def norm(n, t):
        r = X0 + 4 * n + t; T = 192 + 2 * t
        return [f"v_lshlrev_b32 v{T}, 16, v{r}", f"v_and_b32 v{T+1}, s78, v{r}",
                f"v_fma_f32 v{T}, v{T}, v12, v13", f"v_fma_f32 v{T+1}, v{T+1}, v12, v13",
                f"v_cvt_pk_bf16_f32 v{r}, v{T}, v{T+1}"]
    def reads_pair(n, e, t):
        c, s = divmod(n, 4)
        fa, oa = wa.off(VSLOT[c] * SLOT)
        b = FR + 8 * (n & 3) + 4 * e
        return fa + [f"ds_read_b64_tr_b16 v[{b+2*u}:{b+2*u+1}], v{1+t} offset:{oa + s*2048 + u*512}" for u in range(2)]
    C = Counted(a)
    seq = []
    for g in reads_sg0(0): seq += g
    seq += [x.strip() for x in f"""v_add_f32 v5, v5, v7
    v_add_f32 v6, v6, v14
    v_mov_b32 v8, v5
    v_mov_b32 v9, v6
    v_permlane32_swap_b32 v5, v8
    v_permlane32_swap_b32 v6, v9
    v_add_f32 v5, v5, v8
    v_add_f32 v6, v6, v9
    v_mul_f32 v5, {f32(1/448)}, v5
    v_mul_f32 v6, {f32(1/448)}, v6
    v_fma_f32 v6, -v5, v5, v6
    v_max_f32 v6, 0, v6
    v_cvt_pk_bf16_f32 v5, v5, v5
    v_cvt_pk_bf16_f32 v6, v6, v6
    v_lshlrev_b32 v5, 16, v5
    v_lshlrev_b32 v6, 16, v6
    v_add_f32 v6, {f32(1e-5)}, v6
    v_cvt_pk_bf16_f32 v6, v6, v6
    v_lshlrev_b32 v6, 16, v6
    v_sqrt_f32 v6, v6
    v_cvt_pk_bf16_f32 v6, v6, v6
    v_lshlrev_b32 v6, 16, v6
    v_rcp_f32 v12, v6
    v_mul_f32 v13, -v5, v12""".split("\n")]
    nrm = [norm(0, t) for t in range(4)]
    for i in range(5):
        for t in range(4): seq.append(nrm[t][i])
    for n in range(28):
        c = n // 4
        bar = (n % 4 == 3) and (c % 2 == 0)
        nxt = reads_sg0(n + 1) if (n < 27 and not bar) else None
        nl = v_pre() if n == 27 else []
        if n < 27:
            nn = [norm(n + 1, t) for t in range(4)]
            for p in (0, 2):
                for i in range(5): nl += [nn[p][i], nn[p + 1][i]]
        for t in range(4):
            fa = FR + 16 * (n & 1) + 4 * t
            if bar and t == 2: seq.append("DRAIN")
            elif t % 2 == 0: seq.append(f"WAIT v[{fa+4}:{fa+7}]")
            seq.append(mf(ACC[t], fa, X0 + 4 * n, n == 0))
            if not bar:
                if nxt: seq += nxt[t]
            elif t == 2:
                seq.append("s_barrier")
                if n < 27:
                    nxt = reads_sg0(n + 1); seq += nxt[0] + nxt[1]
                else:
                    wa.cur = 4 * SLOT
                    seq += ["STAMP5", f"v_add_u32 v1, {4*SLOT}, v200", "v_xor_b32 v2, 32, v1", "v_xor_b32 v3, 64, v1", "v_xor_b32 v4, 0x60, v1"]
                    seq += reads_pair(0, 0, 0) + reads_pair(0, 1, 1) + reads_pair(1, 0, 0) + reads_pair(1, 1, 1)
            elif t == 3 and n < 27:
                seq += nxt[2] + nxt[3]
            seq += nl[5 * t: 5 * t + 5]
    C.emit(seq)
    def pair_phase(accs, tiles, next_tiles, first):
        groups = []
        for n in range(28):
            for e in range(2):
                fa = FR + 8 * (n & 3) + 4 * e
                g = [f"WAIT v[{fa+4}:{fa+7}]"] if e == 0 else []
                g.append(mf(accs[e], fa, X0 + 4 * n, n == 0))
                if first and n == 0: g += reads_pair(2, e, tiles[e])
                if n + 3 < 28: g += reads_pair(n + 3, e, tiles[e])
                elif next_tiles is not None: g += reads_pair(n + 3 - 28, e, next_tiles[e])
                groups.append(g)
        return groups
    save = (wa.cur, list(C.pend), None)
    def variant(kind):
        wa.cur = save[0]; C.pend = list(save[1])
        g2 = pair_phase([ACC[4], ACC[5]], [0, 1], [2, 3], True)
        g3 = pair_phase([ACC[6], ACC[7]], [2, 3], None, False)
        if B8:
            b8 = B8 + {"ffn": int(os.environ.get('B8F', 50)), "q": int(os.environ.get('B8Q', 46)), "kv": 0}[kind]
            gg = g2 if b8 < 56 else g3
            gg[b8 % 56] = gg[b8 % 56] + ["s_barrier"]
            rs = ring_setup()
            assert QF_AT < 30
            for i in range(10): g2[30 + i] = g2[30 + i] + rs[len(rs)*i//10: len(rs)*(i+1)//10]
            assert kind == "kv" or b8 >= 80
        if kind == "ffn":
            f2 = sum((ffn_epi(ACC[t], 65, t * 1024) for t in range(3)), [])
            f3 = ffn_epi(ACC[3], 65, 3072)
        elif kind == "q":
            f2 = sum((q_epi(ACC[t], t, 4 + t) for t in range(4)), []); f3 = []
        else:
            ve = v_epi(ACC[3])
            f2 = q_epi(ACC[0], 0, 1) + ve[:-4] + k_epi(ACC[2]) + ve[-4:] + q_epi(ACC[1], 2, 3); f3 = []
        f3 = f3 + ffn_epi(ACC[4], 66, 0) + ffn_epi(ACC[5], 66, 1024)
        def ilv(groups, fill):
            units = []
            i = 0
            while i < len(fill):
                if fill[i].startswith("WAIT"): units.append(fill[i:i+2]); i += 2
                else: units.append([fill[i]]); i += 1
            out = []; k = 0
            for gi, g in enumerate(groups):
                out += g
                tgt = (len(units) * (gi + 1)) // len(groups)
                for u in units[k:tgt]: out += u
                k = tgt
            return out
        seq = [nonce_load(14)] + (g2[0] + g2[1] + g2[2] + ilv(g2[3:56], f2) if kind == "ffn" else ilv(g2[:QD], f2))
        if kind != "ffn":
            pre = ["s_lshl_b32 s5, s60, 11", "s_lshl_b32 s6, s61, 9", "s_add_u32 s5, s5, s6", "s_lshl_b32 s6, s62, 7",
                   "s_add_u32 s5, s5, s6", f"s_add_u32 s79, s5, {FL_Q}"]
            pub = ["STAMP8", "s_waitcnt vmcnt(0)"] + nonce_check(14, 4) + ["s_mov_b64 exec, 1",
                   "buffer_store_dword v14, off, s[52:55], s79 sc1", "s_mov_b64 exec, -1", "STAMP9"] + (["s_barrier"] if kind == "q" else [])
            seq += ["STAMP4"] + ilv(g2[QD:QD+6], pre)
            for gi in range(QD+6, 56):
                if gi == QF_AT: seq += pub
                seq += g2[gi]
            if QF_AT >= 56: seq += pub
        seq += ["STAMP6"]
        lead = 1 if kind == "ffn" else 4
        for g in g3[:lead]: seq += g
        seq += ilv(g3[lead:], f3)
        C.emit(seq)
        a.stamp(7)
        e0 = ffn_epi(ACC[6], 66, 2048); e1 = ffn_epi(ACC[7], 66, 3072)
        a.e("\n".join(e0 + e1))
        a.e("s_branch K1_CDONE")
    hist = list(a.hist)
    a.e("s_cmp_lt_u32 s61, 4\ns_cbranch_scc1 K1_QKV")
    variant("ffn")
    a.label("K1_QKV"); a.hist = list(hist)
    a.e("s_cmp_eq_u32 s61, 3\ns_cbranch_scc1 K1_KV")
    variant("q")
    a.label("K1_KV"); a.hist = list(hist)
    variant("kv")
    a.label("K1_CDONE")

def k1_loader(a):
    srd(a, 44, 12, 25088)
    srd(a, 48, 14, 25088)
    srd(a, 32, 20, 448*1792*2)
    srd(a, 56, 22, 448*1792*2)
    a.e(f"""s_sub_u32 s62, s62, 4
    s_cmp_ge_u32 s61, 4
    s_cselect_b32 s36, s20, s10
    s_cselect_b32 s37, s21, s11
    s_cselect_b32 s40, s22, s10
    s_cselect_b32 s41, s23, s11
    s_mov_b32 s38, {448*448*2}
    s_mov_b32 s64, 896
    s_cselect_b32 s38, {448*1792*2}, s38
    s_cselect_b32 s64, 3584, s64
    s_cselect_b32 s5, 0, 128
    s_mov_b32 s39, 0x20000
    s_mov_b32 s42, s38
    s_mov_b32 s43, 0x20000
    s_sub_u32 s6, s61, 4
    s_cmp_ge_u32 s61, 4
    s_cselect_b32 s6, s6, s61
    s_lshl_b32 s65, s6, 8
    s_add_u32 s7, s65, 128
    s_lshl_b32 s6, s61, 7
    s_add_u32 s6, s6, {24*128}
    s_cmp_ge_u32 s61, 4
    s_cselect_b32 s67, s7, s6
    s_mul_i32 s7, s62, s64
    s_lshl_b32 s7, s7, 4
    s_add_u32 s65, s65, s7
    s_add_u32 s66, s65, s5              ; B sg0
    s_mul_i32 s7, s62, {16*3584}
    s_add_u32 s67, s67, s7              ; sg1
    s_lshl_b32 s69, s64, 3
    s_lshl_b32 s70, s64, 6
    s_lshl_b32 s73, s62, 11
    s_mul_i32 s74, s62, {16*56}         ; kv row base
    s_mov_b32 s71, s63
    s_mov_b32 s72, s63
    v_lshrrev_b32 v4, 1, v3             ; ps
    v_and_b32 v5, 2, v2
    v_xor_b32 v4, v4, v5                ; tA
    v_xor_b32 v5, 1, v4                 ; tB
    v_and_b32 v6, 1, v3
    v_mul_lo_u32 v7, v2, s64
    v_lshl_add_u32 v7, v6, 4, v7
    v_lshl_add_u32 v10, v4, 5, v7
    v_lshl_add_u32 v11, v5, 5, v7
    v_mul_u32_u24 v7, 3584, v2
    v_lshl_add_u32 v7, v6, 4, v7
    v_lshl_add_u32 v8, v4, 5, v7
    v_lshl_add_u32 v9, v5, 5, v7
    v_mul_u32_u24 v7, 56, v2
    v_and_b32 v6, 3, v3
    v_lshl_add_u32 v12, v6, 4, v7       ; kv voff
    v_cmp_gt_u32 s[76:77], 2, v4
    v_cmp_le_u32 s[78:79], 2, v4""")
    def adv(s): a.e(f"s_add_u32 s{s}, s{s}, 1\ns_cmp_eq_u32 s{s}, 7\ns_cselect_b32 s{s}, 0, s{s}")
    lab = [0]
    def issue_w(c):
        base = WSLOT[c] * SLOT; lab[0] += 1; L = lab[0]
        a.e(f"""s_mul_i32 s7, s71, s70
        s_add_u32 s5, s65, s7
        s_add_u32 s6, s66, s7
        s_cmp_eq_u32 s61, 3
        s_cbranch_scc1 K1_VS{L}
        s_add_u32 m0, s73, {base}
        s_add_u32 s7, s5, s69
        buffer_load_dwordx4 v10, s[36:39], s5 offen lds
        s_add_u32 m0, s73, {base + 1024}
        s_add_u32 s3, s6, s69
        buffer_load_dwordx4 v10, s[36:39], s7 offen lds
        s_add_u32 m0, s73, {base + 8192}
        s_nop 0
        buffer_load_dwordx4 v11, s[40:43], s6 offen lds
        s_add_u32 m0, s73, {base + 8192 + 1024}
        s_nop 0
        buffer_load_dwordx4 v11, s[40:43], s3 offen lds
        s_branch K1_VE{L}""")
        a.label(f"K1_VS{L}")
        a.e(f"""s_mul_i32 s7, s71, {64*56}
        s_add_u32 s7, s7, s74
        s_add_u32 m0, s73, {base}
        s_add_u32 s3, s5, s69
        buffer_load_dwordx4 v10, s[36:39], s5 offen lds
        s_add_u32 m0, s73, {base + 1024}
        s_add_u32 s4, s7, {8*56}
        buffer_load_dwordx4 v10, s[36:39], s3 offen lds""")
        for n in range(2):
            a.e(f"""s_add_u32 m0, s73, {base + 8192 + n*1024}
            s_mov_b64 exec, s[76:77]
            buffer_load_dwordx4 v12, s[44:47], s{7 if n == 0 else 4} offen lds
            s_mov_b64 exec, s[78:79]
            buffer_load_dwordx4 v12, s[48:51], s{7 if n == 0 else 4} offen lds""")
        a.e("s_mov_b64 exec, -1")
        a.label(f"K1_VE{L}")
        adv(71)
    def issue_v(c):
        base = VSLOT[c] * SLOT
        a.e(f"""s_mul_i32 s5, s72, {64*3584}
        s_add_u32 s5, s5, s67
        s_add_u32 m0, s73, {base}
        s_add_u32 s7, s5, {8*3584}
        buffer_load_dwordx4 v8, s[32:35], s5 offen lds
        s_add_u32 m0, s73, {base + 1024}
        s_nop 0
        buffer_load_dwordx4 v8, s[32:35], s7 offen lds
        s_add_u32 m0, s73, {base + 8192}
        s_nop 0
        buffer_load_dwordx4 v9, s[56:59], s5 offen lds
        s_add_u32 m0, s73, {base + 8192 + 1024}
        s_nop 0
        buffer_load_dwordx4 v9, s[56:59], s7 offen lds""")
        adv(72)
    def w3(n, n3):
        L = newlab("W3")
        a.e(f"s_cmp_eq_u32 s61, 3\ns_cbranch_scc1 {L}\ns_waitcnt vmcnt({n})\n{L}:\ns_waitcnt vmcnt({n3})")
    issue_w(0)
    a.e(f"""s_lshl_b32 s3, s2, 2
    s_xor_b32 s3, s3, 3
    s_mov_b32 s4, {FL_N}
    s_cmp_lg_u32 s3, s62
    s_cbranch_scc1 F_NN
    buffer_load_dword v20, off, s[52:55], s4 sc1
    s_waitcnt vmcnt(0)
    v_add_u32 v20, 1, v20
    v_or_b32 v20, 0x80000000, v20
    s_mov_b64 exec, 1
    buffer_store_dword v20, off, s[80:83], 0 sc1
    buffer_store_dword v20, off, s[52:55], s4 sc1
    s_mov_b64 exec, -1
    s_branch F_NN2
    F_NN:
    s_waitcnt vmcnt(0)
    F_NN2:""")
    issue_w(1); issue_w(2)
    a.e("s_barrier")
    issue_w(3)
    w3(4, 6)
    a.e("s_barrier")
    issue_w(4); issue_w(5); issue_w(6); issue_v(0)
    w3(12, 16)
    a.e("s_barrier")
    issue_v(1); issue_v(2); issue_v(3); issue_v(4)
    if PFW == 3: wprefetch(a, 20)
    else: a.e("s_waitcnt vmcnt(20)")
    a.e("s_barrier")
    a.e(nonce_load(14))
    issue_v(5); issue_v(6)
    a.e("v_lshlrev_b32 v0, 4, v0")
    a.e("\n".join(ring_setup(0)))
    a.e("v_lshrrev_b32 v0, 4, v0\ns_waitcnt vmcnt(0)\ns_barrier")
    tile_np(a, 4, 5)
    a.e("s_cbranch_scc1 F_NR\ns_cmp_ge_u32 s61, 3\ns_cbranch_scc1 F_NB\ns_barrier\nF_NB:")
    for k in range(6): a.e("\n".join(wd_load(k)))
    a.label("F_NR")
    a.e("\n".join(nonce_check(14, 4)))

PFW = int(os.environ.get("PFW", 0))
def tile_np(a, d, t):
    a.e(f"""s_and_b32 s{t}, s61, 7
    s_cmp_lt_u32 s61, 8
    s_cselect_b32 s{t+1}, 3, 7
    s_cmp_gt_u32 s{t}, s{t+1}
    s_subb_u32 s{d}, s{t}, 0
    s_cmp_eq_u32 s{t}, s{t+1}""")

def wprefetch(a, n):
    tile_np(a, 68, 4)
    a.e("s_cbranch_scc1 F_PW0")
    srd(a, 84, 24, 1792*448*2)
    srd(a, 44, 16, 448*448*2)
    a.e(f"""s_and_b32 s5, s60, 3
    s_lshl_b32 s5, s5, 2
    s_add_u32 s5, s5, s62
    s_lshl_b32 s68, s68, 7
    s_mul_i32 s6, s5, {112*896}
    s_add_u32 s6, s6, s68
    s_mul_i32 s7, s5, {28*896}
    s_add_u32 s7, s7, s68
    v_lshrrev_b32 v21, 1, v0
    v_min_u32 v21, 27, v21
    v_mul_u32_u24 v21, 896, v21
    v_and_b32 v22, 1, v0
    v_lshl_add_u32 v21, v22, 6, v21
    s_bfm_b64 exec, 56, 0""")
    for i in range(4):
        a.e(f"buffer_load_dword v22, v21, s[84:87], s6 offen\ns_add_u32 s6, s6, {28*896}")
    a.e(f"""buffer_load_dword v22, v21, s[44:47], s7 offen
    s_mov_b64 exec, -1
    s_waitcnt vmcnt({n+5})
    s_branch F_PW1
    F_PW0:
    s_waitcnt vmcnt({n})
    F_PW1:""")
```

```python
from asmlib import *
from k1 import WS_Q, WS_KV, WS_ACT, WS_WF, WS_P, WS_SIZE, srd, f32, SLOT, FL_Q, poll, nonce_check, SPIN, SLP, B8

Q0, O0, S0, P0, KV0, KS = 16, 48, 112, 144, 160, 224
MOFF = 40.0
PRIO = int(os.environ.get("PRIO", 2))
FLAG = 0 * SLOT
PART = 0

def mf(d, x, y, c):
    return f"v_mfma_f32_32x32x16_bf16 v[{d}:{d+15}], v[{x}:{x+3}], v[{y}:{y+3}], " + (f"v[{c}:{c+15}]" if c is not None else "0")

def kload(b): return [f"buffer_load_dwordx4 v[{KV0+16*b+4*i}:{KV0+16*b+4*i+3}], v1, s[52:55], s21 offen offset:{1024*i} sc1" for i in range(2)]
def vload(b): return [f"buffer_load_dwordx4 v[{KV0+16*b+4*i}:{KV0+16*b+4*i+3}], v1, s[52:55], s21 offen offset:{1024*i} sc1" for i in (2, 3)]
ADV = ["s_add_u32 s20, s20, 4096", "s_and_b32 s20, s20, 0xffff", "s_add_u32 s21, s20, s22"]

def maxtree(a, src, dst, acc=None):
    r = list(range(src, src + 16))
    if acc is None:
        a.e(f"v_max3_f32 v{dst}, v{r[0]}, v{r[1]}, v{r[2]}"); r = r[3:]
        while len(r) >= 2:
            a.e(f"v_max3_f32 v{dst}, v{dst}, v{r[0]}, v{r[1]}"); r = r[2:]
        a.e(f"v_max_f32 v{dst}, v{dst}, v{r[0]}")
    else:
        while r:
            a.e(f"v_max3_f32 v{dst}, v{dst}, v{r[0]}, v{r[1]}"); r = r[2:]

def flagread(a, donelab):
    a.e(f"""v_mov_b32 v3, {FLAG}
    ds_read_b128 v[4:7], v3
    s_waitcnt lgkmcnt(0)
    v_or3_b32 v4, v4, v5, v6
    v_or_b32 v4, v4, v7
    v_readfirstlane_b32 s6, v4
    s_cmp_eq_u32 s6, 0
    s_cbranch_scc1 {donelab}""")

def attention(a, wave_sgpr=62):
    a.e(f"""v_lshlrev_b32 v1, 4, v0
    v_cmp_lt_u32 s[30:31], 31, v0
    s_mul_i32 s5, s61, 7
    v_lshrrev_b32 v2, 5, v0
    v_add_u32 v2, s5, v2
    v_and_b32 v3, 31, v0
    v_lshlrev_b32 v3, 4, v3
    s_mov_b32 s24, 0
    s_mov_b32 s19, 0x20000000
    s_lshl_b32 s22, s62, 16
    s_add_u32 s22, s22, {WS_KV}
    s_lshr_b32 s23, s2, 3
    s_and_b32 s23, s23, 15
    s_lshl_b32 s23, s23, 12              ; rotation
    s_lshl_b32 s7, s60, 2
    s_and_b32 s5, s61, 3
    s_add_u32 s7, s7, s5
    s_lshl_b32 s7, s7, 12
    s_add_u32 s7, s7, {WS_KV}""")
    for f in range(2):
        a.e(f"""v_add_u32 v4, {2*f}, v2
        v_lshrrev_b32 v5, 2, v4
        v_lshl_add_u32 v{8+f}, v5, 10, v3
        v_and_b32 v5, 1, v4
        v_lshl_add_u32 v{8+f}, v5, 9, v{8+f}
        v_and_b32 v5, 2, v4
        v_lshl_add_u32 v{8+f}, v5, 2, v{8+f}""")
    if PRIO: a.e("s_setprio 3")
    a.e(f"""s_mov_b32 s27, 0                     ; o published
    s_mul_i32 s5, s61, 28
    v_bfe_u32 v4, v0, 2, 2
    v_mul_u32_u24 v4, 27, v4
    v_add_u32 v4, s5, v4
    v_lshrrev_b32 v4, 7, v4
    v_bfe_u32 v5, v0, 3, 1
    v_mul_u32_u24 v5, 3, v5
    v_or_b32 v4, v4, v5
    v_and_b32 v4, 3, v4
    v_and_b32 v5, 3, v0
    v_lshlrev_b32 v5, 7, v5
    v_lshl_add_u32 v4, v4, 9, v5
    v_bfe_u32 v12, v0, 2, 2
    v_lshl_add_u32 v12, v12, 11, v5
    s_lshl_b32 s29, s60, 11
    s_add_u32 s29, s29, {FL_Q}
    s_lshl_b32 s28, s62, 13
    s_add_u32 s28, s28, {FL_Q + 12*128}
    s_sub_u32 s5, s29, s28
    v_add_u32 v4, s5, v4
    v_cmp_lt_u32 vcc, 15, v0
    v_add_u32 v12, s28, v12
    v_add_u32 v4, s28, v4
    s_mov_b32 s28, 0
    v_cndmask_b32 v12, v12, v4, vcc""")
    if B8:
        a.e("s_waitcnt vmcnt(0)\ns_barrier")
    a.e(f"""s_mov_b32 s4, {SPIN}
    s_bfm_b64 exec, 28, 0
    s_branch K2_P1F
    K2_P1:
    s_sleep {SLP}
    K2_P1F:
    buffer_load_dword v6, v12, s[52:55], s28 offen sc1
    s_waitcnt vmcnt(0)""")
    a.e(f"""v_cmp_ne_u32 vcc, v6, v14
    s_sub_u32 s4, s4, 1
    s_mov_b32 s20, vcc_lo
    s_cmp_lt_u32 s20, 0x10000
    s_cbranch_scc1 K2_P1E
    s_cmp_lg_u32 s4, 0
    s_cbranch_scc1 K2_P1
    K2_P1E:""")
    a.stamp(2)
    if STAMP: a.e(f"s_sub_u32 s96, {SPIN}, s4\ns_add_u32 s96, s96, s88")
    a.e("s_cmp_eq_u32 s20, 0\ns_cbranch_scc1 K2_NK\ns_bfm_b64 exec, 16, 0\nbuffer_load_dword v6, v12, s[52:55], s28 offen sc1\nK2_NK:\ns_mov_b64 exec, -1")
    for i in range(4):
        a.e(f"""s_add_u32 s6, s62, {i}
        s_and_b32 s6, s6, 3
        s_lshl_b32 s26, s60, 2
        s_add_u32 s6, s6, s26
        s_mul_i32 s6, s6, {112*256}""")
        for f in range(4):
            a.e(f"buffer_load_dwordx2 v[{Q0+8*i+2*f}:{Q0+8*i+2*f+1}], v{8+(f&1)}, s[52:55], s6 offen offset:{(f>>1)*1024} sc1")
    a.e(f"""buffer_load_dwordx4 v[{KS}:{KS+3}], v1, s[52:55], s7 offen sc1
    buffer_load_dwordx4 v[{KS+4}:{KS+7}], v1, s[52:55], s7 offen offset:1024 sc1""")
    a.e("s_cmp_eq_u32 s20, 0\ns_cbranch_scc1 K2_GO")
    a.e("s_waitcnt vmcnt(18)\nv_cmp_ne_u32 vcc, v6, v14\ns_nop 0\ns_and_b32 s20, vcc_lo, 0xffff\ns_cbranch_scc0 K2_GO")
    poll(a, [(6, 12, 28)], 14, 4, lanes=16)
    a.label("K2_GO")
    a.stamp(3)
    def kv_prologue():
        a.e("s_mov_b32 s20, s23\ns_add_u32 s21, s20, s22")
        for b in range(4):
            if b: a.e("\n".join(ADV))
            a.e("\n".join(kload(b)))
            if b < 3: a.e("\n".join(vload(b)))
    kv_prologue()
    a.e("s_waitcnt vmcnt(14)")
    for i in range(4):
        for r in (6, 7): a.e(f"v_cndmask_b32 v{Q0+8*i+r}, v{Q0+8*i+r}, 0, s[30:31]")
    for i in range(4):
        a.e(mf(O0 + 16 * i, KS, Q0 + 8 * i, None))
        a.e(mf(O0 + 16 * i, KS + 4, Q0 + 8 * i + 4, O0 + 16 * i))
    for i in range(4): maxtree(a, O0 + 16 * i, 4 + i)
    for i in range(4): a.e(f"v_mov_b32 v{8+i}, v{4+i}")
    for i in range(4): a.e(f"v_permlane32_swap_b32 v{4+i}, v{8+i}")
    for i in range(4): a.e(f"v_max_f32 v{4+i}, v{4+i}, v{8+i}")
    for i in range(4): a.e(f"v_add_f32 v{4+i}, {f32(MOFF)}, v{4+i}")
    a.fence()
    a.label("K2_SETM")
    for i in range(4):
        m = 4 + i
        a.e(f"""v_cvt_pk_bf16_f32 v8, -v{m}, -v{m}
        v_lshlrev_b32 v8, 16, v8
        v_sub_f32 v9, -v{m}, v8
        v_cvt_pk_bf16_f32 v10, v9, v9
        v_lshlrev_b32 v10, 16, v10
        v_sub_f32 v10, v9, v10
        v_cvt_pk_bf16_f32 v8, -v{m}, v9
        v_cvt_pk_bf16_f32 v10, v10, 0
        v_cndmask_b32 v{Q0+8*i+6}, v{Q0+8*i+6}, v8, s[30:31]
        v_cndmask_b32 v{Q0+8*i+7}, v{Q0+8*i+7}, v10, s[30:31]""")
    for r in range(64): a.e(f"v_mov_b32 v{O0+r}, 0")
    for r in range(8): a.e(f"v_mov_b32 v{P0+8+r}, 0")
    for r in range(8): a.e(f"v_mov_b32 v{KV0+48+8+r}, 0")
    a.e("s_waitcnt vmcnt(12)")
    a.e(mf(S0, KV0, Q0, None)); a.e(mf(S0, KV0 + 4, Q0 + 4, S0))
    a.e(f"s_mov_b32 s25, {os.environ.get('ITER', 4)}")
    if PRIO == 1: a.e("s_setprio 0")
    a.stamp(4)
    a.fence()
    a.raw(".p2align 6")
    def body():
        for u in range(16):
            n = (u + 1) % 16; p = (u - 1) % 16
            Sn = S0 + 16 * ((u + 1) & 1); Sc = S0 + 16 * (u & 1)
            Pc = P0 + 8 * (u & 1); Pp = P0 + 8 * ((u - 1) & 1)
            kb = KV0 + 16 * (n // 4); vb = KV0 + 16 * (p // 4) + 8
            qn = Q0 + 8 * (n % 4); op = O0 + 16 * (p % 4)
            ms = [mf(Sn, kb, qn, None), mf(Sn, kb + 4, qn + 4, Sn), mf(op, vb, Pp, op), mf(op, vb + 4, Pp + 4, op)]
            pre = [[], [], [], []]; post = [[], [], [], []]
            if n % 4 == 0: pre[0].append("s_waitcnt vmcnt(12)")
            if p % 4 == 0: pre[2].append("s_waitcnt vmcnt(12)")
            pr = (lambda l: ["s_setprio 3"] + l + ["s_setprio 0"]) if PRIO == 1 else (lambda l: l)
            if u % 4 == 2: post[0] += ADV; post[1] += pr(kload(u // 4))
            if u % 4 == 0: post[3] += pr(vload(((u // 4) - 1) % 4))
            for g in range(4):
                a.e("\n".join(pre[g] + [ms[g]] + post[g]))
                for r in range(4): a.e(f"v_exp_f32 v{Sc+4*g+r}, v{Sc+4*g+r}")
                if g >= 1:
                    for h in range(2): a.e(f"v_cvt_pk_bf16_f32 v{Pc+2*(g-1)+h}, v{Sc+4*(g-1)+2*h}, v{Sc+4*(g-1)+2*h+1}")
                if g == 3:
                    if u == 15: a.e("s_sub_u32 s25, s25, 1\ns_cmp_lg_u32 s25, 0")
                    for h in range(2): a.e(f"v_cvt_pk_bf16_f32 v{Pc+6+h}, v{Sc+12+2*h}, v{Sc+12+2*h+1}")
    a.label("K2_LOOP")
    n0 = a.nops
    body()
    assert a.nops == n0, "unexpected nops in attention loop"
    a.e("s_cbranch_scc1 K2_LOOP")
    t = Asm(); t.hist = list(a.hist); sv = a;
    a2 = Asm(); a2.hist = list(a.hist)
    a.stamp(5)
    if PRIO: a.e("s_setprio 3")
    vb = KV0 + 48 + 8
    a.e(mf(O0 + 48, vb, P0 + 8, O0 + 48)); a.e(mf(O0 + 48, vb + 4, P0 + 12, O0 + 48))
    a.e(f"v_add_u32 v2, {7*SLOT}, v1\ns_barrier")
    for i in (1, 2, 3):
        a.e(f"""s_add_u32 s6, s62, {i}
        s_and_b32 s6, s6, 3
        s_mul_i32 s6, s6, {3*4096}
        v_add_u32 v3, s6, v2""")
        for g in range(4):
            a.e(f"ds_write_b128 v3, v[{O0+16*i+4*g}:{O0+16*i+4*g+3}] offset:{PART + (i-1)*4096 + g*1024}")
    a.e(f"""s_mul_i32 s6, s62, {3*4096}
    v_add_u32 v3, s6, v2
    s_waitcnt lgkmcnt(0)
    s_barrier""")
    a.stamp(6)
    for i in range(3):
        for g in range(4):
            a.e(f"ds_read_b128 v[{O0+16+16*i+4*g}:{O0+16+16*i+4*g+3}], v3 offset:{PART + i*4096 + g*1024}")
    a.e(f"""s_lshl_b32 s6, s60, 2
    s_add_u32 s6, s6, s62
    s_mul_i32 s6, s6, 144
    s_lshl_b32 s7, s61, 1
    s_add_u32 s6, s6, s7
    s_lshl_b32 s6, s6, 10
    s_add_u32 s6, s6, {WS_ACT + 112*1024}""")
    for i in range(3):
        a.e(f"s_waitcnt lgkmcnt({8 - 4*i})")
        for r in range(16): a.e(f"v_add_f32 v{O0+r}, v{O0+r}, v{O0+16+16*i+r}")
    a.e(f"""v_mov_b32 v4, v{O0+12}
    v_mov_b32 v5, v{O0+12}
    v_mul_f32 v6, 0, v{O0}
    v_permlane32_swap_b32 v4, v5
    v_rcp_f32 v5, v5""")
    for r in range(1, 16): a.e(f"v_fmac_f32 v6, 0, v{O0+r}")
    a.e(f"""v_cndmask_b32 v{O0+12}, v{O0+12}, v{O0+7}, s[30:31]
    v_and_b32 v7, 0x1fff, v14
    v_permlane32_swap_b32 v{O0+14}, v{O0+15}
    v_permlane32_swap_b32 v{O0+13}, v{O0+7}
    v_lshl_or_b32 v7, v7, 16, s19""")
    for r in range(16):
        if r % 8 != 7: a.e(f"v_mul_f32 v{O0+r}, v5, v{O0+r}")
    for i in range(8): a.e(f"v_cvt_pk_bf16_f32 v{O0+i}, v{O0+2*i}, v{O0+2*i+1 if i % 4 != 3 else 7}")
    a.e(f"""v_cmp_u_f32 vcc, v6, v6
    s_cmp_lg_u64 vcc, 0
    s_cselect_b32 s5, 1, 0
    s_andn2_b32 s5, s5, s24
    s_lshl_b32 s4, s62, 2
    s_add_u32 s4, s4, {FLAG}
    v_mov_b32 v3, s4
    v_mov_b32 v4, s5
    ds_write_b32 v3, v4
    s_or_b32 s4, s5, s27
    s_cmp_lg_u32 s4, 0
    s_cbranch_scc1 K2_OK
    buffer_store_dwordx4 v[{O0}:{O0+3}], v1, s[52:55], s6 offen sc1
    buffer_store_dwordx4 v[{O0+4}:{O0+7}], v1, s[52:55], s6 offen offset:1024 sc1
    s_mov_b32 s27, 1""")
    if int(os.environ.get('TV', 0)): a.e("s_waitcnt vmcnt(0)")
    a.label("K2_OK")
    a.stamp(7)
    a.e(f"""s_waitcnt lgkmcnt(0)
    s_barrier""")
    flagread(a, "K2_END")
    a.e("s_mov_b32 s24, 1\ns_mov_b32 s25, 16\ns_mov_b32 s21, s22\ns_waitcnt vmcnt(0)")
    for i in range(4):
        for r in (6, 7): a.e(f"v_cndmask_b32 v{Q0+8*i+r}, v{Q0+8*i+r}, 0, s[30:31]")
        a.e(f"v_mov_b32 v{4+i}, 0xff800000")
    a.fence()
    a.label("K2_MAXLOOP")
    a.e("\n".join(kload(0)))
    a.e("s_add_u32 s21, s21, 4096\ns_waitcnt vmcnt(0)")
    for i in range(4):
        a.e(mf(O0 + 16 * i, KV0, Q0 + 8 * i, None))
        a.e(mf(O0 + 16 * i, KV0 + 4, Q0 + 8 * i + 4, O0 + 16 * i))
    for i in range(4): maxtree(a, O0 + 16 * i, 4 + i, acc=True)
    a.e("s_sub_u32 s25, s25, 1\ns_cmp_lg_u32 s25, 0")
    a.fence()
    a.e("s_cbranch_scc1 K2_MAXLOOP")
    for i in range(4): a.e(f"v_mov_b32 v{8+i}, v{4+i}")
    for i in range(4): a.e(f"v_permlane32_swap_b32 v{4+i}, v{8+i}")
    for i in range(4): a.e(f"v_max_f32 v{4+i}, v{4+i}, v{8+i}")
    a.e("v_lshlrev_b32 v12, 2, v0")
    for i in range(4):
        a.e(f"""s_add_u32 s6, s62, {i}
        s_and_b32 s6, s6, 3
        s_lshl_b32 s6, s6, 10
        s_add_u32 s6, s6, {FLAG + 256}
        v_add_u32 v{8+i}, s6, v12
        s_lshl_b32 s7, s62, 8
        v_add_u32 v13, s7, v{8+i}
        ds_write_b32 v13, v{4+i}""")
    a.e("s_waitcnt lgkmcnt(0)\ns_barrier")
    for i in range(4):
        for w in range(4): a.e(f"ds_read_b32 v{O0+4*i+w}, v{8+i} offset:{w*256}")
    a.e("s_waitcnt lgkmcnt(0)")
    for i in range(4):
        a.e(f"v_max3_f32 v{4+i}, v{O0+4*i}, v{O0+4*i+1}, v{O0+4*i+2}\nv_max_f32 v{4+i}, v{4+i}, v{O0+4*i+3}")
    kv_prologue()
    a.fence()
    a.e("s_branch K2_SETM")
```

```python
from asmlib import *
from k1 import WS_Q, WS_KV, WS_ACT, WS_P, WS_SIZE, srd, f32, FL_H, poll, nonce_check, SPIN, SLP, SLOT, tile_np, RD, ring_off, wd_load
from k2 import mf, flagread
D = int(os.environ.get('D3', 3)); NK = 28; TV = int(os.environ.get('TV', 0))
AC = 16; WO = 80; OR_ = 144; WF = 144; HR = 160; XR = [248, 252]; PS = 224
RST = 272
def ffn2(a, endlab):
    srd(a, 44, 16, 448*448*2); srd(a, 36, 26, 1835008)
    tile_np(a, 65, 4)
    a.e(f"""s_cselect_b32 s64, 1, 0
    s_lshl_b32 s69, s60, 13
    s_add_u32 s69, s69, {FL_H}
    s_lshl_b32 s5, s61, 9
    s_add_u32 s7, s69, s5
    s_lshl_b32 s5, s62, 7
    s_add_u32 s7, s7, s5
    s_lshr_b32 s3, s61, 3                ; half
    s_lshl_b32 s71, s63, 10
    s_lshl_b32 s63, s60, 1
    s_add_u32 s63, s63, s3               ; tp
    s_lshl_b32 s3, s3, 8
    s_add_u32 s69, s69, s3
    v_mov_b32 v1, v0
    v_lshrrev_b32 v0, 4, v0
    s_lshl_b32 s5, s62, 6
    v_add_u32 v15, s5, v0                ; tid
    s_mul_i32 s20, s63, {2*144*1024}
    s_add_u32 s20, s20, {WS_ACT}
    s_lshl_b32 s5, s62, 13
    s_add_u32 s66, s20, s5
    s_add_u32 s66, s66, {112*1024}
    s_add_u32 s67, s66, {144*1024}
    s_mul_i32 s5, s62, {NK*1024}
    s_add_u32 s20, s20, s5
    s_add_u32 s21, s20, {144*1024}
    s_lshl_b32 s5, s65, 7
    s_mul_i32 s68, s62, {112*896}
    s_add_u32 s68, s68, s5
    s_mul_i32 s5, s62, 7
    v_lshrrev_b32 v3, 1, v0
    v_min_u32 v3, 6, v3
    v_add_u32 v3, s5, v3                 ; sg
    v_lshrrev_b32 v4, 1, v3
    v_add_u32 v4, 4, v4
    v_subrev_u32 v5, 24, v3
    v_cmp_gt_u32 vcc, 24, v3
    v_cndmask_b32 v3, v5, v4, vcc        ; j
    v_and_b32 v4, 1, v0
    v_lshlrev_b32 v4, 7, v4
    v_lshl_add_u32 v3, v3, 9, v4
    v_lshrrev_b32 v4, 3, v0
    v_and_b32 v5, 7, v0
    v_mul_u32_u24 v7, 896, v4
    v_lshl_add_u32 v7, v5, 4, v7         ; rows 0-7
    v_add_u32 v8, {8*896}, v7            ; rows 8-15
    s_mov_b32 s5, {(13<<0) | (18<<8) | (3<<16) | (4<<24)}
    v_lshlrev_b32 v5, 3, v4
    v_lshrrev_b32 v5, v5, s5
    v_and_b32 v5, 31, v5
    v_cmp_lt_u32 vcc, 3, v4
    v_cndmask_b32 v5, 0, v5, vcc
    v_sub_u32 v5, 24, v5
    v_mul_u32_u24 v5, 896, v5
    v_add_u32 v9, v7, v5
    v_lshrrev_b32 v4, 5, v0
    v_bfe_u32 v10, v0, 2, 2
    v_lshl_add_u32 v10, v4, 2, v10
    v_lshlrev_b32 v10, 7, v10
    v_bfe_u32 v4, v0, 4, 1
    v_lshl_add_u32 v10, v4, 5, v10
    v_and_b32 v4, 3, v0
    v_lshl_add_u32 v10, v4, 3, v10
    v_add_u32 v10, s74, v10
    v_add_u32 v242, s20, v1
    v_add_u32 v243, s21, v1
    s_mov_b32 s20, s71
    s_waitcnt vmcnt(0)""")
    a.e("\n".join(nonce_check(14, 4)))
    a.e(f"""s_mov_b64 exec, 1
    buffer_store_dword v14, off, s[52:55], s7 sc1
    s_mov_b64 exec, -1
    s_setprio 0""")
    a.stamp(4)
    a.e(f"s_cmp_eq_u32 s64, 1\ns_cbranch_scc1 {endlab}")
    def wl(k):
        o = ring_off(k)
        if k < NK: return "\n".join(wd_load(k))
        if k % 2 == 0:
            return f"""s_add_u32 m0, s74, {o}
            s_add_u32 s22, s68, {16*896}
            buffer_load_dwordx4 v7, s[44:47], s68 offen lds
            s_add_u32 m0, s74, {o + 1024}
            s_nop 0
            buffer_load_dwordx4 v8, s[44:47], s68 offen lds"""
        return f"""s_add_u32 m0, s74, {o}
            s_nop 0
            buffer_load_dwordx4 v7, s[44:47], s22 offen lds
            s_add_u32 m0, s74, {o + 1024}
            s_nop 0
            buffer_load_dwordx4 v9, s[44:47], s68 offen lds
            s_add_u32 s68, s68, {28*896}"""
    def wreg(k): return WF + 8 * (k & 1) if k < NK else WO + 8 * (k - NK)
    def wr(k):
        for e in range(2):
            for u in range(2):
                b = wreg(k) + 4 * e + 2 * u
                a.e(f"ds_read_b64_tr_b16 v[{b}:{b+1}], v10 offset:{ring_off(k) + u*1024 + e*64}")
    def hl(k):
        r = HR + 8 * (k % D)
        return f"""buffer_load_dwordx4 v[{r}:{r+3}], v242, s[52:55], s20 offen sc1
        s_add_u32 s5, s20, 1024
        buffer_load_dwordx4 v[{r+4}:{r+7}], v243, s[52:55], s20 offen sc1
        s_cmp_eq_u32 s5, {28*1024}
        s_cselect_b32 s20, 0, s5"""
    for k in range(6, RD): a.e(wl(k))
    a.e(f"""v_lshrrev_b32 v2, 3, v15
    v_and_b32 v245, 7, v15
    v_mul_u32_u24 v244, 896, v2
    v_lshl_add_u32 v244, v245, 4, v244
    s_mul_i32 s23, s63, {64*896}
    s_lshl_b32 s5, s65, 7
    s_add_u32 s23, s23, s5
    s_add_u32 s24, s23, {32*896}
    buffer_load_dwordx4 v[{XR[0]}:{XR[0]+3}], v244, s[32:35], s23 offen
    buffer_load_dwordx4 v[{XR[1]}:{XR[1]+3}], v244, s[32:35], s24 offen""")
    poll(a, [(6, 3, 69)], 14, 4, lanes=14)
    a.stamp(5)
    q = []
    def issue(txt, tag):
        a.e(txt); q.extend([tag, tag])
    def wait(tags):
        last = max([i for i, t in enumerate(q) if t in tags], default=-1)
        if last >= 0:
            a.e(f"s_waitcnt vmcnt({len(q) - 1 - last})"); del q[:last + 1]
    def mms(w, h, first=False):
        for e in range(2):
            for t in range(2):
                acc = AC + 16 * (2 * t + e)
                a.e(mf(acc, w + 4 * e, h + 4 * t, None if first else acc))
    for k in range(D): issue(hl(k), ("h", k))
    wr(0)
    for k in range(NK + 8):
        wait([("h", k), ("w", k + 1)])
        a.e("s_waitcnt lgkmcnt(0)")
        if k < NK: mms(wreg(k), HR + 8 * (k % D), k == 0)
        if k + 1 < NK + 8: wr(k + 1)
        if k + D < NK: issue(hl(k + D), ("h", k + D))
        if k + RD < NK + 8: issue(wl(k + RD), ("w", k + RD))
    for b in range(16): a.e(f"v_and_b32 v{WO+4*b+3}, 0xffff, v{WO+4*b+3}")
    a.stamp(6)
    a.e(f"""v_and_b32 v10, 31, v0
    v_mul_u32_u24 v10, {RST}, v10
    v_lshrrev_b32 v11, 5, v0
    v_lshl_add_u32 v10, v11, 4, v10
    v_add_u32 v10, s74, v10
    v_mul_u32_u24 v11, {RST}, v2
    v_lshl_add_u32 v11, v245, 5, v11
    v_add_u32 v11, {SLOT}, v11
    v_add_u32 v12, {3*SLOT}, v11
    v_and_b32 v8, 0x1fff, v14
    v_or_b32 v8, 0x2000, v8
    v_lshlrev_b32 v8, 16, v8
    s_add_u32 s69, s66, 4096
    s_add_u32 s70, s67, 4096
    v_and_b32 v9, 3, v0
    v_lshlrev_b32 v9, 11, v9
    v_bfe_u32 v4, v0, 2, 1
    v_mul_u32_u24 v4, {144*1024}, v4
    v_add_u32 v9, v9, v4""")
    def pwrite(nb):
        for t in range(2):
            for e in range(2):
                for g in range(4):
                    acc = AC + 16 * (2 * t + e) + 4 * g
                    a.e(f"ds_write_b128 v10, v[{acc}:{acc+3}] offset:{t*3*SLOT + e*128 + g*32}")
        a.e("s_waitcnt lgkmcnt(0)" + "\ns_barrier" * nb)
        for i in range(2):
            for w in range(4):
                for h in range(2):
                    r = AC + 32 * i + 8 * w + 4 * h
                    a.e(f"ds_read_b128 v[{r}:{r+3}], v{11+i} offset:{w * 12288 + h * 16}")
    pwrite(2)
    for i in range(2):
        for r in range(4):
            a.e(f"v_lshlrev_b32 v{PS+8*i+2*r}, 16, v{XR[i]+r}\nv_and_b32 v{PS+8*i+2*r+1}, 0xffff0000, v{XR[i]+r}")
    def psum(i):
        a.e(f"s_waitcnt lgkmcnt({8 - 8*i})")
        for w in range(4):
            for r in range(8): a.e(f"v_add_f32 v{PS+8*i+r}, v{PS+8*i+r}, v{AC+32*i+8*w+r}")
    psum(0); psum(1)
    a.e("s_setprio 3\ns_barrier")
    flagread(a, "K3_NOFB")
    a.e("s_barrier\ns_barrier\ns_barrier\ns_barrier")
    a.label("K3_NOFB")
    a.stamp(7)
    a.e(f"""s_mov_b32 s4, {SPIN}
    s_brev_b32 s5, 0xffff
    s_branch {'K3_OS' if TV else 'K3_OQ'}
    K3_OP:
    s_sleep {SLP}
    K3_OQ:
    s_mov_b64 exec, 0xff
    buffer_load_dword v6, v9, s[52:55], s66 offen offset:2044 sc1
    s_sub_u32 s4, s4, 1
    s_waitcnt vmcnt(0)
    v_xor_b32 v6, v6, v8
    v_and_b32 v6, s5, v6
    v_cmp_ne_u32 vcc, 0, v6
    s_mov_b64 exec, -1
    s_cmp_eq_u32 s4, 0
    s_cbranch_scc1 K3_OE
    s_cmp_lg_u64 vcc, 0
    s_cbranch_scc1 K3_OP
    K3_OS:""")
    for b in range(8):
        r = OR_ + 8 * b
        a.e(f"""buffer_load_dwordx4 v[{r}:{r+3}], v1, s[52:55], s{66 if b < 4 else 69} offen offset:{(b&3)*1024} sc1
        buffer_load_dwordx4 v[{r+4}:{r+7}], v1, s[52:55], s{67 if b < 4 else 70} offen offset:{(b&3)*1024} sc1""")
    for b in range(8):
        r = OR_ + 8 * b
        a.e(f"s_waitcnt vmcnt({2*(7-b)})")
        mms(WO + 8 * b, r, b == 0)
        a.e(f"v_xor_b32 v4, v{r+3}, v8\nv_xor_b32 v5, v{r+7}, v8")
        a.e(f"v_or_b32 v6, v4, v5" if b == 0 else "v_or3_b32 v6, v4, v5, v6")
    a.e(f"""v_and_b32 v6, s5, v6
    v_cmp_ne_u32 vcc, 0, v6
    s_cmp_lg_u64 vcc, 0
    s_cbranch_scc1 K3_OP
    K3_OE:""")
    a.stamp(8)
    a.fence()
    pwrite(1)
    for i in range(2):
        psum(i)
        for r in range(4): a.e(f"v_cvt_pk_bf16_f32 v{XR[i]+r}, v{PS+8*i+2*r}, v{PS+8*i+2*r+1}")
        a.e(f"buffer_store_dwordx4 v[{XR[i]}:{XR[i]+3}], v244, s[36:39], s{23+i} offen")
```

```python
from asmlib import *
WS_Q, WS_KV, WS_ACT, WS_WF, WS_P = 0x0, 0x200000, 0x400000, 0xD00000, 0x1000000
WS_SIZE = 0x2000000
LOG2E = 1.4426950408889634
import struct
def f32(x): return "0x%08x" % struct.unpack("<I", struct.pack("<f", x))[0]
SC = " sc1" if os.environ.get("NOSC1") is None else ""

def srd(a, d, lo, size):
    a.e(f"s_mov_b32 s{d}, s{lo}\ns_mov_b32 s{d+1}, s{lo+1}\ns_mov_b32 s{d+2}, {size}\ns_mov_b32 s{d+3}, 0x20000")

SLOT = 16384
PF = os.environ.get("NOPF") is None
WSLOT = [7, 8, 9, 0, 1, 2, 3]
VSLOT = [4, 5, 6, 7, 8, 9, 0]
VT = 3 * SLOT
FL = 0x1400000
FL_Q, FL_N, FL_H, FL_R = FL, FL + 0x8000, FL + 0x10000, FL + 0x30000
B8 = int(os.environ.get('B8', 34))
SLP = int(os.environ.get('SLP', 4))
SPIN = 400000
QF_AT = int(os.environ.get("QF_AT", 26)); QD = int(os.environ.get("QD", 4))
_lab = [0]
def newlab(p):
    _lab[0] += 1; return f"{p}{_lab[0]}"
def nonce_load(v): return f"buffer_load_dword v{v}, off, s[80:83], 0 sc1"
def nonce_check(v, st):
    L = newlab("NC")
    return [f"v_readfirstlane_b32 s{st}, v{v}", f"s_cmp_lg_u32 s{st}, 0", f"s_cbranch_scc1 {L}E", f"s_mov_b32 s{st+1}, {SPIN}",
            f"{L}:", nonce_load(v), "s_waitcnt vmcnt(0)", f"v_readfirstlane_b32 s{st}, v{v}", f"s_cmp_lg_u32 s{st}, 0",
            f"s_cbranch_scc1 {L}E", f"s_sub_u32 s{st+1}, s{st+1}, 1", f"s_cmp_lg_u32 s{st+1}, 0", f"s_cbranch_scc1 {L}", f"{L}E:"]
def poll(a, loads, vn, st, first=None, lanes=64):
    L = newlab("PL")
    def ld():
        if lanes < 64: a.e(f"s_bfm_b64 exec, {lanes}, 0")
        for d, o, so in loads: a.e(f"buffer_load_dword v{d}, v{o}, s[52:55], s{so} offen sc1")
        a.e("s_waitcnt vmcnt(0)")
    a.e(f"s_mov_b32 s{st}, {SPIN}")
    if first:
        ld()
        if lanes < 64: a.e("s_mov_b64 exec, -1")
        first()
        if lanes < 64: a.e(f"s_bfm_b64 exec, {lanes}, 0")
        a.e(f"s_branch {L}C")
    else:
        a.e(f"s_branch {L}F")
    a.label(L)
    if SLP: a.e(f"s_sleep {SLP}")
    a.label(L + "F"); ld()
    a.label(L + "C")
    d0 = loads[0][0]
    a.e(f"v_xor_b32 v{d0}, v{d0}, v{vn}")
    for d, o, so in loads[1:]:
        a.e(f"v_xor_b32 v{d}, v{d}, v{vn}\nv_or_b32 v{d0}, v{d0}, v{d}")
    a.e(f"v_cmp_ne_u32 vcc, 0, v{d0}\ns_sub_u32 s{st}, s{st}, 1\ns_cmp_eq_u64 vcc, 0\ns_cbranch_scc1 {L}E\ns_cmp_lg_u32 s{st}, 0\ns_cbranch_scc1 {L}")
    a.label(L + "E")
    if lanes < 64: a.e("s_mov_b64 exec, -1")


RD = 12
def ring_off(k):
    i = k % RD
    return i * 2048 if i < 6 else 3 * SLOT + (i - 6) * 2048
def wd_load(k):
    o = ring_off(k)
    return [f"s_add_u32 m0, s74, {o}", f"s_add_u32 s72, s73, {16*896}", "buffer_load_dwordx4 v12, s[40:43], s73 offen lds",
            f"s_add_u32 m0, s74, {o + 1024}", f"s_cmp_eq_u32 s72, {28*16*896}", "buffer_load_dwordx4 v13, s[40:43], s73 offen lds",
            "s_cselect_b32 s73, 0, s72"]
def ring_setup(skip=6):
    t = Asm(); srd(t, 40, 24, 1792*448*2); tile_np(t, 70, 4)
    t.e(f"""s_and_b32 s5, s60, 3
    s_mul_i32 s5, s5, 7
    s_lshl_b32 s6, s70, 2
    s_add_u32 s5, s5, s6
    s_cmp_ge_u32 s5, 28
    s_cselect_b32 s6, 28, 0
    s_sub_u32 s63, s5, s6
    s_add_u32 s5, s63, {skip}
    s_cmp_ge_u32 s5, 28
    s_cselect_b32 s6, 28, 0
    s_sub_u32 s5, s5, s6
    s_mul_i32 s73, s5, {16*896}
    s_mul_i32 s74, s62, 12288
    s_add_u32 s74, s74, {SLOT}
    s_lshl_b32 s5, s70, 7
    s_mul_i32 s6, s62, {448*896}
    s_add_u32 s5, s5, s6
    v_lshrrev_b32 v7, 7, v0
    v_mul_u32_u24 v7, 896, v7
    v_and_b32 v13, 0x70, v0
    v_add_u32 v7, v7, v13
    v_add_u32 v12, s5, v7
    v_add_u32 v13, {8*896}, v12""")
    return [l.strip() for l in t.lines]

class Win:
    def __init__(self, regs): self.regs = regs; self.cur = 0
    def off(self, addr, span=16384):
        fix = []
        if not (0 <= addr - self.cur and addr - self.cur + span <= 65536):
            new = min((addr // 16384) * 16384, 6 * 16384)
            d = new - self.cur
            for r in self.regs:
                fix.append(f"v_add_u32 v{r}, {d & 0xffffffff}, v{r}")
            self.cur = new
        return fix, addr - self.cur

def a_addr_setup(a, dst, lane, t1, t2):
    a.e(f"""v_bfe_u32 v{t1}, v{lane}, 4, 1
    v_lshlrev_b32 v{dst}, 13, v{t1}
    v_bfe_u32 v{t2}, v{lane}, 2, 2
    v_lshl_add_u32 v{dst}, v{t2}, 7, v{dst}
    v_and_b32 v{t2}, 2, v{t2}
    v_xor_b32 v{t1}, v{t1}, v{t2}
    v_lshl_add_u32 v{dst}, v{t1}, 5, v{dst}
    v_lshrrev_b32 v{t1}, 5, v{lane}
    v_lshl_add_u32 v{dst}, v{t1}, 10, v{dst}
    v_and_b32 v{t1}, 3, v{lane}
    v_lshl_add_u32 v{dst}, v{t1}, 3, v{dst}""")

X0 = 16
ACC = [128, 144, 160, 176, 192, 208, 128, 144]
FR = 224

def ffn_epi(A, sbase, imm):
    o = []
    for r in range(8): o.append(f"v_mul_f32 v{A+r}, s75, v{A+r}")
    for r in range(8): o.append(f"v_exp_f32 v{A+r}, v{A+r}")
    for r in range(8): o.append(f"v_add_f32 v{A+r}, 1.0, v{A+r}")
    for r in range(8): o.append(f"v_rcp_f32 v{A+r}, v{A+r}")
    for r in range(8): o.append(f"v_mul_f32 v{A+r}, v{A+r}, v{A+8+r}")
    for i in range(4): o.append(f"v_cvt_pk_bf16_f32 v{A+8+i}, v{A+2*i}, v{A+2*i+1}")
    o.append(f"buffer_store_dwordx4 v[{A+8}:{A+11}], v0, s[52:55], s{sbase} offen offset:{imm}{SC}")
    return o

def q_epi(A, cbA, cbB):
    o = []
    for i in range(8): o.append(f"v_cvt_pk_bf16_f32 v{A+i}, v{A+2*i}, v{A+2*i+1}")
    for g, cb in ((0, cbA), (1, cbB)):
        o.append(f"buffer_store_dwordx4 v[{A+4*g}:{A+4*g+3}], v0, s[52:55], s{67 + cb//4} offen offset:{(cb%4)*1024}{SC}")
    return o

def k_epi(A):
    o = []
    for r in range(16): o.append(f"v_mul_f32 v{A+r}, s76, v{A+r}")
    for i in range(8): o.append(f"v_cvt_pk_bf16_f32 v{A+i}, v{A+2*i}, v{A+2*i+1}")
    o += [f"v_cndmask_b32 v{A+6}, v{A+6}, v5, vcc", f"v_cndmask_b32 v{A+7}, v{A+7}, v6, vcc",
          f"buffer_store_dwordx4 v[{A}:{A+3}], v0, s[52:55], s71 offen{SC}",
          f"buffer_store_dwordx4 v[{A+4}:{A+7}], v0, s[52:55], s71 offen offset:1024{SC}"]
    return o

def v_pre():
    return ["v_cmp_lt_u32 vcc, 511, v0", "v_mov_b32 v5, 0x3f803f80", "v_mov_b32 v6, 0x3f80",
          "s_lshl_b32 s5, s62, 11", f"s_add_u32 s5, s5, {VT}",
          "v_bfe_u32 v8, v0, 4, 5", "v_lshlrev_b32 v8, 6, v8", "v_lshrrev_b32 v9, 9, v0",
          "v_lshl_add_u32 v8, v9, 3, v8", "v_add_u32 v8, s5, v8",
          "v_bfe_u32 v10, v0, 6, 2", "v_lshl_add_u32 v10, v9, 2, v10", "v_lshlrev_b32 v10, 6, v10",
          "v_bfe_u32 v11, v0, 8, 1", "v_lshl_add_u32 v10, v11, 5, v10", "v_bfe_u32 v11, v0, 4, 2",
          "v_lshl_add_u32 v10, v11, 3, v10", "v_add_u32 v10, s5, v10"]

def v_epi(A):
    o = []
    for i in range(8): o.append(f"v_cvt_pk_bf16_f32 v{A+i}, v{A+2*i}, v{A+2*i+1}")
    o += [f"v_cndmask_b32 v{A+6}, v{A+6}, v6, vcc", f"v_cndmask_b32 v{A+7}, v{A+7}, 0, vcc"]
    for g in range(4): o.append(f"ds_write_b64 v8, v[{A+2*g}:{A+2*g+1}] offset:{16*g}")
    for i in range(4): o.append(f"ds_read_b64_tr_b16 v[{A+8+2*i}:{A+9+2*i}], v10 offset:{i*512}")
    o += ["WAIT", f"buffer_store_dwordx4 v[{A+8}:{A+11}], v0, s[52:55], s71 offen offset:2048{SC}",
          "WAIT", f"buffer_store_dwordx4 v[{A+12}:{A+15}], v0, s[52:55], s71 offen offset:3072{SC}"]
    return o

def mf(acc, fa, fb, first):
    return f"v_mfma_f32_32x32x16_bf16 v[{acc}:{acc+15}], v[{fa}:{fa+3}], v[{fb}:{fb+3}], " + ("0" if first else f"v[{acc}:{acc+15}]")

class Counted:
    def __init__(self, a): self.a = a; self.pend = []
    def emit(self, seq):
        a = self.a
        for i, t in enumerate(seq):
            if t.startswith("WAIT"):
                rs = set(Ins(seq[i + 1]).r)
                if len(t) > 4: rs |= regs_of(t[5:])
                k = -1
                for idx, w in enumerate(self.pend):
                    if w & rs: k = idx
                if k >= 0:
                    left = min(len(self.pend) - 1 - k, 15)
                    a.e(f"s_waitcnt lgkmcnt({left})")
                    self.pend = self.pend[len(self.pend) - left:] if left else []
                continue
            if t == "DRAIN":
                a.e("s_waitcnt lgkmcnt(0)"); self.pend = []; continue
            if t.startswith("STAMP"):
                if a.stamp(int(t[5:])): self.pend = []
                continue
            if t.endswith(":"):
                a.e(t); continue
            ins = Ins(t)
            if ins.ds: self.pend.append(set(ins.w))
            a.e(t)

def k1_entry(a, endlab):
    a.e(f"""s_cmp_ge_u32 s2, 256
    s_cbranch_scc1 {endlab}
    s_load_dwordx16 s[8:23], s[0:1], 0
    s_load_dwordx8 s[24:31], s[0:1], 64""")
    if PF:
        a.e(f"""s_cmp_lt_u32 s2, {os.environ.get("PFLO", 192)}
        s_cbranch_scc1 F_NOPF
        s_getpc_b64 s[6:7]
        F_PC:
        v_lshlrev_b32 v1, 7, v0
        v_min_u32 v1, F_CODE_END-F_PC-4, v1
        global_load_dword v255, v1, s[6:7]
        F_NOPF:""")
    a.e(f"""
    v_lshrrev_b32 v1, 6, v0
    v_and_b32 v0, 63, v0
    s_and_b32 s3, s2, 7
    s_lshr_b32 s4, s2, 3
    v_readfirstlane_b32 s62, v1
    s_and_b32 s60, s3, 3
    s_lshl_b32 s60, s60, 2
    s_and_b32 s5, s4, 3
    s_add_u32 s60, s60, s5             ; mt
    s_lshr_b32 s61, s3, 2
    s_lshl_b32 s61, s61, 3
    s_lshr_b32 s6, s4, 2
    s_add_u32 s61, s61, s6             ; j
    s_lshl_b32 s5, s5, 1
    s_add_u32 s63, s5, s6
    s_cmp_ge_u32 s63, 7
    s_cselect_b32 s6, 7, 0
    s_sub_u32 s63, s63, s6
    v_lshrrev_b32 v2, 3, v0
    v_and_b32 v3, 7, v0                ; p
    s_waitcnt lgkmcnt(0)""")
    srd(a, 52, 30, WS_SIZE)
    srd(a, 80, 28, 256)

def k1_compute(a, tail_hook=None, mid_hook=None):
    srd(a, 32, 8, 1835008)
    a.e("s_setprio 3")
    a.e(f"""v_lshrrev_b32 v4, 4, v0
    v_xor_b32 v4, v4, v3
    v_mul_u32_u24 v5, 896, v2
    v_lshl_add_u32 v12, v4, 4, v5
    v_xor_b32 v4, 4, v4
    v_lshl_add_u32 v13, v4, 4, v5
    s_lshl_b32 s64, s60, 2
    s_add_u32 s64, s64, s62            ; tt
    s_mul_i32 s72, s64, {32*896}
    s_lshl_b32 s73, s63, 7
    s_mul_i32 s74, s62, 28672""")
    def issue_x(c):
        a.e(f"s_add_u32 s6, s72, s73")
        for n in range(4):
            a.e(f"""s_add_u32 m0, s74, {c*4096 + n*1024}
            s_add_u32 s5, s6, {n*8*896}
            buffer_load_dwordx4 v{12 + (n&1)}, s[32:35], s5 offen lds""")
        a.e("s_add_u32 s73, s73, 128\ns_cmp_eq_u32 s73, 896\ns_cselect_b32 s73, 0, s73")
    for c in range(4): issue_x(c)
    a_addr_setup(a, 1, 0, 5, 6)
    a.e(f"""v_xor_b32 v2, 32, v1
    v_xor_b32 v3, 64, v1
    v_xor_b32 v4, 0x60, v1
    v_mov_b32 v200, v1
    s_cmp_lg_u32 s61, 3
    s_cbranch_scc1 K1_NJ3
    v_and_b32 v1, 0x1fff, v1
    v_xor_b32 v2, 64, v1
    v_add_u32 v3, 0x2000, v1
    v_add_u32 v4, 0x2000, v2
    K1_NJ3:
    v_and_b32 v5, 31, v0
    v_bfe_u32 v6, v5, 1, 3
    v_lshrrev_b32 v7, 5, v0
    v_xor_b32 v6, v6, v7
    v_lshlrev_b32 v8, 7, v5
    v_lshl_add_u32 v8, v6, 4, v8
    v_add_u32 v8, s74, v8
    v_xor_b32 v9, 32, v8
    v_xor_b32 v10, 64, v8
    v_xor_b32 v11, 0x60, v8
    v_mov_b32 v5, 0
    v_mov_b32 v6, 0
    v_mov_b32 v7, 0
    v_mov_b32 v14, 0
    v_lshlrev_b32 v15, 3, v0
    v_lshlrev_b32 v0, 4, v0
    s_mov_b32 s77, 0x3f803f80
    s_mov_b32 s78, 0xffff0000
    s_mov_b32 s75, {f32(-LOG2E)}
    s_mov_b32 s76, {f32(LOG2E * 28 ** -0.5)}
    s_mul_i32 s65, s64, {144*1024}
    s_add_u32 s65, s65, {WS_ACT}
    s_add_u32 s5, s61, 24
    s_lshl_b32 s6, s61, 1
    s_sub_u32 s6, s6, 7
    s_cmp_lt_u32 s61, 4
    s_cselect_b32 s5, s5, s6
    s_lshl_b32 s5, s5, 12
    s_add_u32 s66, s65, s5
    s_sub_u32 s65, s66, 4096           ; act base sg0 (ffn only)
    s_mul_i32 s67, s64, {112*256}
    s_lshl_b32 s5, s61, 13             ; j*32 cgs*256
    s_add_u32 s67, s67, s5
    s_add_u32 s68, s67, 4096
    s_lshl_b32 s71, s64, 12
    s_add_u32 s71, s71, {WS_KV}""")
    for c in range(7):
        left = min(3, 6 - c)
        a.e(f"s_waitcnt vmcnt({4*left})")
        for s in range(4):
            n = 4 * c + s
            a.e(f"ds_read_b128 v[{X0+4*n}:{X0+4*n+3}], v{8+s} offset:{c*4096}")
        if c + 4 < 7: issue_x(c + 4)
        for s in range(4):
            a.e(f"s_waitcnt lgkmcnt({3-s})")
            for t in range(4):
                r = X0 + 16 * c + 4 * s + t
                a.e(f"v_dot2_f32_bf16 v{5 if t&1 else 7}, v{r}, s77, v{5 if t&1 else 7}")
                a.e(f"v_dot2_f32_bf16 v{6 if t&1 else 14}, v{r}, v{r}, v{6 if t&1 else 14}")
    a.stamp(2)
    a.e("s_barrier")
    a.stamp(3)
    wa = Win([1, 2, 3, 4])
    def reads_sg0(n):
        c, s = divmod(n, 4)
        fa, oa = wa.off(WSLOT[c] * SLOT)
        g = []
        for t in range(4):
            b = FR + 16 * (n & 1) + 4 * t
            rd = [f"ds_read_b64_tr_b16 v[{b+2*u}:{b+2*u+1}], v{1+t} offset:{oa + s*2048 + u*512}" for u in range(2)]
            g.append((fa if t == 0 else []) + rd)
        return g
    def norm(n, t):
        r = X0 + 4 * n + t; T = 192 + 2 * t
        return [f"v_lshlrev_b32 v{T}, 16, v{r}", f"v_and_b32 v{T+1}, s78, v{r}",
                f"v_fma_f32 v{T}, v{T}, v12, v13", f"v_fma_f32 v{T+1}, v{T+1}, v12, v13",
                f"v_cvt_pk_bf16_f32 v{r}, v{T}, v{T+1}"]
    def reads_pair(n, e, t):
        c, s = divmod(n, 4)
        fa, oa = wa.off(VSLOT[c] * SLOT)
        b = FR + 8 * (n & 3) + 4 * e
        return fa + [f"ds_read_b64_tr_b16 v[{b+2*u}:{b+2*u+1}], v{1+t} offset:{oa + s*2048 + u*512}" for u in range(2)]
    C = Counted(a)
    seq = []
    for g in reads_sg0(0): seq += g
    seq += [x.strip() for x in f"""v_add_f32 v5, v5, v7
    v_add_f32 v6, v6, v14
    v_mov_b32 v8, v5
    v_mov_b32 v9, v6
    v_permlane32_swap_b32 v5, v8
    v_permlane32_swap_b32 v6, v9
    v_add_f32 v5, v5, v8
    v_add_f32 v6, v6, v9
    v_mul_f32 v5, {f32(1/448)}, v5
    v_mul_f32 v6, {f32(1/448)}, v6
    v_fma_f32 v6, -v5, v5, v6
    v_max_f32 v6, 0, v6
    v_cvt_pk_bf16_f32 v5, v5, v5
    v_cvt_pk_bf16_f32 v6, v6, v6
    v_lshlrev_b32 v5, 16, v5
    v_lshlrev_b32 v6, 16, v6
    v_add_f32 v6, {f32(1e-5)}, v6
    v_cvt_pk_bf16_f32 v6, v6, v6
    v_lshlrev_b32 v6, 16, v6
    v_sqrt_f32 v6, v6
    v_cvt_pk_bf16_f32 v6, v6, v6
    v_lshlrev_b32 v6, 16, v6
    v_rcp_f32 v12, v6
    v_mul_f32 v13, -v5, v12""".split("\n")]
    nrm = [norm(0, t) for t in range(4)]
    for i in range(5):
        for t in range(4): seq.append(nrm[t][i])
    for n in range(28):
        c = n // 4
        bar = (n % 4 == 3) and (c % 2 == 0)
        nxt = reads_sg0(n + 1) if (n < 27 and not bar) else None
        nl = v_pre() if n == 27 else []
        if n < 27:
            nn = [norm(n + 1, t) for t in range(4)]
            for p in (0, 2):
                for i in range(5): nl += [nn[p][i], nn[p + 1][i]]
        for t in range(4):
            fa = FR + 16 * (n & 1) + 4 * t
            if bar and t == 2: seq.append("DRAIN")
            elif t % 2 == 0: seq.append(f"WAIT v[{fa+4}:{fa+7}]")
            seq.append(mf(ACC[t], fa, X0 + 4 * n, n == 0))
            if not bar:
                if nxt: seq += nxt[t]
            elif t == 2:
                seq.append("s_barrier")
                if n < 27:
                    nxt = reads_sg0(n + 1); seq += nxt[0] + nxt[1]
                else:
                    wa.cur = 4 * SLOT
                    seq += ["STAMP5", f"v_add_u32 v1, {4*SLOT}, v200", "v_xor_b32 v2, 32, v1", "v_xor_b32 v3, 64, v1", "v_xor_b32 v4, 0x60, v1"]
                    seq += reads_pair(0, 0, 0) + reads_pair(0, 1, 1) + reads_pair(1, 0, 0) + reads_pair(1, 1, 1)
            elif t == 3 and n < 27:
                seq += nxt[2] + nxt[3]
            seq += nl[5 * t: 5 * t + 5]
    C.emit(seq)
    def pair_phase(accs, tiles, next_tiles, first):
        groups = []
        for n in range(28):
            for e in range(2):
                fa = FR + 8 * (n & 3) + 4 * e
                g = [f"WAIT v[{fa+4}:{fa+7}]"] if e == 0 else []
                g.append(mf(accs[e], fa, X0 + 4 * n, n == 0))
                if first and n == 0: g += reads_pair(2, e, tiles[e])
                if n + 3 < 28: g += reads_pair(n + 3, e, tiles[e])
                elif next_tiles is not None: g += reads_pair(n + 3 - 28, e, next_tiles[e])
                groups.append(g)
        return groups
    save = (wa.cur, list(C.pend), None)
    def variant(kind):
        wa.cur = save[0]; C.pend = list(save[1])
        g2 = pair_phase([ACC[4], ACC[5]], [0, 1], [2, 3], True)
        g3 = pair_phase([ACC[6], ACC[7]], [2, 3], None, False)
        if B8:
            b8 = B8 + {"ffn": int(os.environ.get('B8F', 50)), "q": int(os.environ.get('B8Q', 46)), "kv": 0}[kind]
            gg = g2 if b8 < 56 else g3
            gg[b8 % 56] = gg[b8 % 56] + ["s_barrier"]
            rs = ring_setup()
            assert QF_AT < 30
            for i in range(10): g2[30 + i] = g2[30 + i] + rs[len(rs)*i//10: len(rs)*(i+1)//10]
            assert kind == "kv" or b8 >= 80
        if kind == "ffn":
            f2 = sum((ffn_epi(ACC[t], 65, t * 1024) for t in range(3)), [])
            f3 = ffn_epi(ACC[3], 65, 3072)
        elif kind == "q":
            f2 = sum((q_epi(ACC[t], t, 4 + t) for t in range(4)), []); f3 = []
        else:
            ve = v_epi(ACC[3])
            f2 = q_epi(ACC[0], 0, 1) + ve[:-4] + k_epi(ACC[2]) + ve[-4:] + q_epi(ACC[1], 2, 3); f3 = []
        f3 = f3 + ffn_epi(ACC[4], 66, 0) + ffn_epi(ACC[5], 66, 1024)
        def ilv(groups, fill):
            units = []
            i = 0
            while i < len(fill):
                if fill[i].startswith("WAIT"): units.append(fill[i:i+2]); i += 2
                else: units.append([fill[i]]); i += 1
            out = []; k = 0
            for gi, g in enumerate(groups):
                out += g
                tgt = (len(units) * (gi + 1)) // len(groups)
                for u in units[k:tgt]: out += u
                k = tgt
            return out
        seq = [nonce_load(14)] + (g2[0] + g2[1] + g2[2] + ilv(g2[3:56], f2) if kind == "ffn" else ilv(g2[:QD], f2))
        if kind != "ffn":
            pre = ["s_lshl_b32 s5, s60, 11", "s_lshl_b32 s6, s61, 9", "s_add_u32 s5, s5, s6", "s_lshl_b32 s6, s62, 7",
                   "s_add_u32 s5, s5, s6", f"s_add_u32 s79, s5, {FL_Q}"]
            pub = ["STAMP8", "s_waitcnt vmcnt(0)"] + nonce_check(14, 4) + ["s_mov_b64 exec, 1",
                   "buffer_store_dword v14, off, s[52:55], s79 sc1", "s_mov_b64 exec, -1", "STAMP9"] + (["s_barrier"] if kind == "q" else [])
            seq += ["STAMP4"] + ilv(g2[QD:QD+6], pre)
            for gi in range(QD+6, 56):
                if gi == QF_AT: seq += pub
                seq += g2[gi]
            if QF_AT >= 56: seq += pub
        seq += ["STAMP6"]
        lead = 1 if kind == "ffn" else 4
        for g in g3[:lead]: seq += g
        seq += ilv(g3[lead:], f3)
        C.emit(seq)
        a.stamp(7)
        e0 = ffn_epi(ACC[6], 66, 2048); e1 = ffn_epi(ACC[7], 66, 3072)
        a.e("\n".join(e0 + e1))
        a.e("s_branch K1_CDONE")
    hist = list(a.hist)
    a.e("s_cmp_lt_u32 s61, 4\ns_cbranch_scc1 K1_QKV")
    variant("ffn")
    a.label("K1_QKV"); a.hist = list(hist)
    a.e("s_cmp_eq_u32 s61, 3\ns_cbranch_scc1 K1_KV")
    variant("q")
    a.label("K1_KV"); a.hist = list(hist)
    variant("kv")
    a.label("K1_CDONE")

def k1_loader(a):
    srd(a, 44, 12, 25088)
    srd(a, 48, 14, 25088)
    srd(a, 32, 20, 448*1792*2)
    srd(a, 56, 22, 448*1792*2)
    a.e(f"""s_sub_u32 s62, s62, 4
    s_cmp_ge_u32 s61, 4
    s_cselect_b32 s36, s20, s10
    s_cselect_b32 s37, s21, s11
    s_cselect_b32 s40, s22, s10
    s_cselect_b32 s41, s23, s11
    s_mov_b32 s38, {448*448*2}
    s_mov_b32 s64, 896
    s_cselect_b32 s38, {448*1792*2}, s38
    s_cselect_b32 s64, 3584, s64
    s_cselect_b32 s5, 0, 128
    s_mov_b32 s39, 0x20000
    s_mov_b32 s42, s38
    s_mov_b32 s43, 0x20000
    s_sub_u32 s6, s61, 4
    s_cmp_ge_u32 s61, 4
    s_cselect_b32 s6, s6, s61
    s_lshl_b32 s65, s6, 8
    s_add_u32 s7, s65, 128
    s_lshl_b32 s6, s61, 7
    s_add_u32 s6, s6, {24*128}
    s_cmp_ge_u32 s61, 4
    s_cselect_b32 s67, s7, s6
    s_mul_i32 s7, s62, s64
    s_lshl_b32 s7, s7, 4
    s_add_u32 s65, s65, s7
    s_add_u32 s66, s65, s5              ; B sg0
    s_mul_i32 s7, s62, {16*3584}
    s_add_u32 s67, s67, s7              ; sg1
    s_lshl_b32 s69, s64, 3
    s_lshl_b32 s70, s64, 6
    s_lshl_b32 s73, s62, 11
    s_mul_i32 s74, s62, {16*56}         ; kv row base
    s_mov_b32 s71, s63
    s_mov_b32 s72, s63
    v_lshrrev_b32 v4, 1, v3             ; ps
    v_and_b32 v5, 2, v2
    v_xor_b32 v4, v4, v5                ; tA
    v_xor_b32 v5, 1, v4                 ; tB
    v_and_b32 v6, 1, v3
    v_mul_lo_u32 v7, v2, s64
    v_lshl_add_u32 v7, v6, 4, v7
    v_lshl_add_u32 v10, v4, 5, v7
    v_lshl_add_u32 v11, v5, 5, v7
    v_mul_u32_u24 v7, 3584, v2
    v_lshl_add_u32 v7, v6, 4, v7
    v_lshl_add_u32 v8, v4, 5, v7
    v_lshl_add_u32 v9, v5, 5, v7
    v_mul_u32_u24 v7, 56, v2
    v_and_b32 v6, 3, v3
    v_lshl_add_u32 v12, v6, 4, v7       ; kv voff
    v_cmp_gt_u32 s[76:77], 2, v4
    v_cmp_le_u32 s[78:79], 2, v4""")
    def adv(s): a.e(f"s_add_u32 s{s}, s{s}, 1\ns_cmp_eq_u32 s{s}, 7\ns_cselect_b32 s{s}, 0, s{s}")
    lab = [0]
    def issue_w(c):
        base = WSLOT[c] * SLOT; lab[0] += 1; L = lab[0]
        a.e(f"""s_mul_i32 s7, s71, s70
        s_add_u32 s5, s65, s7
        s_add_u32 s6, s66, s7
        s_cmp_eq_u32 s61, 3
        s_cbranch_scc1 K1_VS{L}
        s_add_u32 m0, s73, {base}
        s_add_u32 s7, s5, s69
        buffer_load_dwordx4 v10, s[36:39], s5 offen lds
        s_add_u32 m0, s73, {base + 1024}
        s_add_u32 s3, s6, s69
        buffer_load_dwordx4 v10, s[36:39], s7 offen lds
        s_add_u32 m0, s73, {base + 8192}
        s_nop 0
        buffer_load_dwordx4 v11, s[40:43], s6 offen lds
        s_add_u32 m0, s73, {base + 8192 + 1024}
        s_nop 0
        buffer_load_dwordx4 v11, s[40:43], s3 offen lds
        s_branch K1_VE{L}""")
        a.label(f"K1_VS{L}")
        a.e(f"""s_mul_i32 s7, s71, {64*56}
        s_add_u32 s7, s7, s74
        s_add_u32 m0, s73, {base}
        s_add_u32 s3, s5, s69
        buffer_load_dwordx4 v10, s[36:39], s5 offen lds
        s_add_u32 m0, s73, {base + 1024}
        s_add_u32 s4, s7, {8*56}
        buffer_load_dwordx4 v10, s[36:39], s3 offen lds""")
        for n in range(2):
            a.e(f"""s_add_u32 m0, s73, {base + 8192 + n*1024}
            s_mov_b64 exec, s[76:77]
            buffer_load_dwordx4 v12, s[44:47], s{7 if n == 0 else 4} offen lds
            s_mov_b64 exec, s[78:79]
            buffer_load_dwordx4 v12, s[48:51], s{7 if n == 0 else 4} offen lds""")
        a.e("s_mov_b64 exec, -1")
        a.label(f"K1_VE{L}")
        adv(71)
    def issue_v(c):
        base = VSLOT[c] * SLOT
        a.e(f"""s_mul_i32 s5, s72, {64*3584}
        s_add_u32 s5, s5, s67
        s_add_u32 m0, s73, {base}
        s_add_u32 s7, s5, {8*3584}
        buffer_load_dwordx4 v8, s[32:35], s5 offen lds
        s_add_u32 m0, s73, {base + 1024}
        s_nop 0
        buffer_load_dwordx4 v8, s[32:35], s7 offen lds
        s_add_u32 m0, s73, {base + 8192}
        s_nop 0
        buffer_load_dwordx4 v9, s[56:59], s5 offen lds
        s_add_u32 m0, s73, {base + 8192 + 1024}
        s_nop 0
        buffer_load_dwordx4 v9, s[56:59], s7 offen lds""")
        adv(72)
    def w3(n, n3):
        L = newlab("W3")
        a.e(f"s_cmp_eq_u32 s61, 3\ns_cbranch_scc1 {L}\ns_waitcnt vmcnt({n})\n{L}:\ns_waitcnt vmcnt({n3})")
    issue_w(0)
    a.e(f"""s_lshl_b32 s3, s2, 2
    s_xor_b32 s3, s3, 3
    s_mov_b32 s4, {FL_N}
    s_cmp_lg_u32 s3, s62
    s_cbranch_scc1 F_NN
    buffer_load_dword v20, off, s[52:55], s4 sc1
    s_waitcnt vmcnt(0)
    v_add_u32 v20, 1, v20
    v_or_b32 v20, 0x80000000, v20
    s_mov_b64 exec, 1
    buffer_store_dword v20, off, s[80:83], 0 sc1
    buffer_store_dword v20, off, s[52:55], s4 sc1
    s_mov_b64 exec, -1
    s_branch F_NN2
    F_NN:
    s_waitcnt vmcnt(0)
    F_NN2:""")
    issue_w(1); issue_w(2)
    if os.environ.get("TLB"):
        a.e(f"""s_lshl_b32 s4, s62, 16
        v_lshlrev_b32 v21, 18, v0
        v_add_u32 v21, 0xff80, v21
        buffer_load_dword v22, v21, s[52:55], s4 offen
        s_add_u32 s4, s4, {FL}
        buffer_load_dword v22, off, s[52:55], s4 offset:4032""")
    a.e("s_barrier")
    issue_w(3)
    w3(4, 6)
    a.e("s_barrier")
    issue_w(4); issue_w(5); issue_w(6); issue_v(0)
    w3(12, 16)
    a.e("s_barrier")
    issue_v(1); issue_v(2); issue_v(3); issue_v(4)
    if PFW == 3: wprefetch(a, 20)
    else: a.e("s_waitcnt vmcnt(20)")
    a.e("s_barrier")
    a.e(nonce_load(14))
    issue_v(5); issue_v(6)
    a.e("v_lshlrev_b32 v0, 4, v0")
    a.e("\n".join(ring_setup(0)))
    a.e("v_lshrrev_b32 v0, 4, v0\ns_waitcnt vmcnt(0)\ns_barrier")
    tile_np(a, 4, 5)
    a.e("s_cbranch_scc1 F_NR\ns_cmp_ge_u32 s61, 3\ns_cbranch_scc1 F_NB\ns_barrier\nF_NB:")
    for k in range(6): a.e("\n".join(wd_load(k)))
    a.label("F_NR")
    a.e("\n".join(nonce_check(14, 4)))

PFW = int(os.environ.get("PFW", 0))
def tile_np(a, d, t):
    a.e(f"""s_and_b32 s{t}, s61, 7
    s_cmp_lt_u32 s61, 8
    s_cselect_b32 s{t+1}, 3, 7
    s_cmp_gt_u32 s{t}, s{t+1}
    s_subb_u32 s{d}, s{t}, 0
    s_cmp_eq_u32 s{t}, s{t+1}""")

def wprefetch(a, n):
    tile_np(a, 68, 4)
    a.e("s_cbranch_scc1 F_PW0")
    srd(a, 84, 24, 1792*448*2)
    srd(a, 44, 16, 448*448*2)
    a.e(f"""s_and_b32 s5, s60, 3
    s_lshl_b32 s5, s5, 2
    s_add_u32 s5, s5, s62
    s_lshl_b32 s68, s68, 7
    s_mul_i32 s6, s5, {112*896}
    s_add_u32 s6, s6, s68
    s_mul_i32 s7, s5, {28*896}
    s_add_u32 s7, s7, s68
    v_lshrrev_b32 v21, 1, v0
    v_min_u32 v21, 27, v21
    v_mul_u32_u24 v21, 896, v21
    v_and_b32 v22, 1, v0
    v_lshl_add_u32 v21, v22, 6, v21
    s_bfm_b64 exec, 56, 0""")
    for i in range(4):
        a.e(f"buffer_load_dword v22, v21, s[84:87], s6 offen\ns_add_u32 s6, s6, {28*896}")
    a.e(f"""buffer_load_dword v22, v21, s[44:47], s7 offen
    s_mov_b64 exec, -1
    s_waitcnt vmcnt({n+5})
    s_branch F_PW1
    F_PW0:
    s_waitcnt vmcnt({n})
    F_PW1:""")
```

```python
from asmlib import *
WS_Q, WS_KV, WS_ACT, WS_WF, WS_P = 0x0, 0x200000, 0x400000, 0xD00000, 0x1000000
WS_SIZE = 0x2000000
LOG2E = 1.4426950408889634
import struct
def f32(x): return "0x%08x" % struct.unpack("<I", struct.pack("<f", x))[0]
SC = " sc1" if os.environ.get("NOSC1") is None else ""

def srd(a, d, lo, size):
    a.e(f"s_mov_b32 s{d}, s{lo}\ns_mov_b32 s{d+1}, s{lo+1}\ns_mov_b32 s{d+2}, {size}\ns_mov_b32 s{d+3}, 0x20000")

SLOT = 16384
PF = os.environ.get("NOPF") is None
WSLOT = [7, 8, 9, 0, 1, 2, 3]
VSLOT = [4, 5, 6, 7, 8, 9, 0]
VT = 3 * SLOT
FL = 0x1400000
FL_Q, FL_N, FL_H, FL_R = FL, FL + 0x8000, FL + 0x10000, FL + 0x30000
B8 = int(os.environ.get('B8', 34))
SLP = int(os.environ.get('SLP', 4))
SPIN = 400000
QF_AT = int(os.environ.get("QF_AT", 26)); QD = int(os.environ.get("QD", 4))
_lab = [0]
def newlab(p):
    _lab[0] += 1; return f"{p}{_lab[0]}"
def nonce_load(v): return f"buffer_load_dword v{v}, off, s[80:83], 0 sc1"
def nonce_check(v, st):
    L = newlab("NC")
    return [f"v_readfirstlane_b32 s{st}, v{v}", f"s_cmp_lg_u32 s{st}, 0", f"s_cbranch_scc1 {L}E", f"s_mov_b32 s{st+1}, {SPIN}",
            f"{L}:", nonce_load(v), "s_waitcnt vmcnt(0)", f"v_readfirstlane_b32 s{st}, v{v}", f"s_cmp_lg_u32 s{st}, 0",
            f"s_cbranch_scc1 {L}E", f"s_sub_u32 s{st+1}, s{st+1}, 1", f"s_cmp_lg_u32 s{st+1}, 0", f"s_cbranch_scc1 {L}", f"{L}E:"]
def poll(a, loads, vn, st, first=None, lanes=64):
    L = newlab("PL")
    def ld():
        if lanes < 64: a.e(f"s_bfm_b64 exec, {lanes}, 0")
        for d, o, so in loads: a.e(f"buffer_load_dword v{d}, v{o}, s[52:55], s{so} offen sc1")
        a.e("s_waitcnt vmcnt(0)")
    a.e(f"s_mov_b32 s{st}, {SPIN}")
    if first:
        ld()
        if lanes < 64: a.e("s_mov_b64 exec, -1")
        first()
        if lanes < 64: a.e(f"s_bfm_b64 exec, {lanes}, 0")
        a.e(f"s_branch {L}C")
    else:
        a.e(f"s_branch {L}F")
    a.label(L)
    if SLP: a.e(f"s_sleep {SLP}")
    a.label(L + "F"); ld()
    a.label(L + "C")
    d0 = loads[0][0]
    a.e(f"v_xor_b32 v{d0}, v{d0}, v{vn}")
    for d, o, so in loads[1:]:
        a.e(f"v_xor_b32 v{d}, v{d}, v{vn}\nv_or_b32 v{d0}, v{d0}, v{d}")
    a.e(f"v_cmp_ne_u32 vcc, 0, v{d0}\ns_sub_u32 s{st}, s{st}, 1\ns_cmp_eq_u64 vcc, 0\ns_cbranch_scc1 {L}E\ns_cmp_lg_u32 s{st}, 0\ns_cbranch_scc1 {L}")
    a.label(L + "E")
    if lanes < 64: a.e("s_mov_b64 exec, -1")


RD = 12
LAY = int(os.environ.get('LAY', 0))
UP = (6 if LAY else 3) * SLOT
def ring_off(k):
    i = k % RD
    return i * 2048 if i < 6 else UP + (i - 6) * 2048
def wd_load(k):
    o = ring_off(k)
    return [f"s_add_u32 m0, s74, {o}", f"s_add_u32 s72, s73, {16*896}", "buffer_load_dwordx4 v12, s[40:43], s73 offen lds",
            f"s_add_u32 m0, s74, {o + 1024}", f"s_cmp_eq_u32 s72, {28*16*896}", "buffer_load_dwordx4 v13, s[40:43], s73 offen lds",
            "s_cselect_b32 s73, 0, s72"]
def ring_setup(skip=6):
    t = Asm(); srd(t, 40, 24, 1792*448*2); tile_np(t, 70, 4)
    t.e(f"""s_and_b32 s5, s60, 3
    s_mul_i32 s5, s5, 7
    s_lshl_b32 s6, s70, 2
    s_add_u32 s5, s5, s6
    s_cmp_ge_u32 s5, 28
    s_cselect_b32 s6, 28, 0
    s_sub_u32 s63, s5, s6
    s_add_u32 s5, s63, {skip}
    s_cmp_ge_u32 s5, 28
    s_cselect_b32 s6, 28, 0
    s_sub_u32 s5, s5, s6
    s_mul_i32 s73, s5, {16*896}
    s_mul_i32 s74, s62, 12288
    s_add_u32 s74, s74, {SLOT}
    s_lshl_b32 s5, s70, 7
    s_mul_i32 s6, s62, {448*896}
    s_add_u32 s5, s5, s6
    v_lshrrev_b32 v7, 7, v0
    v_mul_u32_u24 v7, 896, v7
    v_and_b32 v13, 0x70, v0
    v_add_u32 v7, v7, v13
    v_add_u32 v12, s5, v7
    v_add_u32 v13, {8*896}, v12""")
    return [l.strip() for l in t.lines]

class Win:
    def __init__(self, regs): self.regs = regs; self.cur = 0
    def off(self, addr, span=16384):
        fix = []
        if not (0 <= addr - self.cur and addr - self.cur + span <= 65536):
            new = min((addr // 16384) * 16384, 6 * 16384)
            d = new - self.cur
            for r in self.regs:
                fix.append(f"v_add_u32 v{r}, {d & 0xffffffff}, v{r}")
            self.cur = new
        return fix, addr - self.cur

def a_addr_setup(a, dst, lane, t1, t2):
    a.e(f"""v_bfe_u32 v{t1}, v{lane}, 4, 1
    v_lshlrev_b32 v{dst}, 13, v{t1}
    v_bfe_u32 v{t2}, v{lane}, 2, 2
    v_lshl_add_u32 v{dst}, v{t2}, 7, v{dst}
    v_and_b32 v{t2}, 2, v{t2}
    v_xor_b32 v{t1}, v{t1}, v{t2}
    v_lshl_add_u32 v{dst}, v{t1}, 5, v{dst}
    v_lshrrev_b32 v{t1}, 5, v{lane}
    v_lshl_add_u32 v{dst}, v{t1}, 10, v{dst}
    v_and_b32 v{t1}, 3, v{lane}
    v_lshl_add_u32 v{dst}, v{t1}, 3, v{dst}""")

X0 = 16
ACC = [128, 144, 160, 176, 192, 208, 128, 144]
FR = 224

def ffn_epi(A, sbase, imm):
    o = []
    for r in range(8): o.append(f"v_mul_f32 v{A+r}, s75, v{A+r}")
    for r in range(8): o.append(f"v_exp_f32 v{A+r}, v{A+r}")
    for r in range(8): o.append(f"v_add_f32 v{A+r}, 1.0, v{A+r}")
    for r in range(8): o.append(f"v_rcp_f32 v{A+r}, v{A+r}")
    for r in range(8): o.append(f"v_mul_f32 v{A+r}, v{A+r}, v{A+8+r}")
    for i in range(4): o.append(f"v_cvt_pk_bf16_f32 v{A+8+i}, v{A+2*i}, v{A+2*i+1}")
    o.append(f"buffer_store_dwordx4 v[{A+8}:{A+11}], v0, s[52:55], s{sbase} offen offset:{imm}{SC}")
    return o

def q_epi(A, cbA, cbB):
    o = []
    for i in range(8): o.append(f"v_cvt_pk_bf16_f32 v{A+i}, v{A+2*i}, v{A+2*i+1}")
    for g, cb in ((0, cbA), (1, cbB)):
        o.append(f"buffer_store_dwordx4 v[{A+4*g}:{A+4*g+3}], v0, s[52:55], s{67 + cb//4} offen offset:{(cb%4)*1024}{SC}")
    return o

def k_epi(A):
    o = []
    for r in range(16): o.append(f"v_mul_f32 v{A+r}, s76, v{A+r}")
    for i in range(8): o.append(f"v_cvt_pk_bf16_f32 v{A+i}, v{A+2*i}, v{A+2*i+1}")
    o += [f"v_cndmask_b32 v{A+6}, v{A+6}, v5, vcc", f"v_cndmask_b32 v{A+7}, v{A+7}, v6, vcc",
          f"buffer_store_dwordx4 v[{A}:{A+3}], v0, s[52:55], s71 offen{SC}",
          f"buffer_store_dwordx4 v[{A+4}:{A+7}], v0, s[52:55], s71 offen offset:1024{SC}"]
    return o

def v_pre():
    return ["v_cmp_lt_u32 vcc, 511, v0", "v_mov_b32 v5, 0x3f803f80", "v_mov_b32 v6, 0x3f80",
          "s_lshl_b32 s5, s62, 11", f"s_add_u32 s5, s5, {VT}",
          "v_bfe_u32 v8, v0, 4, 5", "v_lshlrev_b32 v8, 6, v8", "v_lshrrev_b32 v9, 9, v0",
          "v_lshl_add_u32 v8, v9, 3, v8", "v_add_u32 v8, s5, v8",
          "v_bfe_u32 v10, v0, 6, 2", "v_lshl_add_u32 v10, v9, 2, v10", "v_lshlrev_b32 v10, 6, v10",
          "v_bfe_u32 v11, v0, 8, 1", "v_lshl_add_u32 v10, v11, 5, v10", "v_bfe_u32 v11, v0, 4, 2",
          "v_lshl_add_u32 v10, v11, 3, v10", "v_add_u32 v10, s5, v10"]

def v_epi(A):
    o = []
    for i in range(8): o.append(f"v_cvt_pk_bf16_f32 v{A+i}, v{A+2*i}, v{A+2*i+1}")
    o += [f"v_cndmask_b32 v{A+6}, v{A+6}, v6, vcc", f"v_cndmask_b32 v{A+7}, v{A+7}, 0, vcc"]
    for g in range(4): o.append(f"ds_write_b64 v8, v[{A+2*g}:{A+2*g+1}] offset:{16*g}")
    for i in range(4): o.append(f"ds_read_b64_tr_b16 v[{A+8+2*i}:{A+9+2*i}], v10 offset:{i*512}")
    o += ["WAIT", f"buffer_store_dwordx4 v[{A+8}:{A+11}], v0, s[52:55], s71 offen offset:2048{SC}",
          "WAIT", f"buffer_store_dwordx4 v[{A+12}:{A+15}], v0, s[52:55], s71 offen offset:3072{SC}"]
    return o

def mf(acc, fa, fb, first):
    return f"v_mfma_f32_32x32x16_bf16 v[{acc}:{acc+15}], v[{fa}:{fa+3}], v[{fb}:{fb+3}], " + ("0" if first else f"v[{acc}:{acc+15}]")

class Counted:
    def __init__(self, a): self.a = a; self.pend = []
    def emit(self, seq):
        a = self.a
        for i, t in enumerate(seq):
            if t.startswith("WAIT"):
                rs = set(Ins(seq[i + 1]).r)
                if len(t) > 4: rs |= regs_of(t[5:])
                k = -1
                for idx, w in enumerate(self.pend):
                    if w & rs: k = idx
                if k >= 0:
                    left = min(len(self.pend) - 1 - k, 15)
                    a.e(f"s_waitcnt lgkmcnt({left})")
                    self.pend = self.pend[len(self.pend) - left:] if left else []
                continue
            if t == "DRAIN":
                a.e("s_waitcnt lgkmcnt(0)"); self.pend = []; continue
            if t.startswith("STAMP"):
                if a.stamp(int(t[5:])): self.pend = []
                continue
            if t.endswith(":"):
                a.e(t); continue
            ins = Ins(t)
            if ins.ds: self.pend.append(set(ins.w))
            a.e(t)

def k1_entry(a, endlab):
    a.e(f"""s_cmp_ge_u32 s2, 256
    s_cbranch_scc1 {endlab}
    s_load_dwordx16 s[8:23], s[0:1], 0
    s_load_dwordx8 s[24:31], s[0:1], 64""")
    if PF:
        a.e(f"""s_cmp_lt_u32 s2, {os.environ.get("PFLO", 192)}
        s_cbranch_scc1 F_NOPF
        s_getpc_b64 s[6:7]
        F_PC:
        v_lshlrev_b32 v1, 7, v0
        v_min_u32 v1, F_CODE_END-F_PC-4, v1
        global_load_dword v255, v1, s[6:7]
        F_NOPF:""")
    a.e(f"""
    v_lshrrev_b32 v1, 6, v0
    v_and_b32 v0, 63, v0
    s_and_b32 s3, s2, 7
    s_lshr_b32 s4, s2, 3
    v_readfirstlane_b32 s62, v1
    s_and_b32 s60, s3, 3
    s_lshl_b32 s60, s60, 2
    s_and_b32 s5, s4, 3
    s_add_u32 s60, s60, s5             ; mt
    s_lshr_b32 s61, s3, 2
    s_lshl_b32 s61, s61, 3
    s_lshr_b32 s6, s4, 2
    s_add_u32 s61, s61, s6             ; j
    s_lshl_b32 s5, s5, 1
    s_add_u32 s63, s5, s6
    s_cmp_ge_u32 s63, 7
    s_cselect_b32 s6, 7, 0
    s_sub_u32 s63, s63, s6
    v_lshrrev_b32 v2, 3, v0
    v_and_b32 v3, 7, v0                ; p
    s_waitcnt lgkmcnt(0)""")
    srd(a, 52, 30, WS_SIZE)
    srd(a, 80, 28, 256)

def k1_compute(a, tail_hook=None, mid_hook=None):
    srd(a, 32, 8, 1835008)
    a.e("s_setprio 3")
    a.e(f"""v_lshrrev_b32 v4, 4, v0
    v_xor_b32 v4, v4, v3
    v_mul_u32_u24 v5, 896, v2
    v_lshl_add_u32 v12, v4, 4, v5
    v_xor_b32 v4, 4, v4
    v_lshl_add_u32 v13, v4, 4, v5
    s_lshl_b32 s64, s60, 2
    s_add_u32 s64, s64, s62            ; tt
    s_mul_i32 s72, s64, {32*896}
    s_lshl_b32 s73, s63, 7
    s_mul_i32 s74, s62, 28672""")
    def issue_x(c):
        a.e(f"s_add_u32 s6, s72, s73")
        for n in range(4):
            a.e(f"""s_add_u32 m0, s74, {c*4096 + n*1024}
            s_add_u32 s5, s6, {n*8*896}
            buffer_load_dwordx4 v{12 + (n&1)}, s[32:35], s5 offen lds""")
        a.e("s_add_u32 s73, s73, 128\ns_cmp_eq_u32 s73, 896\ns_cselect_b32 s73, 0, s73")
    XU = int(os.environ.get('XU', 4))
    for c in range(XU): issue_x(c)
    a_addr_setup(a, 1, 0, 5, 6)
    a.e(f"""v_xor_b32 v2, 32, v1
    v_xor_b32 v3, 64, v1
    v_xor_b32 v4, 0x60, v1
    v_mov_b32 v200, v1
    s_cmp_lg_u32 s61, 3
    s_cbranch_scc1 K1_NJ3
    v_and_b32 v1, 0x1fff, v1
    v_xor_b32 v2, 64, v1
    v_add_u32 v3, 0x2000, v1
    v_add_u32 v4, 0x2000, v2
    K1_NJ3:
    v_and_b32 v5, 31, v0
    v_bfe_u32 v6, v5, 1, 3
    v_lshrrev_b32 v7, 5, v0
    v_xor_b32 v6, v6, v7
    v_lshlrev_b32 v8, 7, v5
    v_lshl_add_u32 v8, v6, 4, v8
    v_add_u32 v8, s74, v8
    v_xor_b32 v9, 32, v8
    v_xor_b32 v10, 64, v8
    v_xor_b32 v11, 0x60, v8
    v_mov_b32 v5, 0
    v_mov_b32 v6, 0
    v_mov_b32 v7, 0
    v_mov_b32 v14, 0
    v_lshlrev_b32 v15, 3, v0
    v_lshlrev_b32 v0, 4, v0
    s_mov_b32 s77, 0x3f803f80
    s_mov_b32 s78, 0xffff0000
    s_mov_b32 s75, {f32(-LOG2E)}
    s_mov_b32 s76, {f32(LOG2E * 28 ** -0.5)}
    s_mul_i32 s65, s64, {144*1024}
    s_add_u32 s65, s65, {WS_ACT}
    s_add_u32 s5, s61, 24
    s_lshl_b32 s6, s61, 1
    s_sub_u32 s6, s6, 7
    s_cmp_lt_u32 s61, 4
    s_cselect_b32 s5, s5, s6
    s_lshl_b32 s5, s5, 12
    s_add_u32 s66, s65, s5
    s_sub_u32 s65, s66, 4096           ; act base sg0 (ffn only)
    s_mul_i32 s67, s64, {112*256}
    s_lshl_b32 s5, s61, 13             ; j*32 cgs*256
    s_add_u32 s67, s67, s5
    s_add_u32 s68, s67, 4096
    s_lshl_b32 s71, s64, 12
    s_add_u32 s71, s71, {WS_KV}""")
    for c in range(7):
        left = min(XU - 1, 6 - c)
        a.e(f"s_waitcnt vmcnt({4*left})")
        for s in range(4):
            n = 4 * c + s
            a.e(f"ds_read_b128 v[{X0+4*n}:{X0+4*n+3}], v{8+s} offset:{c*4096}")
        if c + XU < 7: issue_x(c + XU)
        for s in range(4):
            a.e(f"s_waitcnt lgkmcnt({3-s})")
            for t in range(4):
                r = X0 + 16 * c + 4 * s + t
                a.e(f"v_dot2_f32_bf16 v{5 if t&1 else 7}, v{r}, s77, v{5 if t&1 else 7}")
                a.e(f"v_dot2_f32_bf16 v{6 if t&1 else 14}, v{r}, v{r}, v{6 if t&1 else 14}")
    a.stamp(2)
    a.e("s_barrier")
    a.stamp(3)
    wa = Win([1, 2, 3, 4])
    def reads_sg0(n):
        c, s = divmod(n, 4)
        fa, oa = wa.off(WSLOT[c] * SLOT)
        g = []
        for t in range(4):
            b = FR + 16 * (n & 1) + 4 * t
            rd = [f"ds_read_b64_tr_b16 v[{b+2*u}:{b+2*u+1}], v{1+t} offset:{oa + s*2048 + u*512}" for u in range(2)]
            g.append((fa if t == 0 else []) + rd)
        return g
    def norm(n, t):
        r = X0 + 4 * n + t; T = 192 + 2 * t
        return [f"v_lshlrev_b32 v{T}, 16, v{r}", f"v_and_b32 v{T+1}, s78, v{r}",
                f"v_fma_f32 v{T}, v{T}, v12, v13", f"v_fma_f32 v{T+1}, v{T+1}, v12, v13",
                f"v_cvt_pk_bf16_f32 v{r}, v{T}, v{T+1}"]
    def reads_pair(n, e, t):
        c, s = divmod(n, 4)
        fa, oa = wa.off(VSLOT[c] * SLOT)
        b = FR + 8 * (n & 3) + 4 * e
        return fa + [f"ds_read_b64_tr_b16 v[{b+2*u}:{b+2*u+1}], v{1+t} offset:{oa + s*2048 + u*512}" for u in range(2)]
    C = Counted(a)
    seq = []
    for g in reads_sg0(0): seq += g
    seq += [x.strip() for x in f"""v_add_f32 v5, v5, v7
    v_add_f32 v6, v6, v14
    v_mov_b32 v8, v5
    v_mov_b32 v9, v6
    v_permlane32_swap_b32 v5, v8
    v_permlane32_swap_b32 v6, v9
    v_add_f32 v5, v5, v8
    v_add_f32 v6, v6, v9
    v_mul_f32 v5, {f32(1/448)}, v5
    v_mul_f32 v6, {f32(1/448)}, v6
    v_fma_f32 v6, -v5, v5, v6
    v_max_f32 v6, 0, v6
    v_cvt_pk_bf16_f32 v5, v5, v5
    v_cvt_pk_bf16_f32 v6, v6, v6
    v_lshlrev_b32 v5, 16, v5
    v_lshlrev_b32 v6, 16, v6
    v_add_f32 v6, {f32(1e-5)}, v6
    v_cvt_pk_bf16_f32 v6, v6, v6
    v_lshlrev_b32 v6, 16, v6
    v_sqrt_f32 v6, v6
    v_cvt_pk_bf16_f32 v6, v6, v6
    v_lshlrev_b32 v6, 16, v6
    v_rcp_f32 v12, v6
    v_mul_f32 v13, -v5, v12""".split("\n")]
    nrm = [norm(0, t) for t in range(4)]
    for i in range(5):
        for t in range(4): seq.append(nrm[t][i])
    for n in range(28):
        c = n // 4
        bar = (n % 4 == 3) and (c % 2 == 0)
        nxt = reads_sg0(n + 1) if (n < 27 and not bar) else None
        nl = v_pre() if n == 27 else []
        if n < 27:
            nn = [norm(n + 1, t) for t in range(4)]
            for p in (0, 2):
                for i in range(5): nl += [nn[p][i], nn[p + 1][i]]
        for t in range(4):
            fa = FR + 16 * (n & 1) + 4 * t
            if bar and t == 2: seq.append("DRAIN")
            elif t % 2 == 0: seq.append(f"WAIT v[{fa+4}:{fa+7}]")
            seq.append(mf(ACC[t], fa, X0 + 4 * n, n == 0))
            if not bar:
                if nxt: seq += nxt[t]
            elif t == 2:
                seq.append("s_barrier")
                if n < 27:
                    nxt = reads_sg0(n + 1); seq += nxt[0] + nxt[1]
                else:
                    wa.cur = 4 * SLOT
                    seq += ["STAMP5", f"v_add_u32 v1, {4*SLOT}, v200", "v_xor_b32 v2, 32, v1", "v_xor_b32 v3, 64, v1", "v_xor_b32 v4, 0x60, v1"]
                    seq += reads_pair(0, 0, 0) + reads_pair(0, 1, 1) + reads_pair(1, 0, 0) + reads_pair(1, 1, 1)
            elif t == 3 and n < 27:
                seq += nxt[2] + nxt[3]
            seq += nl[len(nl) * t // 4: len(nl) * (t + 1) // 4]
    C.emit(seq)
    def pair_phase(accs, tiles, next_tiles, first):
        groups = []
        for n in range(28):
            for e in range(2):
                fa = FR + 8 * (n & 3) + 4 * e
                g = [f"WAIT v[{fa+4}:{fa+7}]"] if e == 0 else []
                g.append(mf(accs[e], fa, X0 + 4 * n, n == 0))
                if first and n == 0: g += reads_pair(2, e, tiles[e])
                if n + 3 < 28: g += reads_pair(n + 3, e, tiles[e])
                elif next_tiles is not None: g += reads_pair(n + 3 - 28, e, next_tiles[e])
                groups.append(g)
        return groups
    save = (wa.cur, list(C.pend), None)
    def variant(kind):
        wa.cur = save[0]; C.pend = list(save[1])
        g2 = pair_phase([ACC[4], ACC[5]], [0, 1], [2, 3], True)
        g3 = pair_phase([ACC[6], ACC[7]], [2, 3], None, False)
        if B8:
            b8 = B8 + {"ffn": int(os.environ.get('B8F', 50)), "q": int(os.environ.get('B8Q', 46)), "kv": 0}[kind]
            gg = g2 if b8 < 56 else g3
            gg[b8 % 56] = gg[b8 % 56] + ["s_barrier"]
            rs = ring_setup()
            assert QF_AT < 30
            for i in range(10): g2[30 + i] = g2[30 + i] + rs[len(rs)*i//10: len(rs)*(i+1)//10]
            assert kind == "kv" or b8 >= 80
        if kind == "ffn":
            f2 = sum((ffn_epi(ACC[t], 65, t * 1024) for t in range(3)), [])
            f3 = ffn_epi(ACC[3], 65, 3072)
        elif kind == "q":
            f2 = sum((q_epi(ACC[t], t, 4 + t) for t in range(4)), []); f3 = []
        else:
            ve = v_epi(ACC[3])
            f2 = q_epi(ACC[0], 0, 1) + ve[:-4] + k_epi(ACC[2]) + ve[-4:] + q_epi(ACC[1], 2, 3); f3 = []
        f3 = f3 + ffn_epi(ACC[4], 66, 0) + ffn_epi(ACC[5], 66, 1024)
        def ilv(groups, fill):
            units = []
            i = 0
            while i < len(fill):
                if fill[i].startswith("WAIT"): units.append(fill[i:i+2]); i += 2
                else: units.append([fill[i]]); i += 1
            out = []; k = 0
            for gi, g in enumerate(groups):
                out += g
                tgt = (len(units) * (gi + 1)) // len(groups)
                for u in units[k:tgt]: out += u
                k = tgt
            return out
        seq = [nonce_load(14)] + (g2[0] + g2[1] + g2[2] + ilv(g2[3:56], f2) if kind == "ffn" else ilv(g2[:QD], f2))
        if kind != "ffn":
            pre = ["s_lshl_b32 s5, s60, 11", "s_lshl_b32 s6, s61, 9", "s_add_u32 s5, s5, s6", "s_lshl_b32 s6, s62, 7",
                   "s_add_u32 s5, s5, s6", f"s_add_u32 s79, s5, {FL_Q}"]
            pub = ["STAMP8", "s_waitcnt vmcnt(0)"] + nonce_check(14, 4) + ["s_mov_b64 exec, 1",
                   "buffer_store_dword v14, off, s[52:55], s79 sc1", "s_mov_b64 exec, -1", "STAMP9"] + (["s_barrier"] if kind == "q" else [])
            seq += ["STAMP4"] + ilv(g2[QD:QD+6], pre)
            for gi in range(QD+6, 56):
                if gi == QF_AT: seq += pub
                seq += g2[gi]
            if QF_AT >= 56: seq += pub
        seq += ["STAMP6"]
        lead = 1 if kind == "ffn" else 4
        for g in g3[:lead]: seq += g
        seq += ilv(g3[lead:], f3)
        C.emit(seq)
        a.stamp(7)
        e0 = ffn_epi(ACC[6], 66, 2048); e1 = ffn_epi(ACC[7], 66, 3072)
        a.e("\n".join(e0 + e1))
        a.e("s_branch K1_CDONE")
    hist = list(a.hist)
    a.e("s_cmp_lt_u32 s61, 4\ns_cbranch_scc1 K1_QKV")
    variant("ffn")
    a.label("K1_QKV"); a.hist = list(hist)
    a.e("s_cmp_eq_u32 s61, 3\ns_cbranch_scc1 K1_KV")
    variant("q")
    a.label("K1_KV"); a.hist = list(hist)
    variant("kv")
    a.label("K1_CDONE")

def k1_loader(a):
    srd(a, 44, 12, 25088)
    srd(a, 48, 14, 25088)
    srd(a, 32, 20, 448*1792*2)
    srd(a, 56, 22, 448*1792*2)
    a.e(f"""s_sub_u32 s62, s62, 4
    s_cmp_ge_u32 s61, 4
    s_cselect_b32 s36, s20, s10
    s_cselect_b32 s37, s21, s11
    s_cselect_b32 s40, s22, s10
    s_cselect_b32 s41, s23, s11
    s_mov_b32 s38, {448*448*2}
    s_mov_b32 s64, 896
    s_cselect_b32 s38, {448*1792*2}, s38
    s_cselect_b32 s64, 3584, s64
    s_cselect_b32 s5, 0, 128
    s_mov_b32 s39, 0x20000
    s_mov_b32 s42, s38
    s_mov_b32 s43, 0x20000
    s_sub_u32 s6, s61, 4
    s_cmp_ge_u32 s61, 4
    s_cselect_b32 s6, s6, s61
    s_lshl_b32 s65, s6, 8
    s_add_u32 s7, s65, 128
    s_lshl_b32 s6, s61, 7
    s_add_u32 s6, s6, {24*128}
    s_cmp_ge_u32 s61, 4
    s_cselect_b32 s67, s7, s6
    s_mul_i32 s7, s62, s64
    s_lshl_b32 s7, s7, 4
    s_add_u32 s65, s65, s7
    s_add_u32 s66, s65, s5              ; B sg0
    s_mul_i32 s7, s62, {16*3584}
    s_add_u32 s67, s67, s7              ; sg1
    s_lshl_b32 s69, s64, 3
    s_lshl_b32 s70, s64, 6
    s_lshl_b32 s73, s62, 11
    s_mul_i32 s74, s62, {16*56}         ; kv row base
    s_mov_b32 s71, s63
    s_mov_b32 s72, s63
    v_lshrrev_b32 v4, 1, v3             ; ps
    v_and_b32 v5, 2, v2
    v_xor_b32 v4, v4, v5                ; tA
    v_xor_b32 v5, 1, v4                 ; tB
    v_and_b32 v6, 1, v3
    v_mul_lo_u32 v7, v2, s64
    v_lshl_add_u32 v7, v6, 4, v7
    v_lshl_add_u32 v10, v4, 5, v7
    v_lshl_add_u32 v11, v5, 5, v7
    v_mul_u32_u24 v7, 3584, v2
    v_lshl_add_u32 v7, v6, 4, v7
    v_lshl_add_u32 v8, v4, 5, v7
    v_lshl_add_u32 v9, v5, 5, v7
    v_mul_u32_u24 v7, 56, v2
    v_and_b32 v6, 3, v3
    v_lshl_add_u32 v12, v6, 4, v7       ; kv voff
    v_cmp_gt_u32 s[76:77], 2, v4
    v_cmp_le_u32 s[78:79], 2, v4""")
    def adv(s): a.e(f"s_add_u32 s{s}, s{s}, 1\ns_cmp_eq_u32 s{s}, 7\ns_cselect_b32 s{s}, 0, s{s}")
    lab = [0]
    def issue_w(c):
        base = WSLOT[c] * SLOT; lab[0] += 1; L = lab[0]
        a.e(f"""s_mul_i32 s7, s71, s70
        s_add_u32 s5, s65, s7
        s_add_u32 s6, s66, s7
        s_cmp_eq_u32 s61, 3
        s_cbranch_scc1 K1_VS{L}
        s_add_u32 m0, s73, {base}
        s_add_u32 s7, s5, s69
        buffer_load_dwordx4 v10, s[36:39], s5 offen lds
        s_add_u32 m0, s73, {base + 1024}
        s_add_u32 s3, s6, s69
        buffer_load_dwordx4 v10, s[36:39], s7 offen lds
        s_add_u32 m0, s73, {base + 8192}
        s_nop 0
        buffer_load_dwordx4 v11, s[40:43], s6 offen lds
        s_add_u32 m0, s73, {base + 8192 + 1024}
        s_nop 0
        buffer_load_dwordx4 v11, s[40:43], s3 offen lds
        s_branch K1_VE{L}""")
        a.label(f"K1_VS{L}")
        a.e(f"""s_mul_i32 s7, s71, {64*56}
        s_add_u32 s7, s7, s74
        s_add_u32 m0, s73, {base}
        s_add_u32 s3, s5, s69
        buffer_load_dwordx4 v10, s[36:39], s5 offen lds
        s_add_u32 m0, s73, {base + 1024}
        s_add_u32 s4, s7, {8*56}
        buffer_load_dwordx4 v10, s[36:39], s3 offen lds""")
        for n in range(2):
            a.e(f"""s_add_u32 m0, s73, {base + 8192 + n*1024}
            s_mov_b64 exec, s[76:77]
            buffer_load_dwordx4 v12, s[44:47], s{7 if n == 0 else 4} offen lds
            s_mov_b64 exec, s[78:79]
            buffer_load_dwordx4 v12, s[48:51], s{7 if n == 0 else 4} offen lds""")
        a.e("s_mov_b64 exec, -1")
        a.label(f"K1_VE{L}")
        adv(71)
    def issue_v(c):
        base = VSLOT[c] * SLOT
        a.e(f"""s_mul_i32 s5, s72, {64*3584}
        s_add_u32 s5, s5, s67
        s_add_u32 m0, s73, {base}
        s_add_u32 s7, s5, {8*3584}
        buffer_load_dwordx4 v8, s[32:35], s5 offen lds
        s_add_u32 m0, s73, {base + 1024}
        s_nop 0
        buffer_load_dwordx4 v8, s[32:35], s7 offen lds
        s_add_u32 m0, s73, {base + 8192}
        s_nop 0
        buffer_load_dwordx4 v9, s[56:59], s5 offen lds
        s_add_u32 m0, s73, {base + 8192 + 1024}
        s_nop 0
        buffer_load_dwordx4 v9, s[56:59], s7 offen lds""")
        adv(72)
    def w3(n, n3):
        L = newlab("W3")
        a.e(f"s_cmp_eq_u32 s61, 3\ns_cbranch_scc1 {L}\ns_waitcnt vmcnt({n})\n{L}:\ns_waitcnt vmcnt({n3})")
    issue_w(0)
    a.e(f"""s_lshl_b32 s3, s2, 2
    s_xor_b32 s3, s3, 3
    s_mov_b32 s4, {FL_N}
    s_cmp_lg_u32 s3, s62
    s_cbranch_scc1 F_NN
    buffer_load_dword v20, off, s[52:55], s4 sc1
    s_waitcnt vmcnt(0)
    v_add_u32 v20, 1, v20
    v_or_b32 v20, 0x80000000, v20
    s_mov_b64 exec, 1
    buffer_store_dword v20, off, s[80:83], 0 sc1
    buffer_store_dword v20, off, s[52:55], s4 sc1
    s_mov_b64 exec, -1
    s_branch F_NN2
    F_NN:
    s_waitcnt vmcnt(0)
    F_NN2:""")
    issue_w(1); issue_w(2)
    if os.environ.get("TLB"):
        a.e(f"""s_lshl_b32 s4, s62, 16
        v_lshlrev_b32 v21, 18, v0
        v_add_u32 v21, 0xff80, v21
        buffer_load_dword v22, v21, s[52:55], s4 offen
        s_add_u32 s4, s4, {FL}
        buffer_load_dword v22, off, s[52:55], s4 offset:4032""")
    a.e("s_barrier")
    issue_w(3)
    w3(4, 6)
    a.e("s_barrier")
    issue_w(4); issue_w(5); issue_w(6); issue_v(0)
    w3(12, 16)
    a.e("s_barrier")
    issue_v(1); issue_v(2); issue_v(3); issue_v(4)
    if PFW == 3: wprefetch(a, 20)
    else: a.e("s_waitcnt vmcnt(20)")
    a.e("s_barrier")
    a.e(nonce_load(14))
    issue_v(5); issue_v(6)
    a.e("v_lshlrev_b32 v0, 4, v0")
    a.e("\n".join(ring_setup(0)))
    a.e("v_lshrrev_b32 v0, 4, v0\ns_waitcnt vmcnt(0)\ns_barrier")
    tile_np(a, 4, 5)
    a.e("s_cbranch_scc1 F_NR\ns_cmp_ge_u32 s61, 3\ns_cbranch_scc1 F_NB\ns_barrier\nF_NB:")
    for k in range(6): a.e("\n".join(wd_load(k)))
    a.label("F_NR")
    a.e("\n".join(nonce_check(14, 4)))

PFW = int(os.environ.get("PFW", 0))
def tile_np(a, d, t):
    a.e(f"""s_and_b32 s{t}, s61, 7
    s_cmp_lt_u32 s61, 8
    s_cselect_b32 s{t+1}, 3, 7
    s_cmp_gt_u32 s{t}, s{t+1}
    s_subb_u32 s{d}, s{t}, 0
    s_cmp_eq_u32 s{t}, s{t+1}""")

def wprefetch(a, n):
    tile_np(a, 68, 4)
    a.e("s_cbranch_scc1 F_PW0")
    srd(a, 84, 24, 1792*448*2)
    srd(a, 44, 16, 448*448*2)
    a.e(f"""s_and_b32 s5, s60, 3
    s_lshl_b32 s5, s5, 2
    s_add_u32 s5, s5, s62
    s_lshl_b32 s68, s68, 7
    s_mul_i32 s6, s5, {112*896}
    s_add_u32 s6, s6, s68
    s_mul_i32 s7, s5, {28*896}
    s_add_u32 s7, s7, s68
    v_lshrrev_b32 v21, 1, v0
    v_min_u32 v21, 27, v21
    v_mul_u32_u24 v21, 896, v21
    v_and_b32 v22, 1, v0
    v_lshl_add_u32 v21, v22, 6, v21
    s_bfm_b64 exec, 56, 0""")
    for i in range(4):
        a.e(f"buffer_load_dword v22, v21, s[84:87], s6 offen\ns_add_u32 s6, s6, {28*896}")
    a.e(f"""buffer_load_dword v22, v21, s[44:47], s7 offen
    s_mov_b64 exec, -1
    s_waitcnt vmcnt({n+5})
    s_branch F_PW1
    F_PW0:
    s_waitcnt vmcnt({n})
    F_PW1:""")
```

```python
from asmlib import *
from k1 import WS_Q, WS_KV, WS_ACT, WS_WF, WS_P, WS_SIZE, srd, f32, SLOT, FL_Q, poll, nonce_check, SPIN, SLP, B8, LAY

Q0, O0, S0, P0, KV0, KS = 16, 48, 112, 144, 160, 224
MOFF = 40.0
PRIO = int(os.environ.get("PRIO", 2))
FLAG = 0 * SLOT
PART = 0

def mf(d, x, y, c):
    return f"v_mfma_f32_32x32x16_bf16 v[{d}:{d+15}], v[{x}:{x+3}], v[{y}:{y+3}], " + (f"v[{c}:{c+15}]" if c is not None else "0")

def kload(b): return [f"buffer_load_dwordx4 v[{KV0+16*b+4*i}:{KV0+16*b+4*i+3}], v1, s[52:55], s21 offen offset:{1024*i} sc1" for i in range(2)]
def vload(b): return [f"buffer_load_dwordx4 v[{KV0+16*b+4*i}:{KV0+16*b+4*i+3}], v1, s[52:55], s21 offen offset:{1024*i} sc1" for i in (2, 3)]
ADV = ["s_add_u32 s20, s20, 4096", "s_and_b32 s20, s20, 0xffff", "s_add_u32 s21, s20, s22"]

def maxtree(a, src, dst, acc=None):
    r = list(range(src, src + 16))
    if acc is None:
        a.e(f"v_max3_f32 v{dst}, v{r[0]}, v{r[1]}, v{r[2]}"); r = r[3:]
        while len(r) >= 2:
            a.e(f"v_max3_f32 v{dst}, v{dst}, v{r[0]}, v{r[1]}"); r = r[2:]
        a.e(f"v_max_f32 v{dst}, v{dst}, v{r[0]}")
    else:
        while r:
            a.e(f"v_max3_f32 v{dst}, v{dst}, v{r[0]}, v{r[1]}"); r = r[2:]

def flagread(a, donelab):
    a.e(f"""v_mov_b32 v3, {FLAG}
    ds_read_b128 v[4:7], v3
    s_waitcnt lgkmcnt(0)
    v_or3_b32 v4, v4, v5, v6
    v_or_b32 v4, v4, v7
    v_readfirstlane_b32 s6, v4
    s_cmp_eq_u32 s6, 0
    s_cbranch_scc1 {donelab}""")

def attention(a, wave_sgpr=62):
    a.e(f"""v_lshlrev_b32 v1, 4, v0
    v_cmp_lt_u32 s[30:31], 31, v0
    s_mul_i32 s5, s61, 7
    v_lshrrev_b32 v2, 5, v0
    v_add_u32 v2, s5, v2
    v_and_b32 v3, 31, v0
    v_lshlrev_b32 v3, 4, v3
    s_mov_b32 s24, 0
    s_mov_b32 s19, 0x20000000
    s_cmp_eq_u32 s61, 3
    s_mov_b32 s18, {4*SLOT}
    s_cselect_b32 s18, {SLOT}, s18
    s_lshl_b32 s22, s62, 16
    s_add_u32 s22, s22, {WS_KV}
    s_lshr_b32 s23, s2, 3
    s_and_b32 s23, s23, 15
    s_lshl_b32 s23, s23, 12              ; rotation
    s_lshl_b32 s7, s60, 2
    s_and_b32 s5, s61, 3
    s_add_u32 s7, s7, s5
    s_lshl_b32 s7, s7, 12
    s_add_u32 s7, s7, {WS_KV}""")
    for f in range(2):
        a.e(f"""v_add_u32 v4, {2*f}, v2
        v_lshrrev_b32 v5, 2, v4
        v_lshl_add_u32 v{8+f}, v5, 10, v3
        v_and_b32 v5, 1, v4
        v_lshl_add_u32 v{8+f}, v5, 9, v{8+f}
        v_and_b32 v5, 2, v4
        v_lshl_add_u32 v{8+f}, v5, 2, v{8+f}""")
    if PRIO: a.e("s_setprio 3")
    a.e(f"""s_mov_b32 s27, 0                     ; o published
    s_mul_i32 s5, s61, 28
    v_bfe_u32 v4, v0, 2, 2
    v_mul_u32_u24 v4, 27, v4
    v_add_u32 v4, s5, v4
    v_lshrrev_b32 v4, 7, v4
    v_bfe_u32 v5, v0, 3, 1
    v_mul_u32_u24 v5, 3, v5
    v_or_b32 v4, v4, v5
    v_and_b32 v4, 3, v4
    v_and_b32 v5, 3, v0
    v_lshlrev_b32 v5, 7, v5
    v_lshl_add_u32 v4, v4, 9, v5
    v_bfe_u32 v12, v0, 2, 2
    v_lshl_add_u32 v12, v12, 11, v5
    s_lshl_b32 s29, s60, 11
    s_add_u32 s29, s29, {FL_Q}
    s_lshl_b32 s28, s62, 13
    s_add_u32 s28, s28, {FL_Q + 12*128}
    s_sub_u32 s5, s29, s28
    v_add_u32 v4, s5, v4
    v_cmp_lt_u32 vcc, 15, v0
    v_add_u32 v12, s28, v12
    v_add_u32 v4, s28, v4
    s_mov_b32 s28, 0
    v_cndmask_b32 v12, v12, v4, vcc""")
    def zero():
        for r in range(64): a.e(f"v_mov_b32 v{O0+r}, 0")
        for r in range(8): a.e(f"v_mov_b32 v{KV0+48+8+r}, 0")
    zero()
    if B8:
        a.e("s_waitcnt vmcnt(0)\ns_barrier")
    a.e(f"""s_mov_b32 s4, {SPIN}
    s_bfm_b64 exec, 28, 0
    s_branch K2_P1F
    K2_P1:
    s_sleep {SLP}
    K2_P1F:
    buffer_load_dword v6, v12, s[52:55], s28 offen sc1
    s_waitcnt vmcnt(0)""")
    a.e(f"""v_cmp_ne_u32 vcc, v6, v14
    s_sub_u32 s4, s4, 1
    s_mov_b32 s20, vcc_lo
    s_cmp_lt_u32 s20, 0x10000
    s_cbranch_scc1 K2_P1E
    s_cmp_lg_u32 s4, 0
    s_cbranch_scc1 K2_P1
    K2_P1E:""")
    a.stamp(2)
    if STAMP: a.e(f"s_sub_u32 s96, {SPIN}, s4\ns_add_u32 s96, s96, s88")
    a.e("s_cmp_eq_u32 s20, 0\ns_cbranch_scc1 K2_NK\ns_bfm_b64 exec, 16, 0\nbuffer_load_dword v6, v12, s[52:55], s28 offen sc1\nK2_NK:\ns_mov_b64 exec, -1")
    for i in range(4):
        a.e(f"""s_add_u32 s6, s62, {i}
        s_and_b32 s6, s6, 3
        s_lshl_b32 s26, s60, 2
        s_add_u32 s6, s6, s26
        s_mul_i32 s6, s6, {112*256}""")
        for f in range(4):
            a.e(f"buffer_load_dwordx2 v[{Q0+8*i+2*f}:{Q0+8*i+2*f+1}], v{8+(f&1)}, s[52:55], s6 offen offset:{(f>>1)*1024} sc1")
    a.e(f"""buffer_load_dwordx4 v[{KS}:{KS+3}], v1, s[52:55], s7 offen sc1
    buffer_load_dwordx4 v[{KS+4}:{KS+7}], v1, s[52:55], s7 offen offset:1024 sc1""")
    a.e("s_cmp_eq_u32 s20, 0\ns_cbranch_scc1 K2_GO")
    a.e("s_waitcnt vmcnt(18)\nv_cmp_ne_u32 vcc, v6, v14\ns_nop 0\ns_and_b32 s20, vcc_lo, 0xffff\ns_cbranch_scc0 K2_GO")
    poll(a, [(6, 12, 28)], 14, 4, lanes=16)
    a.label("K2_GO")
    a.stamp(3)
    def kv_prologue(b0=0, b1=4):
        if b0 == 0: a.e("s_mov_b32 s20, s23\ns_add_u32 s21, s20, s22")
        for b in range(b0, b1):
            if b: a.e("\n".join(ADV))
            a.e("\n".join(kload(b)))
            if b < 3: a.e("\n".join(vload(b)))
    kv_prologue(0, 2)
    a.e("s_waitcnt vmcnt(8)")
    SM = [S0, S0 + 16, P0, 232]
    for i in range(4):
        for r in (6, 7): a.e(f"v_cndmask_b32 v{Q0+8*i+r}, v{Q0+8*i+r}, 0, s[30:31]")
    for i in range(4): a.e(mf(SM[i], KS, Q0 + 8 * i, None))
    for i in range(4): a.e(mf(SM[i], KS + 4, Q0 + 8 * i + 4, SM[i]))
    kv_prologue(2, 4)
    for i in range(4): maxtree(a, SM[i], 4 + i)
    for i in range(4): a.e(f"v_mov_b32 v{8+i}, v{4+i}")
    for i in range(4): a.e(f"v_permlane32_swap_b32 v{4+i}, v{8+i}")
    for i in range(4): a.e(f"v_max_f32 v{4+i}, v{4+i}, v{8+i}")
    for i in range(4): a.e(f"v_add_f32 v{4+i}, {f32(MOFF)}, v{4+i}")
    for i in range(4):
        a.e(f"v_cvt_pk_bf16_f32 v{8+i}, -v{4+i}, 0")
    for i in range(4): a.e(f"v_cndmask_b32 v{Q0+8*i+6}, v{Q0+8*i+6}, v{8+i}, s[30:31]")
    a.label("K2_SETM")
    for r in range(8): a.e(f"v_mov_b32 v{P0+8+r}, 0")
    a.e("s_waitcnt vmcnt(12)")
    a.e(mf(S0, KV0, Q0, None)); a.e(mf(S0, KV0 + 4, Q0 + 4, S0))
    a.e(f"s_mov_b32 s25, {os.environ.get('ITER', 4)}")
    if PRIO == 1: a.e("s_setprio 0")
    a.stamp(4)
    a.fence()
    a.raw(".p2align 6")
    def body():
        for u in range(16):
            n = (u + 1) % 16; p = (u - 1) % 16
            Sn = S0 + 16 * ((u + 1) & 1); Sc = S0 + 16 * (u & 1)
            Pc = P0 + 8 * (u & 1); Pp = P0 + 8 * ((u - 1) & 1)
            kb = KV0 + 16 * (n // 4); vb = KV0 + 16 * (p // 4) + 8
            qn = Q0 + 8 * (n % 4); op = O0 + 16 * (p % 4)
            ms = [mf(Sn, kb, qn, None), mf(Sn, kb + 4, qn + 4, Sn), mf(op, vb, Pp, op), mf(op, vb + 4, Pp + 4, op)]
            pre = [[], [], [], []]; post = [[], [], [], []]
            if n % 4 == 0: pre[0].append("s_waitcnt vmcnt(12)")
            if p % 4 == 0: pre[2].append("s_waitcnt vmcnt(12)")
            pr = (lambda l: ["s_setprio 3"] + l + ["s_setprio 0"]) if PRIO == 1 else (lambda l: l)
            if u % 4 == 2: post[0] += ADV; post[1] += pr(kload(u // 4))
            if u % 4 == 0: post[3] += pr(vload(((u // 4) - 1) % 4))
            for g in range(4):
                a.e("\n".join(pre[g] + [ms[g]] + post[g]))
                for r in range(4): a.e(f"v_exp_f32 v{Sc+4*g+r}, v{Sc+4*g+r}")
                if g >= 1:
                    for h in range(2): a.e(f"v_cvt_pk_bf16_f32 v{Pc+2*(g-1)+h}, v{Sc+4*(g-1)+2*h}, v{Sc+4*(g-1)+2*h+1}")
                if g == 3:
                    if u == 15: a.e("s_sub_u32 s25, s25, 1\ns_cmp_lg_u32 s25, 0")
                    for h in range(2): a.e(f"v_cvt_pk_bf16_f32 v{Pc+6+h}, v{Sc+12+2*h}, v{Sc+12+2*h+1}")
    a.label("K2_LOOP")
    n0 = a.nops
    body()
    assert a.nops == n0, "unexpected nops in attention loop"
    a.e("s_cbranch_scc1 K2_LOOP")
    t = Asm(); t.hist = list(a.hist); sv = a;
    a2 = Asm(); a2.hist = list(a.hist)
    a.stamp(5)
    if PRIO: a.e("s_setprio 3")
    vb = KV0 + 48 + 8
    a.e(mf(O0 + 48, vb, P0 + 8, O0 + 48)); a.e(mf(O0 + 48, vb + 4, P0 + 12, O0 + 48))
    a.e("v_add_u32 v2, s18, v1" if LAY else f"v_add_u32 v2, {7*SLOT}, v1\ns_barrier")
    for i in (1, 2, 3):
        a.e(f"""s_add_u32 s6, s62, {i}
        s_and_b32 s6, s6, 3
        s_mul_i32 s6, s6, {3*4096}
        v_add_u32 v3, s6, v2""")
        for g in range(4):
            a.e(f"ds_write_b128 v3, v[{O0+16*i+4*g}:{O0+16*i+4*g+3}] offset:{PART + (i-1)*4096 + g*1024}")
    a.e(f"""s_mul_i32 s6, s62, {3*4096}
    v_add_u32 v3, s6, v2
    s_waitcnt lgkmcnt(0)
    s_barrier""")
    a.stamp(6)
    for i in range(3):
        for g in range(4):
            a.e(f"ds_read_b128 v[{O0+16+16*i+4*g}:{O0+16+16*i+4*g+3}], v3 offset:{PART + i*4096 + g*1024}")
    a.e(f"""s_lshl_b32 s6, s60, 2
    s_add_u32 s6, s6, s62
    s_mul_i32 s6, s6, 144
    s_lshl_b32 s7, s61, 1
    s_add_u32 s6, s6, s7
    s_lshl_b32 s6, s6, 10
    s_add_u32 s6, s6, {WS_ACT + 112*1024}""")
    for i in range(3):
        a.e(f"s_waitcnt lgkmcnt({8 - 4*i})")
        for r in range(16): a.e(f"v_add_f32 v{O0+r}, v{O0+r}, v{O0+16+16*i+r}")
    a.e(f"""v_mov_b32 v4, v{O0+12}
    v_mov_b32 v5, v{O0+12}
    v_mul_f32 v6, 0, v{O0}
    v_permlane32_swap_b32 v4, v5
    v_rcp_f32 v5, v5""")
    for r in range(1, 16): a.e(f"v_fmac_f32 v6, 0, v{O0+r}")
    a.e("v_mul_f32 v4, 0x5f800000, v5\nv_fmac_f32 v6, 0, v4")
    a.e(f"""v_cndmask_b32 v{O0+12}, v{O0+12}, v{O0+7}, s[30:31]
    v_and_b32 v7, 0x1fff, v14
    v_permlane32_swap_b32 v{O0+14}, v{O0+15}
    v_permlane32_swap_b32 v{O0+13}, v{O0+7}
    v_lshl_or_b32 v7, v7, 16, s19""")
    for r in range(16):
        if r % 8 != 7: a.e(f"v_mul_f32 v{O0+r}, v5, v{O0+r}")
    for i in range(8): a.e(f"v_cvt_pk_bf16_f32 v{O0+i}, v{O0+2*i}, v{O0+2*i+1 if i % 4 != 3 else 7}")
    a.e(f"""v_cmp_u_f32 vcc, v6, v6
    s_cmp_lg_u64 vcc, 0
    s_cselect_b32 s5, 1, 0
    s_andn2_b32 s5, s5, s24
    s_lshl_b32 s4, s62, 2
    s_add_u32 s4, s4, {FLAG}
    v_mov_b32 v3, s4
    v_mov_b32 v4, s5
    ds_write_b32 v3, v4
    s_or_b32 s4, s5, s27
    s_cmp_lg_u32 s4, 0
    s_cbranch_scc1 K2_OK
    buffer_store_dwordx4 v[{O0}:{O0+3}], v1, s[52:55], s6 offen sc1
    buffer_store_dwordx4 v[{O0+4}:{O0+7}], v1, s[52:55], s6 offen offset:1024 sc1
    s_mov_b32 s27, 1""")
    if int(os.environ.get('TV', 0)): a.e("s_waitcnt vmcnt(0)")
    a.label("K2_OK")
    a.stamp(7)
    a.e(f"""s_waitcnt lgkmcnt(0)
    s_barrier""")
    flagread(a, "K2_END")
    a.e("s_mov_b32 s24, 1\ns_mov_b32 s25, 16\ns_mov_b32 s21, s22\ns_waitcnt vmcnt(0)")
    for i in range(4):
        for r in (6, 7): a.e(f"v_cndmask_b32 v{Q0+8*i+r}, v{Q0+8*i+r}, 0, s[30:31]")
        a.e(f"v_mov_b32 v{4+i}, 0xff800000")
    a.fence()
    a.label("K2_MAXLOOP")
    a.e("\n".join(kload(0)))
    a.e("s_add_u32 s21, s21, 4096\ns_waitcnt vmcnt(0)")
    for i in range(4):
        a.e(mf(O0 + 16 * i, KV0, Q0 + 8 * i, None))
        a.e(mf(O0 + 16 * i, KV0 + 4, Q0 + 8 * i + 4, O0 + 16 * i))
    for i in range(4): maxtree(a, O0 + 16 * i, 4 + i, acc=True)
    a.e("s_sub_u32 s25, s25, 1\ns_cmp_lg_u32 s25, 0")
    a.fence()
    a.e("s_cbranch_scc1 K2_MAXLOOP")
    for i in range(4): a.e(f"v_mov_b32 v{8+i}, v{4+i}")
    for i in range(4): a.e(f"v_permlane32_swap_b32 v{4+i}, v{8+i}")
    for i in range(4): a.e(f"v_max_f32 v{4+i}, v{4+i}, v{8+i}")
    a.e("v_lshlrev_b32 v12, 2, v0")
    for i in range(4):
        a.e(f"""s_add_u32 s6, s62, {i}
        s_and_b32 s6, s6, 3
        s_lshl_b32 s6, s6, 10
        s_add_u32 s6, s6, {FLAG + 256}
        v_add_u32 v{8+i}, s6, v12
        s_lshl_b32 s7, s62, 8
        v_add_u32 v13, s7, v{8+i}
        ds_write_b32 v13, v{4+i}""")
    a.e("s_waitcnt lgkmcnt(0)\ns_barrier")
    for i in range(4):
        for w in range(4): a.e(f"ds_read_b32 v{O0+4*i+w}, v{8+i} offset:{w*256}")
    a.e("s_waitcnt lgkmcnt(0)")
    for i in range(4):
        a.e(f"v_max3_f32 v{4+i}, v{O0+4*i}, v{O0+4*i+1}, v{O0+4*i+2}\nv_max_f32 v{4+i}, v{4+i}, v{O0+4*i+3}")
    kv_prologue()
    zero()
    for i in range(4):
        m = 4 + i
        a.e(f"""v_cvt_pk_bf16_f32 v8, -v{m}, -v{m}
        v_lshlrev_b32 v8, 16, v8
        v_sub_f32 v9, -v{m}, v8
        v_cvt_pk_bf16_f32 v10, v9, v9
        v_lshlrev_b32 v10, 16, v10
        v_sub_f32 v10, v9, v10
        v_cvt_pk_bf16_f32 v8, -v{m}, v9
        v_cvt_pk_bf16_f32 v10, v10, 0
        v_cndmask_b32 v{Q0+8*i+6}, v{Q0+8*i+6}, v8, s[30:31]
        v_cndmask_b32 v{Q0+8*i+7}, v{Q0+8*i+7}, v10, s[30:31]""")
    a.fence()
    a.e("s_branch K2_SETM")
```

```python
from asmlib import *
from k1 import WS_Q, WS_KV, WS_ACT, WS_P, WS_SIZE, srd, f32, FL_H, poll, nonce_check, SPIN, SLP, SLOT, tile_np, RD, ring_off, wd_load, LAY, UP
from k2 import mf, flagread
D = int(os.environ.get('D3', 3)); NK = 28; TV = int(os.environ.get('TV', 2))
AC = 16; WO = 80; OR_ = 144; WF = 144; HR = 160; XR = [248, 252]; PS = 224
RST = 272
def ffn2(a, endlab):
    srd(a, 44, 16, 448*448*2); srd(a, 36, 26, 1835008)
    tile_np(a, 65, 4)
    a.e(f"""s_cselect_b32 s64, 1, 0
    s_lshl_b32 s69, s60, 13
    s_add_u32 s69, s69, {FL_H}
    s_lshl_b32 s5, s61, 9
    s_add_u32 s7, s69, s5
    s_lshl_b32 s5, s62, 7
    s_add_u32 s7, s7, s5
    s_lshr_b32 s3, s61, 3                ; half
    s_lshl_b32 s71, s63, 10
    s_lshl_b32 s63, s60, 1
    s_add_u32 s63, s63, s3               ; tp
    s_lshl_b32 s3, s3, 8
    s_add_u32 s69, s69, s3
    v_mov_b32 v1, v0
    v_lshrrev_b32 v0, 4, v0
    s_lshl_b32 s5, s62, 6
    v_add_u32 v15, s5, v0                ; tid
    s_mul_i32 s20, s63, {2*144*1024}
    s_add_u32 s20, s20, {WS_ACT}
    s_lshl_b32 s5, s62, 13
    s_add_u32 s66, s20, s5
    s_add_u32 s66, s66, {112*1024}
    s_add_u32 s67, s66, {144*1024}
    s_mul_i32 s5, s62, {NK*1024}
    s_add_u32 s20, s20, s5
    s_add_u32 s21, s20, {144*1024}
    s_lshl_b32 s5, s65, 7
    s_mul_i32 s68, s62, {112*896}
    s_add_u32 s68, s68, s5
    s_mul_i32 s5, s62, 7
    v_lshrrev_b32 v3, 1, v0
    v_min_u32 v3, 6, v3
    v_add_u32 v3, s5, v3                 ; sg
    v_lshrrev_b32 v4, 1, v3
    v_add_u32 v4, 4, v4
    v_subrev_u32 v5, 24, v3
    v_cmp_gt_u32 vcc, 24, v3
    v_cndmask_b32 v3, v5, v4, vcc        ; j
    v_and_b32 v4, 1, v0
    v_lshlrev_b32 v4, 7, v4
    v_lshl_add_u32 v3, v3, 9, v4
    s_lshl_b32 s5, s61, 9
    s_sub_u32 s5, s5, s3
    v_and_b32 v4, 3, v0
    v_lshl_add_u32 v4, v4, 7, s5
    v_cmp_lt_u32 vcc, 15, v0
    v_cndmask_b32 v3, v3, v4, vcc
    v_add_u32 v3, s69, v3
    s_mov_b32 s69, 0
    v_lshrrev_b32 v4, 3, v0
    v_and_b32 v5, 7, v0
    v_mul_u32_u24 v7, 896, v4
    v_lshl_add_u32 v7, v5, 4, v7         ; rows 0-7
    v_add_u32 v8, {8*896}, v7            ; rows 8-15
    s_mov_b32 s5, {(13<<0) | (18<<8) | (3<<16) | (4<<24)}
    v_lshlrev_b32 v5, 3, v4
    v_lshrrev_b32 v5, v5, s5
    v_and_b32 v5, 31, v5
    v_cmp_lt_u32 vcc, 3, v4
    v_cndmask_b32 v5, 0, v5, vcc
    v_sub_u32 v5, 24, v5
    v_mul_u32_u24 v5, 896, v5
    v_add_u32 v9, v7, v5
    v_lshrrev_b32 v4, 5, v0
    v_bfe_u32 v10, v0, 2, 2
    v_lshl_add_u32 v10, v4, 2, v10
    v_lshlrev_b32 v10, 7, v10
    v_bfe_u32 v4, v0, 4, 1
    v_lshl_add_u32 v10, v4, 5, v10
    v_and_b32 v4, 3, v0
    v_lshl_add_u32 v10, v4, 3, v10
    v_add_u32 v10, s74, v10
    v_add_u32 v241, {UP}, v10
    v_add_u32 v242, s20, v1
    v_add_u32 v243, s21, v1
    s_mov_b32 s20, s71
    s_waitcnt vmcnt(0)""")
    a.e("\n".join(nonce_check(14, 4)))
    a.e(f"""s_mov_b64 exec, 1
    buffer_store_dword v14, off, s[52:55], s7 sc1
    s_mov_b64 exec, -1
    s_setprio 0""")
    a.stamp(4)
    a.e(f"s_cmp_eq_u32 s64, 1\ns_cbranch_scc1 {endlab}")
    def wl(k):
        o = ring_off(k)
        if k < NK: return "\n".join(wd_load(k))
        if k % 2 == 0:
            return f"""s_add_u32 m0, s74, {o}
            s_add_u32 s22, s68, {16*896}
            buffer_load_dwordx4 v7, s[44:47], s68 offen lds
            s_add_u32 m0, s74, {o + 1024}
            s_nop 0
            buffer_load_dwordx4 v8, s[44:47], s68 offen lds"""
        return f"""s_add_u32 m0, s74, {o}
            s_nop 0
            buffer_load_dwordx4 v7, s[44:47], s22 offen lds
            s_add_u32 m0, s74, {o + 1024}
            s_nop 0
            buffer_load_dwordx4 v9, s[44:47], s68 offen lds
            s_add_u32 s68, s68, {28*896}"""
    def wreg(k): return WF + 8 * (k & 1) if k < NK else WO + 8 * (k - NK)
    def wr(k):
        for e in range(2):
            for u in range(2):
                b = wreg(k) + 4 * e + 2 * u
                a.e(f"ds_read_b64_tr_b16 v[{b}:{b+1}], v{10 if k % RD < 6 else 241} offset:{(k % RD % 6)*2048 + u*1024 + e*64}")
    def hl(k):
        r = HR + 8 * (k % D)
        return f"""buffer_load_dwordx4 v[{r}:{r+3}], v242, s[52:55], s20 offen sc1
        s_add_u32 s5, s20, 1024
        buffer_load_dwordx4 v[{r+4}:{r+7}], v243, s[52:55], s20 offen sc1
        s_cmp_eq_u32 s5, {28*1024}
        s_cselect_b32 s20, 0, s5"""
    if not LAY:
        for k in range(6, RD): a.e(wl(k))
    a.e(f"""v_lshrrev_b32 v2, 3, v15
    v_and_b32 v245, 7, v15
    v_mul_u32_u24 v244, 896, v2
    v_lshl_add_u32 v244, v245, 4, v244
    s_mul_i32 s23, s63, {64*896}
    s_lshl_b32 s5, s65, 7
    s_add_u32 s23, s23, s5
    s_add_u32 s24, s23, {32*896}
    buffer_load_dwordx4 v[{XR[0]}:{XR[0]+3}], v244, s[32:35], s23 offen
    buffer_load_dwordx4 v[{XR[1]}:{XR[1]+3}], v244, s[32:35], s24 offen""")
    poll(a, [(6, 3, 69)], 14, 4, lanes=20 if LAY else 14)
    a.stamp(5)
    q = []
    def issue(txt, tag):
        a.e(txt); q.extend([tag, tag])
    def wait(tags):
        last = max([i for i, t in enumerate(q) if t in tags], default=-1)
        if last >= 0:
            a.e(f"s_waitcnt vmcnt({len(q) - 1 - last})"); del q[:last + 1]
    def mms(w, h, first=False):
        for e in range(2):
            for t in range(2):
                acc = AC + 16 * (2 * t + e)
                a.e(mf(acc, w + 4 * e, h + 4 * t, None if first else acc))
    for k in range(D): issue(hl(k), ("h", k))
    nw = [6 if LAY else RD]
    wr(0)
    for k in range(NK + 8):
        wait([("h", k), ("w", k + 1)])
        a.e("s_waitcnt lgkmcnt(0)")
        if k < NK: mms(wreg(k), HR + 8 * (k % D), k == 0)
        if k + 1 < NK + 8: wr(k + 1)
        if k + D < NK: issue(hl(k + D), ("h", k + D))
        for _ in range(2):
            if nw[0] <= k + RD and nw[0] < NK + 8:
                issue(wl(nw[0]), ("w", nw[0])); nw[0] += 1
    for b in range(16): a.e(f"v_and_b32 v{WO+4*b+3}, 0xffff, v{WO+4*b+3}")
    a.stamp(6)
    a.e(f"""v_and_b32 v10, 31, v0
    v_mul_u32_u24 v10, {RST}, v10
    v_lshrrev_b32 v11, 5, v0
    v_lshl_add_u32 v10, v11, 4, v10
    v_add_u32 v10, s74, v10
    v_add_u32 v13, {UP}, v10
    v_mul_u32_u24 v11, {RST}, v2
    v_lshl_add_u32 v11, v245, 5, v11
    v_add_u32 v11, {SLOT}, v11
    v_add_u32 v12, {UP}, v11
    v_and_b32 v8, 0x1fff, v14
    v_or_b32 v8, 0x2000, v8
    v_lshlrev_b32 v8, 16, v8
    s_add_u32 s69, s66, 4096
    s_add_u32 s70, s67, 4096
    v_and_b32 v9, 3, v0
    v_lshlrev_b32 v9, 11, v9
    v_bfe_u32 v4, v0, 2, 1
    v_mul_u32_u24 v4, {144*1024}, v4
    v_add_u32 v9, v9, v4""")
    def pwrite(nb):
        for t in range(2):
            for e in range(2):
                for g in range(4):
                    acc = AC + 16 * (2 * t + e) + 4 * g
                    a.e(f"ds_write_b128 v{10+3*t}, v[{acc}:{acc+3}] offset:{e*128 + g*32}")
        a.e("s_waitcnt lgkmcnt(0)" + "\ns_barrier" * nb)
        for i in range(2):
            for w in range(4):
                for h in range(2):
                    r = AC + 32 * i + 8 * w + 4 * h
                    a.e(f"ds_read_b128 v[{r}:{r+3}], v{11+i} offset:{w * 12288 + h * 16}")
    pwrite(1 if LAY else 2)
    for i in range(2):
        for r in range(4):
            a.e(f"v_lshlrev_b32 v{PS+8*i+2*r}, 16, v{XR[i]+r}\nv_and_b32 v{PS+8*i+2*r+1}, 0xffff0000, v{XR[i]+r}")
    def psum(i):
        a.e(f"s_waitcnt lgkmcnt({8 - 8*i})")
        for w in range(4):
            for r in range(8): a.e(f"v_add_f32 v{PS+8*i+r}, v{PS+8*i+r}, v{AC+32*i+8*w+r}")
    psum(0); psum(1)
    a.e("s_setprio 3\ns_barrier")
    flagread(a, "K3_NOFB")
    a.e("s_barrier\n" * (3 if LAY else 4))
    a.label("K3_NOFB")
    a.stamp(7)
    a.e(f"""s_mov_b32 s4, {SPIN}
    s_brev_b32 s5, 0xffff
    s_branch {'K3_OS' if TV == 1 else 'K3_OQ'}
    K3_OP:
    s_sleep {os.environ.get('SLO', 1)}
    K3_OQ:
    s_mov_b64 exec, 0xff
    buffer_load_dword v6, v9, s[52:55], s66 offen offset:2044 sc1
    s_sub_u32 s4, s4, 1
    s_waitcnt vmcnt(0)
    v_xor_b32 v6, v6, v8
    v_and_b32 v6, s5, v6
    v_cmp_ne_u32 vcc, 0, v6
    s_mov_b64 exec, -1
    s_cmp_eq_u32 s4, 0
    s_cbranch_scc1 K3_OE
    s_cmp_lg_u64 vcc, 0
    s_cbranch_scc1 K3_OP
    K3_OS:""")
    for b in range(8):
        r = OR_ + 8 * b
        a.e(f"""buffer_load_dwordx4 v[{r}:{r+3}], v1, s[52:55], s{66 if b < 4 else 69} offen offset:{(b&3)*1024} sc1
        buffer_load_dwordx4 v[{r+4}:{r+7}], v1, s[52:55], s{67 if b < 4 else 70} offen offset:{(b&3)*1024} sc1""")
    for b in range(8):
        r = OR_ + 8 * b
        a.e(f"s_waitcnt vmcnt({2*(7-b)})")
        mms(WO + 8 * b, r, b == 0)
        a.e(f"v_xor_b32 v4, v{r+3}, v8\nv_xor_b32 v5, v{r+7}, v8")
        a.e(f"v_or_b32 v6, v4, v5" if b == 0 else "v_or3_b32 v6, v4, v5, v6")
    a.e(f"""v_and_b32 v6, s5, v6
    v_cmp_ne_u32 vcc, 0, v6
    s_cmp_lg_u64 vcc, 0
    s_cbranch_scc1 K3_OP
    K3_OE:""")
    a.stamp(8)
    a.fence()
    pwrite(1)
    for i in range(2):
        psum(i)
        for r in range(4): a.e(f"v_cvt_pk_bf16_f32 v{XR[i]+r}, v{PS+8*i+2*r}, v{PS+8*i+2*r+1}")
        a.e(f"buffer_store_dwordx4 v[{XR[i]}:{XR[i]+3}], v244, s[36:39], s{23+i} offen{os.environ.get('OSC', '')}")
```

```python
import re

TRANS = ("v_exp_f32", "v_log_f32", "v_rcp_f32", "v_rsq_f32", "v_sqrt_f32", "v_sin_f32", "v_cos_f32")

def regs_of(tok):
    tok = tok.strip().lstrip("-")
    m = re.fullmatch(r"\|?([vsa])(\d+)\|?", tok)
    if m: return {(m.group(1), int(m.group(2)))}
    m = re.fullmatch(r"\|?([vsa])\[(\d+):(\d+)\]\|?", tok)
    if m: return {(m.group(1), i) for i in range(int(m.group(2)), int(m.group(3)) + 1)}
    if tok in ("vcc", "vcc_lo"): return {("s", "vcc")}
    if tok == "exec": return {("s", "exec")}
    if tok == "m0": return {("s", "m0")}
    return set()

class Ins:
    def __init__(self, text):
        self.text = text
        t = text.split(";")[0].split(" op_sel")[0].strip()
        parts = t.split(None, 1)
        self.op = parts[0]
        ops = [o.strip() for o in parts[1].split(",")] if len(parts) > 1 else []
        if ops:
            ops[-1] = ops[-1].split()[0] if ops[-1].split() else ops[-1]
        self.ops = ops
        op = self.op
        self.mfma = op.startswith("v_mfma")
        self.valu = op.startswith("v_") and not self.mfma
        self.trans = op.replace("_e32", "").replace("_e64", "") in TRANS
        self.dot = op.startswith("v_dot")
        self.ds = op.startswith("ds_")
        self.vmem = op.startswith("buffer_") or op.startswith("global_")
        self.salu = op.startswith("s_")
        self.lds_dma = self.vmem and (" lds" in t or "_lds_" in op)
        self.w = set(); self.r = set(); self.srcc = set(); self.ab = set()
        R = [regs_of(o) for o in ops]
        if self.mfma:
            self.w = R[0]; self.ab = R[1] | R[2]; self.srcc = R[3]; self.r = self.ab | self.srcc
            self.passes = 8 if "32x32x16" in op else 4
        elif self.valu:
            nd = 1
            if op.startswith(("v_add_co", "v_sub_co", "v_addc_co", "v_subb_co")): nd = 2
            for x in R[:nd]: self.w |= x
            for x in R[nd:]: self.r |= x
            if op.startswith(("v_fmac", "v_dot2c")): self.r |= R[0]
            if op.startswith("v_permlane") and "swap" in op:
                self.w = R[0] | R[1]; self.r = R[0] | R[1]
            if op.startswith("v_cmpx"): self.w |= {("s", "exec")}
            if op.startswith("v_cndmask") and len(ops) == 3: self.r |= {("s", "vcc")}
        elif self.ds:
            if op.startswith(("ds_write", "ds_add_f32", "ds_add_u32")) :
                for x in R: self.r |= x
            else:
                self.w = R[0]
                for x in R[1:]: self.r |= x
        elif self.vmem:
            if "store" in op or self.lds_dma or ("atomic" in op):
                for x in R: self.r |= x
                if self.lds_dma: self.r |= {("s", "m0")}
            else:
                self.w = R[0]
                for x in R[1:]: self.r |= x
        elif self.salu:
            if op.startswith(("s_cmp", "s_cbranch", "s_branch", "s_waitcnt", "s_barrier", "s_nop", "s_endpgm", "s_setprio", "s_sleep")):
                for x in R: self.r |= x
            else:
                if R: self.w = R[0]
                for x in R[1:]: self.r |= x
                if "saveexec" in op: self.w |= {("s", "exec")}
        self.slots = 1
        if op == "s_nop": self.slots = int(ops[0]) + 1
        self.wide_store = self.vmem and "store" in op and ("x4" in op or "x3" in op)
        self.store_data = R[0] if (self.wide_store and op.startswith("buffer")) else (R[1] if self.wide_store else set())

def need(prev, cur):
    n = 0
    vw = {x for x in prev.w if x[0] in "va"}
    sw = {x for x in prev.w if x[0] == "s"}
    if prev.valu:
        if cur.mfma and vw & cur.r: n = max(n, 2)
        if prev.trans and cur.valu and not cur.trans and vw & cur.r: n = max(n, 1)
        if prev.trans and (cur.ds or cur.vmem) and vw & cur.r: n = max(n, 1)
        if cur.op.startswith(("v_readfirstlane", "v_readlane")) and vw & cur.r: n = max(n, 1)
        if cur.op.startswith("v_permlane") and vw & cur.r: n = max(n, 2)
        if "dpp" in cur.text or "quad_perm" in cur.text or "row_" in cur.text:
            if vw & cur.r: n = max(n, 2)
        if sw and cur.valu and sw & cur.r: n = max(n, 2)
        if sw and cur.vmem and sw & cur.r: n = max(n, 5)
        if sw and cur.salu and sw & cur.r: n = max(n, 1)
        if ("s", "exec") in sw and (cur.mfma or cur.op.startswith(("v_readlane", "v_readfirstlane", "v_permlane"))): n = max(n, 4)
        if prev.dot:
            if (cur.valu or cur.mfma or cur.ds or cur.vmem) and vw & (cur.r | cur.w):
                same_acc = cur.op == prev.op and not (vw & (regs_of(cur.ops[1]) | regs_of(cur.ops[2])))
                if not same_acc: n = max(n, 3)
    if prev.mfma:
        big = 12 if prev.passes == 8 else 8
        if cur.mfma:
            if prev.w & cur.ab: n = max(n, big)
            if prev.w & cur.srcc and not (prev.w == cur.srcc and prev.passes == cur.passes): n = max(n, big - 2)
            if prev.w & cur.w and not (prev.w == cur.srcc): n = max(n, big)
        elif cur.valu or cur.ds or cur.vmem:
            if prev.w & (cur.r | cur.w): n = max(n, big)
            if cur.valu and prev.srcc & cur.w: n = max(n, 7 if prev.passes == 8 else 3)
    if prev.salu and ("s", "m0") in prev.w and cur.lds_dma: n = max(n, 1)
    if prev.wide_store and prev.store_data & cur.w: n = max(n, 2)
    return n

import os
STAMP = bool(os.environ.get("STAMP"))
WS_DBG = 0x1800000
class Asm:
    def stamp(self, i):
        if not STAMP: return False
        if self.smap is not None and i < 10:
            if i not in self.smap: return False
            i = self.smap[i]
        self.e(f"s_memtime s[100:101]\ns_waitcnt lgkmcnt(0)\ns_mov_b32 s{88+i}, s100" if (i not in (10, 11) and not os.environ.get("PROBE")) else
               f"s_memrealtime s[100:101]\ns_waitcnt lgkmcnt(0)\ns_mov_b32 s{88+i}, s100")
        return True
    def dump(self, kidx, wave_sgpr, nw, wadd=0):
        if not STAMP: return
        self.smap = None; self.stamp(9); self.stamp(11)
        if os.environ.get("PROBE"):
            p = int(os.environ["PROBE"])
            if (wadd == 0) == (p < 10):
                p %= 10
                self.e(f"s_sub_u32 s4, s{88+p}, s88\ns_lshl_b32 s4, s4, 2\ns_min_u32 s4, s4, 100000\nPRB:\ns_sleep 8\ns_memrealtime s[100:101]\ns_waitcnt lgkmcnt(0)\ns_sub_u32 s5, s100, s99\ns_cmp_lt_u32 s5, s4\ns_cbranch_scc1 PRB")
            return
        if os.environ.get("HDBG"):
            idx = [1, 2, 4, 5, 6, 8, 9] if wadd == 0 else [2, 3, 4, 5, 7]
            base = 3 if wadd == 0 else 10
            self.e("s_mov_b64 exec, 1\ns_not_b32 s98, s98\nv_mov_b32 v4, s98\nv_mov_b32 v5, s99")
            self.e("buffer_atomic_umax v4, off, s[80:83], 0 offset:4\nbuffer_atomic_umax v5, off, s[80:83], 0 offset:8")
            for k, i in enumerate(idx):
                self.e(f"s_sub_u32 s100, s{88+i}, s88\nv_mov_b32 v{6+k}, s100\nbuffer_atomic_umax v{6+k}, off, s[80:83], 0 offset:{4*(base+k)}")
            return
        self.e(f"s_mul_i32 s100, s2, {nw}\ns_add_u32 s100, s100, s{wave_sgpr}\ns_add_u32 s100, s100, {wadd}\ns_lshl_b32 s100, s100, 6\ns_add_u32 s100, s100, {WS_DBG + kidx*0x40000}")
        self.e("s_nop 7\ns_nop 7\nv_mov_b32 v1, 0")
        for g in range(3):
            for r in range(4): self.e(f"v_mov_b32 v{4+r}, s{88+4*g+r}")
            self.e(f"buffer_store_dwordx4 v[4:7], v1, s[52:55], s100 offen offset:{16*g}")
    def __init__(self):
        self.lines = []
        self.hist = []
        self.nops = 0
        self.smap = None
    def raw(self, s):
        self.lines.append(s)
    def label(self, name, keep=False):
        self.lines.append(name + ":")
    def fence(self, n=12):
        worst = 0; dist = 0
        for p in reversed(self.hist):
            req = 12 if p.mfma else (5 if p.valu else 2 if p.wide_store else 1)
            worst = max(worst, req - dist)
            dist += p.slots
            if dist > 16: break
        if worst > 0: self.e(f"s_nop {worst-1}")
    def e(self, text):
        for t in text.strip().split("\n"):
            t = t.strip()
            if not t or t.startswith(";"): continue
            if t.endswith(":"):
                self.lines.append(t); continue
            cur = Ins(t)
            dist = 0; pad = 0
            for p in reversed(self.hist):
                pad = max(pad, need(p, cur) - dist)
                dist += p.slots
                if dist > 16: break
            if pad > 0:
                nop = Ins(f"s_nop {pad-1}")
                self.lines.append(f"    s_nop {pad-1}")
                self.hist.append(nop); self.nops += pad
            self.lines.append("    " + t)
            self.hist.append(cur)
            if len(self.hist) > 40: self.hist = self.hist[-24:]
    def text(self):
        return "\n".join(self.lines) + "\n"

def vr(a, n=1):
    return f"v{a}" if n == 1 else f"v[{a}:{a+n-1}]"
def sr(a, n=1):
    return f"s{a}" if n == 1 else f"s[{a}:{a+n-1}]"

def interleave(main, fill):
    out = []
    n = len(main); k = 0
    for i, g in enumerate(main):
        out += g
        tgt = (len(fill) * (i + 1)) // n
        out += fill[k:tgt]; k = tgt
    return out

def kd(name, vgpr, sgpr=102):
    return f""".p2align 6
.amdhsa_kernel {name}
  .amdhsa_next_free_vgpr {vgpr}
  .amdhsa_next_free_sgpr {sgpr}
  .amdhsa_accum_offset {(vgpr+3)//4*4}
  .amdhsa_group_segment_fixed_size 0
  .amdhsa_kernarg_size 96
  .amdhsa_user_sgpr_count 2
  .amdhsa_user_sgpr_kernarg_segment_ptr 1
  .amdhsa_system_sgpr_workgroup_id_x 1
  .amdhsa_float_denorm_mode_32 3
  .amdhsa_float_denorm_mode_16_64 3
.end_amdhsa_kernel
"""
```

```python
from asmlib import *
WS_Q, WS_KV, WS_ACT, WS_WF, WS_P = 0x0, 0x200000, 0x400000, 0xD00000, 0x1000000
WS_SIZE = 0x2000000
LOG2E = 1.4426950408889634
import struct
def f32(x): return "0x%08x" % struct.unpack("<I", struct.pack("<f", x))[0]
SC = " sc1" if os.environ.get("NOSC1") is None else ""

def srd(a, d, lo, size):
    a.e(f"s_mov_b32 s{d}, s{lo}\ns_mov_b32 s{d+1}, s{lo+1}\ns_mov_b32 s{d+2}, {size}\ns_mov_b32 s{d+3}, 0x20000")

SLOT = 16384
PF = os.environ.get("NOPF") is None
WSLOT = [7, 8, 9, 0, 1, 2, 3]
VSLOT = [4, 5, 6, 7, 8, 9, 0]
VT = 3 * SLOT
FL = 0x1400000
FL_Q, FL_N, FL_H, FL_R = FL, FL + 0x8000, FL + 0x10000, FL + 0x30000
B8 = int(os.environ.get('B8', 34))
SLP = int(os.environ.get('SLP', 4))
SPIN = 400000
QF_AT = int(os.environ.get("QF_AT", 26)); QD = int(os.environ.get("QD", 4))
_lab = [0]
def newlab(p):
    _lab[0] += 1; return f"{p}{_lab[0]}"
def nonce_load(v): return f"buffer_load_dword v{v}, off, s[80:83], 0 sc1"
def nonce_check(v, st):
    L = newlab("NC")
    return [f"v_readfirstlane_b32 s{st}, v{v}", f"s_cmp_lg_u32 s{st}, 0", f"s_cbranch_scc1 {L}E", f"s_mov_b32 s{st+1}, {SPIN}",
            f"{L}:", nonce_load(v), "s_waitcnt vmcnt(0)", f"v_readfirstlane_b32 s{st}, v{v}", f"s_cmp_lg_u32 s{st}, 0",
            f"s_cbranch_scc1 {L}E", f"s_sub_u32 s{st+1}, s{st+1}, 1", f"s_cmp_lg_u32 s{st+1}, 0", f"s_cbranch_scc1 {L}", f"{L}E:"]
def poll(a, loads, vn, st, first=None, lanes=64):
    L = newlab("PL")
    def ld():
        if lanes < 64: a.e(f"s_bfm_b64 exec, {lanes}, 0")
        for d, o, so in loads: a.e(f"buffer_load_dword v{d}, v{o}, s[52:55], s{so} offen sc1")
        a.e("s_waitcnt vmcnt(0)")
    a.e(f"s_mov_b32 s{st}, {SPIN}")
    if first:
        ld()
        if lanes < 64: a.e("s_mov_b64 exec, -1")
        first()
        if lanes < 64: a.e(f"s_bfm_b64 exec, {lanes}, 0")
        a.e(f"s_branch {L}C")
    else:
        a.e(f"s_branch {L}F")
    a.label(L)
    if SLP: a.e(f"s_sleep {SLP}")
    a.label(L + "F"); ld()
    a.label(L + "C")
    d0 = loads[0][0]
    a.e(f"v_xor_b32 v{d0}, v{d0}, v{vn}")
    for d, o, so in loads[1:]:
        a.e(f"v_xor_b32 v{d}, v{d}, v{vn}\nv_or_b32 v{d0}, v{d0}, v{d}")
    a.e(f"v_cmp_ne_u32 vcc, 0, v{d0}\ns_sub_u32 s{st}, s{st}, 1\ns_cmp_eq_u64 vcc, 0\ns_cbranch_scc1 {L}E\ns_cmp_lg_u32 s{st}, 0\ns_cbranch_scc1 {L}")
    a.label(L + "E")
    if lanes < 64: a.e("s_mov_b64 exec, -1")


RD = 12
LAY = int(os.environ.get('LAY', 0))
UP = (6 if LAY else 3) * SLOT
def ring_off(k):
    i = k % RD
    return i * 2048 if i < 6 else UP + (i - 6) * 2048
def wd_load(k):
    o = ring_off(k)
    return [f"s_add_u32 m0, s74, {o}", f"s_add_u32 s72, s73, {16*896}", "buffer_load_dwordx4 v12, s[40:43], s73 offen lds",
            f"s_add_u32 m0, s74, {o + 1024}", f"s_cmp_eq_u32 s72, {28*16*896}", "buffer_load_dwordx4 v13, s[40:43], s73 offen lds",
            "s_cselect_b32 s73, 0, s72"]
def ring_setup(skip=6):
    t = Asm(); srd(t, 40, 24, 1792*448*2); tile_np(t, 70, 4)
    t.e(f"""s_and_b32 s5, s60, 3
    s_mul_i32 s5, s5, 7
    s_lshl_b32 s6, s70, 2
    s_add_u32 s5, s5, s6
    s_cmp_ge_u32 s5, 28
    s_cselect_b32 s6, 28, 0
    s_sub_u32 s63, s5, s6
    s_add_u32 s5, s63, {skip}
    s_cmp_ge_u32 s5, 28
    s_cselect_b32 s6, 28, 0
    s_sub_u32 s5, s5, s6
    s_mul_i32 s73, s5, {16*896}
    s_mul_i32 s74, s62, 12288
    s_add_u32 s74, s74, {SLOT}
    s_lshl_b32 s5, s70, 7
    s_mul_i32 s6, s62, {448*896}
    s_add_u32 s5, s5, s6
    v_lshrrev_b32 v7, 7, v0
    v_mul_u32_u24 v7, 896, v7
    v_and_b32 v13, 0x70, v0
    v_add_u32 v7, v7, v13
    v_add_u32 v12, s5, v7
    v_add_u32 v13, {8*896}, v12""")
    return [l.strip() for l in t.lines]

class Win:
    def __init__(self, regs): self.regs = regs; self.cur = 0
    def off(self, addr, span=16384):
        fix = []
        if not (0 <= addr - self.cur and addr - self.cur + span <= 65536):
            new = min((addr // 16384) * 16384, 6 * 16384)
            d = new - self.cur
            for r in self.regs:
                fix.append(f"v_add_u32 v{r}, {d & 0xffffffff}, v{r}")
            self.cur = new
        return fix, addr - self.cur

def a_addr_setup(a, dst, lane, t1, t2):
    a.e(f"""v_bfe_u32 v{t1}, v{lane}, 4, 1
    v_lshlrev_b32 v{dst}, 13, v{t1}
    v_bfe_u32 v{t2}, v{lane}, 2, 2
    v_lshl_add_u32 v{dst}, v{t2}, 7, v{dst}
    v_and_b32 v{t2}, 2, v{t2}
    v_xor_b32 v{t1}, v{t1}, v{t2}
    v_lshl_add_u32 v{dst}, v{t1}, 5, v{dst}
    v_lshrrev_b32 v{t1}, 5, v{lane}
    v_lshl_add_u32 v{dst}, v{t1}, 10, v{dst}
    v_and_b32 v{t1}, 3, v{lane}
    v_lshl_add_u32 v{dst}, v{t1}, 3, v{dst}""")

X0 = 16
ACC = [128, 144, 160, 176, 192, 208, 128, 144]
FR = 224

def ffn_epi(A, sbase, imm):
    o = []
    for r in range(8): o.append(f"v_mul_f32 v{A+r}, s75, v{A+r}")
    for r in range(8): o.append(f"v_exp_f32 v{A+r}, v{A+r}")
    for r in range(8): o.append(f"v_add_f32 v{A+r}, 1.0, v{A+r}")
    for r in range(8): o.append(f"v_rcp_f32 v{A+r}, v{A+r}")
    for r in range(8): o.append(f"v_mul_f32 v{A+r}, v{A+r}, v{A+8+r}")
    for i in range(4): o.append(f"v_cvt_pk_bf16_f32 v{A+8+i}, v{A+2*i}, v{A+2*i+1}")
    o.append(f"buffer_store_dwordx4 v[{A+8}:{A+11}], v0, s[52:55], s{sbase} offen offset:{imm}{SC}")
    return o

def q_epi(A, cbA, cbB):
    o = []
    for i in range(8): o.append(f"v_cvt_pk_bf16_f32 v{A+i}, v{A+2*i}, v{A+2*i+1}")
    for g, cb in ((0, cbA), (1, cbB)):
        o.append(f"buffer_store_dwordx4 v[{A+4*g}:{A+4*g+3}], v0, s[52:55], s{67 + cb//4} offen offset:{(cb%4)*1024}{SC}")
    return o

def k_epi(A):
    o = []
    for r in range(16): o.append(f"v_mul_f32 v{A+r}, s76, v{A+r}")
    for i in range(8): o.append(f"v_cvt_pk_bf16_f32 v{A+i}, v{A+2*i}, v{A+2*i+1}")
    o += [f"v_cndmask_b32 v{A+6}, v{A+6}, v5, vcc", f"v_cndmask_b32 v{A+7}, v{A+7}, v6, vcc",
          f"buffer_store_dwordx4 v[{A}:{A+3}], v0, s[52:55], s71 offen{SC}",
          f"buffer_store_dwordx4 v[{A+4}:{A+7}], v0, s[52:55], s71 offen offset:1024{SC}"]
    return o

def v_pre():
    return ["v_cmp_lt_u32 vcc, 511, v0", "v_mov_b32 v5, 0x3f803f80", "v_mov_b32 v6, 0x3f80",
          "s_lshl_b32 s5, s62, 11", f"s_add_u32 s5, s5, {VT}",
          "v_bfe_u32 v8, v0, 4, 5", "v_lshlrev_b32 v8, 6, v8", "v_lshrrev_b32 v9, 9, v0",
          "v_lshl_add_u32 v8, v9, 3, v8", "v_add_u32 v8, s5, v8",
          "v_bfe_u32 v10, v0, 6, 2", "v_lshl_add_u32 v10, v9, 2, v10", "v_lshlrev_b32 v10, 6, v10",
          "v_bfe_u32 v11, v0, 8, 1", "v_lshl_add_u32 v10, v11, 5, v10", "v_bfe_u32 v11, v0, 4, 2",
          "v_lshl_add_u32 v10, v11, 3, v10", "v_add_u32 v10, s5, v10"]

def v_epi(A):
    o = []
    for i in range(8): o.append(f"v_cvt_pk_bf16_f32 v{A+i}, v{A+2*i}, v{A+2*i+1}")
    o += [f"v_cndmask_b32 v{A+6}, v{A+6}, v6, vcc", f"v_cndmask_b32 v{A+7}, v{A+7}, 0, vcc"]
    for g in range(4): o.append(f"ds_write_b64 v8, v[{A+2*g}:{A+2*g+1}] offset:{16*g}")
    for i in range(4): o.append(f"ds_read_b64_tr_b16 v[{A+8+2*i}:{A+9+2*i}], v10 offset:{i*512}")
    o += ["WAIT", f"buffer_store_dwordx4 v[{A+8}:{A+11}], v0, s[52:55], s71 offen offset:2048{SC}",
          "WAIT", f"buffer_store_dwordx4 v[{A+12}:{A+15}], v0, s[52:55], s71 offen offset:3072{SC}"]
    return o

def mf(acc, fa, fb, first):
    return f"v_mfma_f32_32x32x16_bf16 v[{acc}:{acc+15}], v[{fa}:{fa+3}], v[{fb}:{fb+3}], " + ("0" if first else f"v[{acc}:{acc+15}]")

class Counted:
    def __init__(self, a): self.a = a; self.pend = []
    def emit(self, seq):
        a = self.a
        for i, t in enumerate(seq):
            if t.startswith("WAIT"):
                rs = set(Ins(seq[i + 1]).r)
                if len(t) > 4: rs |= regs_of(t[5:])
                k = -1
                for idx, w in enumerate(self.pend):
                    if w & rs: k = idx
                if k >= 0:
                    left = min(len(self.pend) - 1 - k, 15)
                    a.e(f"s_waitcnt lgkmcnt({left})")
                    self.pend = self.pend[len(self.pend) - left:] if left else []
                continue
            if t == "DRAIN":
                a.e("s_waitcnt lgkmcnt(0)"); self.pend = []; continue
            if t.startswith("STAMP"):
                if a.stamp(int(t[5:])): self.pend = []
                continue
            if t.endswith(":"):
                a.e(t); continue
            ins = Ins(t)
            if ins.ds: self.pend.append(set(ins.w))
            a.e(t)

def k1_entry(a, endlab):
    a.e(f"""s_cmp_ge_u32 s2, 256
    s_cbranch_scc1 {endlab}
    s_load_dwordx16 s[8:23], s[0:1], 0
    s_load_dwordx8 s[24:31], s[0:1], 64""")
    if PF:
        a.e(f"""s_cmp_lt_u32 s2, {os.environ.get("PFLO", 192)}
        s_cbranch_scc1 F_NOPF
        s_getpc_b64 s[6:7]
        F_PC:
        v_lshlrev_b32 v1, 7, v0
        v_min_u32 v1, F_CODE_END-F_PC-4, v1
        global_load_dword v255, v1, s[6:7]
        F_NOPF:""")
    a.e(f"""
    v_lshrrev_b32 v1, 6, v0
    v_and_b32 v0, 63, v0
    s_and_b32 s3, s2, 7
    s_lshr_b32 s4, s2, 3
    v_readfirstlane_b32 s62, v1
    s_and_b32 s60, s3, 3
    s_lshl_b32 s60, s60, 2
    s_and_b32 s5, s4, 3
    s_add_u32 s60, s60, s5             ; mt
    s_lshr_b32 s61, s3, 2
    s_lshl_b32 s61, s61, 3
    s_lshr_b32 s6, s4, 2
    s_add_u32 s61, s61, s6             ; j
    s_lshl_b32 s5, s5, 1
    s_add_u32 s63, s5, s6
    s_cmp_ge_u32 s63, 7
    s_cselect_b32 s6, 7, 0
    s_sub_u32 s63, s63, s6
    v_lshrrev_b32 v2, 3, v0
    v_and_b32 v3, 7, v0                ; p
    s_waitcnt lgkmcnt(0)""")
    srd(a, 52, 30, WS_SIZE)
    srd(a, 80, 28, 256)

def k1_compute(a, tail_hook=None, mid_hook=None):
    srd(a, 32, 8, 1835008)
    a.e("s_setprio 3")
    a.e(f"""v_lshrrev_b32 v4, 4, v0
    v_xor_b32 v4, v4, v3
    v_mul_u32_u24 v5, 896, v2
    v_lshl_add_u32 v12, v4, 4, v5
    v_xor_b32 v4, 4, v4
    v_lshl_add_u32 v13, v4, 4, v5
    s_lshl_b32 s64, s60, 2
    s_add_u32 s64, s64, s62            ; tt
    s_mul_i32 s72, s64, {32*896}
    s_lshl_b32 s73, s63, 7
    s_mul_i32 s74, s62, 28672""")
    def issue_x(c):
        a.e(f"s_add_u32 s6, s72, s73")
        for n in range(4):
            a.e(f"""s_add_u32 m0, s74, {c*4096 + n*1024}
            s_add_u32 s5, s6, {n*8*896}
            buffer_load_dwordx4 v{12 + (n&1)}, s[32:35], s5 offen lds""")
        a.e("s_add_u32 s73, s73, 128\ns_cmp_eq_u32 s73, 896\ns_cselect_b32 s73, 0, s73")
    XU = int(os.environ.get('XU', 4))
    for c in range(XU): issue_x(c)
    a_addr_setup(a, 1, 0, 5, 6)
    a.e(f"""v_xor_b32 v2, 32, v1
    v_xor_b32 v3, 64, v1
    v_xor_b32 v4, 0x60, v1
    v_mov_b32 v200, v1
    s_cmp_lg_u32 s61, 3
    s_cbranch_scc1 K1_NJ3
    v_and_b32 v1, 0x1fff, v1
    v_xor_b32 v2, 64, v1
    v_add_u32 v3, 0x2000, v1
    v_add_u32 v4, 0x2000, v2
    K1_NJ3:
    v_and_b32 v5, 31, v0
    v_bfe_u32 v6, v5, 1, 3
    v_lshrrev_b32 v7, 5, v0
    v_xor_b32 v6, v6, v7
    v_lshlrev_b32 v8, 7, v5
    v_lshl_add_u32 v8, v6, 4, v8
    v_add_u32 v8, s74, v8
    v_xor_b32 v9, 32, v8
    v_xor_b32 v10, 64, v8
    v_xor_b32 v11, 0x60, v8
    v_mov_b32 v5, 0
    v_mov_b32 v6, 0
    v_mov_b32 v7, 0
    v_mov_b32 v14, 0
    v_lshlrev_b32 v15, 3, v0
    v_lshlrev_b32 v0, 4, v0
    s_mov_b32 s77, 0x3f803f80
    s_mov_b32 s78, 0xffff0000
    s_mov_b32 s75, {f32(-LOG2E)}
    s_mov_b32 s76, {f32(LOG2E * 28 ** -0.5)}
    s_mul_i32 s65, s64, {144*1024}
    s_add_u32 s65, s65, {WS_ACT}
    s_add_u32 s5, s61, 24
    s_lshl_b32 s6, s61, 1
    s_sub_u32 s6, s6, 7
    s_cmp_lt_u32 s61, 4
    s_cselect_b32 s5, s5, s6
    s_lshl_b32 s5, s5, 12
    s_add_u32 s66, s65, s5
    s_sub_u32 s65, s66, 4096           ; act base sg0 (ffn only)
    s_mul_i32 s67, s64, {112*256}
    s_lshl_b32 s5, s61, 13             ; j*32 cgs*256
    s_add_u32 s67, s67, s5
    s_add_u32 s68, s67, 4096
    s_lshl_b32 s71, s64, 12
    s_add_u32 s71, s71, {WS_KV}""")
    for c in range(7):
        left = min(XU - 1, 6 - c)
        a.e(f"s_waitcnt vmcnt({4*left})")
        for s in range(4):
            n = 4 * c + s
            a.e(f"ds_read_b128 v[{X0+4*n}:{X0+4*n+3}], v{8+s} offset:{c*4096}")
        if c + XU < 7: issue_x(c + XU)
        for s in range(4):
            a.e(f"s_waitcnt lgkmcnt({3-s})")
            for t in range(4):
                r = X0 + 16 * c + 4 * s + t
                a.e(f"v_dot2_f32_bf16 v{5 if t&1 else 7}, v{r}, s77, v{5 if t&1 else 7}")
                a.e(f"v_dot2_f32_bf16 v{6 if t&1 else 14}, v{r}, v{r}, v{6 if t&1 else 14}")
    a.stamp(2)
    a.e("s_barrier")
    a.stamp(3)
    wa = Win([1, 2, 3, 4])
    def reads_sg0(n):
        c, s = divmod(n, 4)
        fa, oa = wa.off(WSLOT[c] * SLOT)
        g = []
        for t in range(4):
            b = FR + 16 * (n & 1) + 4 * t
            rd = [f"ds_read_b64_tr_b16 v[{b+2*u}:{b+2*u+1}], v{1+t} offset:{oa + s*2048 + u*512}" for u in range(2)]
            g.append((fa if t == 0 else []) + rd)
        return g
    def norm(n, t):
        r = X0 + 4 * n + t; T = 192 + 2 * t
        return [f"v_lshlrev_b32 v{T}, 16, v{r}", f"v_and_b32 v{T+1}, s78, v{r}",
                f"v_fma_f32 v{T}, v{T}, v12, v13", f"v_fma_f32 v{T+1}, v{T+1}, v12, v13",
                f"v_cvt_pk_bf16_f32 v{r}, v{T}, v{T+1}"]
    def reads_pair(n, e, t):
        c, s = divmod(n, 4)
        fa, oa = wa.off(VSLOT[c] * SLOT)
        b = FR + 8 * (n & 3) + 4 * e
        return fa + [f"ds_read_b64_tr_b16 v[{b+2*u}:{b+2*u+1}], v{1+t} offset:{oa + s*2048 + u*512}" for u in range(2)]
    C = Counted(a)
    seq = []
    for g in reads_sg0(0): seq += g
    seq += [x.strip() for x in f"""v_add_f32 v5, v5, v7
    v_add_f32 v6, v6, v14
    v_mov_b32 v8, v5
    v_mov_b32 v9, v6
    v_permlane32_swap_b32 v5, v8
    v_permlane32_swap_b32 v6, v9
    v_add_f32 v5, v5, v8
    v_add_f32 v6, v6, v9
    v_mul_f32 v5, {f32(1/448)}, v5
    v_mul_f32 v6, {f32(1/448)}, v6
    v_fma_f32 v6, -v5, v5, v6
    v_max_f32 v6, 0, v6
    v_cvt_pk_bf16_f32 v5, v5, v5
    v_cvt_pk_bf16_f32 v6, v6, v6
    v_lshlrev_b32 v5, 16, v5
    v_lshlrev_b32 v6, 16, v6
    v_add_f32 v6, {f32(1e-5)}, v6
    v_cvt_pk_bf16_f32 v6, v6, v6
    v_lshlrev_b32 v6, 16, v6
    v_sqrt_f32 v6, v6
    v_cvt_pk_bf16_f32 v6, v6, v6
    v_lshlrev_b32 v6, 16, v6
    v_rcp_f32 v12, v6
    v_mul_f32 v13, -v5, v12""".split("\n")]
    nrm = [norm(0, t) for t in range(4)]
    for i in range(5):
        for t in range(4): seq.append(nrm[t][i])
    for n in range(28):
        c = n // 4
        bar = (n % 4 == 3) and (c % 2 == 0)
        nxt = reads_sg0(n + 1) if (n < 27 and not bar) else None
        nl = v_pre() if n == 27 else []
        if n < 27:
            nn = [norm(n + 1, t) for t in range(4)]
            for p in (0, 2):
                for i in range(5): nl += [nn[p][i], nn[p + 1][i]]
        for t in range(4):
            fa = FR + 16 * (n & 1) + 4 * t
            if bar and t == 2: seq.append("DRAIN")
            elif t % 2 == 0: seq.append(f"WAIT v[{fa+4}:{fa+7}]")
            seq.append(mf(ACC[t], fa, X0 + 4 * n, n == 0))
            if not bar:
                if nxt: seq += nxt[t]
            elif t == 2:
                seq.append("s_barrier")
                if n < 27:
                    nxt = reads_sg0(n + 1); seq += nxt[0] + nxt[1]
                else:
                    wa.cur = 4 * SLOT
                    seq += ["STAMP5", f"v_add_u32 v1, {4*SLOT}, v200", "v_xor_b32 v2, 32, v1", "v_xor_b32 v3, 64, v1", "v_xor_b32 v4, 0x60, v1"]
                    seq += reads_pair(0, 0, 0) + reads_pair(0, 1, 1) + reads_pair(1, 0, 0) + reads_pair(1, 1, 1)
            elif t == 3 and n < 27:
                seq += nxt[2] + nxt[3]
            seq += nl[len(nl) * t // 4: len(nl) * (t + 1) // 4]
    C.emit(seq)
    def pair_phase(accs, tiles, next_tiles, first):
        groups = []
        for n in range(28):
            for e in range(2):
                fa = FR + 8 * (n & 3) + 4 * e
                g = [f"WAIT v[{fa+4}:{fa+7}]"] if e == 0 else []
                g.append(mf(accs[e], fa, X0 + 4 * n, n == 0))
                if first and n == 0: g += reads_pair(2, e, tiles[e])
                if n + 3 < 28: g += reads_pair(n + 3, e, tiles[e])
                elif next_tiles is not None: g += reads_pair(n + 3 - 28, e, next_tiles[e])
                groups.append(g)
        return groups
    save = (wa.cur, list(C.pend), None)
    def variant(kind):
        wa.cur = save[0]; C.pend = list(save[1])
        g2 = pair_phase([ACC[4], ACC[5]], [0, 1], [2, 3], True)
        g3 = pair_phase([ACC[6], ACC[7]], [2, 3], None, False)
        if B8:
            b8 = B8 + {"ffn": int(os.environ.get('B8F', 50)), "q": int(os.environ.get('B8Q', 46)), "kv": 0}[kind]
            gg = g2 if b8 < 56 else g3
            gg[b8 % 56] = gg[b8 % 56] + ["s_barrier"]
            rs = ring_setup()
            assert QF_AT < 30
            for i in range(10): g2[30 + i] = g2[30 + i] + rs[len(rs)*i//10: len(rs)*(i+1)//10]
            assert kind == "kv" or b8 >= 80
        if kind == "ffn":
            f2 = sum((ffn_epi(ACC[t], 65, t * 1024) for t in range(3)), [])
            f3 = ffn_epi(ACC[3], 65, 3072)
        elif kind == "q":
            f2 = sum((q_epi(ACC[t], t, 4 + t) for t in range(4)), []); f3 = []
        else:
            ve = v_epi(ACC[3])
            f2 = q_epi(ACC[0], 0, 1) + ve[:-4] + k_epi(ACC[2]) + ve[-4:] + q_epi(ACC[1], 2, 3); f3 = []
        f3 = f3 + ffn_epi(ACC[4], 66, 0) + ffn_epi(ACC[5], 66, 1024)
        def ilv(groups, fill):
            units = []
            i = 0
            while i < len(fill):
                if fill[i].startswith("WAIT"): units.append(fill[i:i+2]); i += 2
                else: units.append([fill[i]]); i += 1
            out = []; k = 0
            for gi, g in enumerate(groups):
                out += g
                tgt = (len(units) * (gi + 1)) // len(groups)
                for u in units[k:tgt]: out += u
                k = tgt
            return out
        seq = [nonce_load(14)] + (g2[0] + g2[1] + g2[2] + ilv(g2[3:56], f2) if kind == "ffn" else ilv(g2[:QD], f2))
        if kind != "ffn":
            pre = ["s_lshl_b32 s5, s60, 11", "s_lshl_b32 s6, s61, 9", "s_add_u32 s5, s5, s6", "s_lshl_b32 s6, s62, 7",
                   "s_add_u32 s5, s5, s6", f"s_add_u32 s79, s5, {FL_Q}"]
            pub = ["STAMP8", "s_waitcnt vmcnt(0)"] + nonce_check(14, 4) + ["s_mov_b64 exec, 1",
                   "buffer_store_dword v14, off, s[52:55], s79 sc1", "s_mov_b64 exec, -1", "STAMP9"] + (["s_barrier"] if kind == "q" else [])
            seq += ["STAMP4"] + ilv(g2[QD:QD+6], pre)
            for gi in range(QD+6, 56):
                if gi == QF_AT: seq += pub
                seq += g2[gi]
            if QF_AT >= 56: seq += pub
        seq += ["STAMP6"]
        lead = 1 if kind == "ffn" else 4
        for g in g3[:lead]: seq += g
        seq += ilv(g3[lead:], f3)
        C.emit(seq)
        a.stamp(7)
        e0 = ffn_epi(ACC[6], 66, 2048); e1 = ffn_epi(ACC[7], 66, 3072)
        a.e("\n".join(e0 + e1))
        a.e("s_branch K1_CDONE")
    hist = list(a.hist)
    a.e("s_cmp_lt_u32 s61, 4\ns_cbranch_scc1 K1_QKV")
    variant("ffn")
    a.label("K1_QKV"); a.hist = list(hist)
    a.e("s_cmp_eq_u32 s61, 3\ns_cbranch_scc1 K1_KV")
    variant("q")
    a.label("K1_KV"); a.hist = list(hist)
    variant("kv")
    a.label("K1_CDONE")

def k1_loader(a):
    srd(a, 44, 12, 25088)
    srd(a, 48, 14, 25088)
    srd(a, 32, 20, 448*1792*2)
    srd(a, 56, 22, 448*1792*2)
    a.e(f"""s_sub_u32 s62, s62, 4
    s_cmp_ge_u32 s61, 4
    s_cselect_b32 s36, s20, s10
    s_cselect_b32 s37, s21, s11
    s_cselect_b32 s40, s22, s10
    s_cselect_b32 s41, s23, s11
    s_mov_b32 s38, {448*448*2}
    s_mov_b32 s64, 896
    s_cselect_b32 s38, {448*1792*2}, s38
    s_cselect_b32 s64, 3584, s64
    s_cselect_b32 s5, 0, 128
    s_mov_b32 s39, 0x20000
    s_mov_b32 s42, s38
    s_mov_b32 s43, 0x20000
    s_sub_u32 s6, s61, 4
    s_cmp_ge_u32 s61, 4
    s_cselect_b32 s6, s6, s61
    s_lshl_b32 s65, s6, 8
    s_add_u32 s7, s65, 128
    s_lshl_b32 s6, s61, 7
    s_add_u32 s6, s6, {24*128}
    s_cmp_ge_u32 s61, 4
    s_cselect_b32 s67, s7, s6
    s_mul_i32 s7, s62, s64
    s_lshl_b32 s7, s7, 4
    s_add_u32 s65, s65, s7
    s_add_u32 s66, s65, s5              ; B sg0
    s_mul_i32 s7, s62, {16*3584}
    s_add_u32 s67, s67, s7              ; sg1
    s_lshl_b32 s69, s64, 3
    s_lshl_b32 s70, s64, 6
    s_lshl_b32 s73, s62, 11
    s_mul_i32 s74, s62, {16*56}         ; kv row base
    s_mov_b32 s71, s63
    s_mov_b32 s72, s63
    v_lshrrev_b32 v4, 1, v3             ; ps
    v_and_b32 v5, 2, v2
    v_xor_b32 v4, v4, v5                ; tA
    v_xor_b32 v5, 1, v4                 ; tB
    v_and_b32 v6, 1, v3
    v_mul_lo_u32 v7, v2, s64
    v_lshl_add_u32 v7, v6, 4, v7
    v_lshl_add_u32 v10, v4, 5, v7
    v_lshl_add_u32 v11, v5, 5, v7
    v_mul_u32_u24 v7, 3584, v2
    v_lshl_add_u32 v7, v6, 4, v7
    v_lshl_add_u32 v8, v4, 5, v7
    v_lshl_add_u32 v9, v5, 5, v7
    v_mul_u32_u24 v7, 56, v2
    v_and_b32 v6, 3, v3
    v_lshl_add_u32 v12, v6, 4, v7       ; kv voff
    v_cmp_gt_u32 s[76:77], 2, v4
    v_cmp_le_u32 s[78:79], 2, v4""")
    def adv(s): a.e(f"s_add_u32 s{s}, s{s}, 1\ns_cmp_eq_u32 s{s}, 7\ns_cselect_b32 s{s}, 0, s{s}")
    lab = [0]
    def issue_w(c):
        base = WSLOT[c] * SLOT; lab[0] += 1; L = lab[0]
        a.e(f"""s_mul_i32 s7, s71, s70
        s_add_u32 s5, s65, s7
        s_add_u32 s6, s66, s7
        s_cmp_eq_u32 s61, 3
        s_cbranch_scc1 K1_VS{L}
        s_add_u32 m0, s73, {base}
        s_add_u32 s7, s5, s69
        buffer_load_dwordx4 v10, s[36:39], s5 offen lds
        s_add_u32 m0, s73, {base + 1024}
        s_add_u32 s3, s6, s69
        buffer_load_dwordx4 v10, s[36:39], s7 offen lds
        s_add_u32 m0, s73, {base + 8192}
        s_nop 0
        buffer_load_dwordx4 v11, s[40:43], s6 offen lds
        s_add_u32 m0, s73, {base + 8192 + 1024}
        s_nop 0
        buffer_load_dwordx4 v11, s[40:43], s3 offen lds
        s_branch K1_VE{L}""")
        a.label(f"K1_VS{L}")
        a.e(f"""s_mul_i32 s7, s71, {64*56}
        s_add_u32 s7, s7, s74
        s_add_u32 m0, s73, {base}
        s_add_u32 s3, s5, s69
        buffer_load_dwordx4 v10, s[36:39], s5 offen lds
        s_add_u32 m0, s73, {base + 1024}
        s_add_u32 s4, s7, {8*56}
        buffer_load_dwordx4 v10, s[36:39], s3 offen lds""")
        for n in range(2):
            a.e(f"""s_add_u32 m0, s73, {base + 8192 + n*1024}
            s_mov_b64 exec, s[76:77]
            buffer_load_dwordx4 v12, s[44:47], s{7 if n == 0 else 4} offen lds
            s_mov_b64 exec, s[78:79]
            buffer_load_dwordx4 v12, s[48:51], s{7 if n == 0 else 4} offen lds""")
        a.e("s_mov_b64 exec, -1")
        a.label(f"K1_VE{L}")
        adv(71)
    def issue_v(c):
        base = VSLOT[c] * SLOT
        a.e(f"""s_mul_i32 s5, s72, {64*3584}
        s_add_u32 s5, s5, s67
        s_add_u32 m0, s73, {base}
        s_add_u32 s7, s5, {8*3584}
        buffer_load_dwordx4 v8, s[32:35], s5 offen lds
        s_add_u32 m0, s73, {base + 1024}
        s_nop 0
        buffer_load_dwordx4 v8, s[32:35], s7 offen lds
        s_add_u32 m0, s73, {base + 8192}
        s_nop 0
        buffer_load_dwordx4 v9, s[56:59], s5 offen lds
        s_add_u32 m0, s73, {base + 8192 + 1024}
        s_nop 0
        buffer_load_dwordx4 v9, s[56:59], s7 offen lds""")
        adv(72)
    def w3(n, n3):
        L = newlab("W3")
        a.e(f"s_cmp_eq_u32 s61, 3\ns_cbranch_scc1 {L}\ns_waitcnt vmcnt({n})\n{L}:\ns_waitcnt vmcnt({n3})")
    issue_w(0)
    a.e(f"""s_lshl_b32 s3, s2, 2
    s_xor_b32 s3, s3, 3
    s_mov_b32 s4, {FL_N}
    s_cmp_lg_u32 s3, s62
    s_cbranch_scc1 F_NN
    buffer_load_dword v20, off, s[52:55], s4 sc1
    s_waitcnt vmcnt(0)
    v_add_u32 v20, 1, v20
    v_or_b32 v20, 0x80000000, v20
    s_mov_b64 exec, 1
    buffer_store_dword v20, off, s[80:83], 0 sc1
    buffer_store_dword v20, off, s[52:55], s4 sc1
    s_mov_b64 exec, -1
    s_branch F_NN2
    F_NN:
    s_waitcnt vmcnt(0)
    F_NN2:""")
    issue_w(1)
    if os.environ.get("W2L"): a.e("s_waitcnt vmcnt(0)")
    issue_w(2)
    if os.environ.get("TLB"):
        a.e(f"""s_lshl_b32 s4, s62, 16
        v_lshlrev_b32 v21, 18, v0
        v_add_u32 v21, 0xff80, v21
        buffer_load_dword v22, v21, s[52:55], s4 offen
        s_add_u32 s4, s4, {FL}
        buffer_load_dword v22, off, s[52:55], s4 offset:4032""")
    a.e("s_barrier")
    issue_w(3)
    w3(4, 6)
    a.e("s_barrier")
    issue_w(4); issue_w(5); issue_w(6); issue_v(0)
    w3(12, 16)
    a.e("s_barrier")
    issue_v(1); issue_v(2); issue_v(3); issue_v(4)
    if PFW == 3: wprefetch(a, 20)
    else: a.e("s_waitcnt vmcnt(20)")
    a.e("s_barrier")
    a.e(nonce_load(14))
    issue_v(5); issue_v(6)
    a.e("v_lshlrev_b32 v0, 4, v0")
    a.e("\n".join(ring_setup(0)))
    a.e("v_lshrrev_b32 v0, 4, v0\ns_waitcnt vmcnt(0)\ns_barrier")
    tile_np(a, 4, 5)
    a.e("s_cbranch_scc1 F_NR\ns_cmp_ge_u32 s61, 3\ns_cbranch_scc1 F_NB\ns_barrier\nF_NB:")
    for k in range(6):
        a.e("\n".join(wd_load(k)))
        if os.environ.get("WTH") and k % 2 == 1: a.e(f"s_waitcnt vmcnt({os.environ['WTH']})")
    a.label("F_NR")
    a.e("\n".join(nonce_check(14, 4)))

PFW = int(os.environ.get("PFW", 0))
def tile_np(a, d, t):
    a.e(f"""s_and_b32 s{t}, s61, 7
    s_cmp_lt_u32 s61, 8
    s_cselect_b32 s{t+1}, 3, 7
    s_cmp_gt_u32 s{t}, s{t+1}
    s_subb_u32 s{d}, s{t}, 0
    s_cmp_eq_u32 s{t}, s{t+1}""")

def wprefetch(a, n):
    tile_np(a, 68, 4)
    a.e("s_cbranch_scc1 F_PW0")
    srd(a, 84, 24, 1792*448*2)
    srd(a, 44, 16, 448*448*2)
    a.e(f"""s_and_b32 s5, s60, 3
    s_lshl_b32 s5, s5, 2
    s_add_u32 s5, s5, s62
    s_lshl_b32 s68, s68, 7
    s_mul_i32 s6, s5, {112*896}
    s_add_u32 s6, s6, s68
    s_mul_i32 s7, s5, {28*896}
    s_add_u32 s7, s7, s68
    v_lshrrev_b32 v21, 1, v0
    v_min_u32 v21, 27, v21
    v_mul_u32_u24 v21, 896, v21
    v_and_b32 v22, 1, v0
    v_lshl_add_u32 v21, v22, 6, v21
    s_bfm_b64 exec, 56, 0""")
    for i in range(4):
        a.e(f"buffer_load_dword v22, v21, s[84:87], s6 offen\ns_add_u32 s6, s6, {28*896}")
    a.e(f"""buffer_load_dword v22, v21, s[44:47], s7 offen
    s_mov_b64 exec, -1
    s_waitcnt vmcnt({n+5})
    s_branch F_PW1
    F_PW0:
    s_waitcnt vmcnt({n})
    F_PW1:""")
```

```python
from asmlib import *
WS_Q, WS_KV, WS_ACT, WS_WF, WS_P = 0x0, 0x200000, 0x400000, 0xD00000, 0x1000000
WS_SIZE = 0x2000000
LOG2E = 1.4426950408889634
import struct
def f32(x): return "0x%08x" % struct.unpack("<I", struct.pack("<f", x))[0]
SC = " sc1" if os.environ.get("NOSC1") is None else ""

def srd(a, d, lo, size):
    a.e(f"s_mov_b32 s{d}, s{lo}\ns_mov_b32 s{d+1}, s{lo+1}\ns_mov_b32 s{d+2}, {size}\ns_mov_b32 s{d+3}, 0x20000")

SLOT = 16384
PF = os.environ.get("NOPF") is None
WSLOT = [7, 8, 9, 0, 1, 2, 3]
VSLOT = [4, 5, 6, 7, 8, 9, 0]
VT = 3 * SLOT
FL = 0x1400000
FL_Q, FL_N, FL_H, FL_R = FL, FL + 0x8000, FL + 0x10000, FL + 0x30000
B8 = int(os.environ.get('B8', 34))
SLP = int(os.environ.get('SLP', 4))
SPIN = 400000
QF_AT = int(os.environ.get("QF_AT", 26)); QD = int(os.environ.get("QD", 4))
_lab = [0]
def newlab(p):
    _lab[0] += 1; return f"{p}{_lab[0]}"
def nonce_load(v): return f"buffer_load_dword v{v}, off, s[80:83], 0 sc1"
def nonce_check(v, st):
    L = newlab("NC")
    return [f"v_readfirstlane_b32 s{st}, v{v}", f"s_cmp_lg_u32 s{st}, 0", f"s_cbranch_scc1 {L}E", f"s_mov_b32 s{st+1}, {SPIN}",
            f"{L}:", nonce_load(v), "s_waitcnt vmcnt(0)", f"v_readfirstlane_b32 s{st}, v{v}", f"s_cmp_lg_u32 s{st}, 0",
            f"s_cbranch_scc1 {L}E", f"s_sub_u32 s{st+1}, s{st+1}, 1", f"s_cmp_lg_u32 s{st+1}, 0", f"s_cbranch_scc1 {L}", f"{L}E:"]
def poll(a, loads, vn, st, first=None, lanes=64):
    L = newlab("PL")
    def ld():
        if lanes < 64: a.e(f"s_bfm_b64 exec, {lanes}, 0")
        for d, o, so in loads: a.e(f"buffer_load_dword v{d}, v{o}, s[52:55], s{so} offen sc1")
        a.e("s_waitcnt vmcnt(0)")
    a.e(f"s_mov_b32 s{st}, {SPIN}")
    if first:
        ld()
        if lanes < 64: a.e("s_mov_b64 exec, -1")
        first()
        if lanes < 64: a.e(f"s_bfm_b64 exec, {lanes}, 0")
        a.e(f"s_branch {L}C")
    else:
        a.e(f"s_branch {L}F")
    a.label(L)
    if SLP: a.e(f"s_sleep {SLP}")
    a.label(L + "F"); ld()
    a.label(L + "C")
    d0 = loads[0][0]
    a.e(f"v_xor_b32 v{d0}, v{d0}, v{vn}")
    for d, o, so in loads[1:]:
        a.e(f"v_xor_b32 v{d}, v{d}, v{vn}\nv_or_b32 v{d0}, v{d0}, v{d}")
    a.e(f"v_cmp_ne_u32 vcc, 0, v{d0}\ns_sub_u32 s{st}, s{st}, 1\ns_cmp_eq_u64 vcc, 0\ns_cbranch_scc1 {L}E\ns_cmp_lg_u32 s{st}, 0\ns_cbranch_scc1 {L}")
    a.label(L + "E")
    if lanes < 64: a.e("s_mov_b64 exec, -1")


RD = 11
CW = int(os.environ.get('CW', 0))
LAY = int(os.environ.get('LAY', 0))
UP = (6 if LAY else 3) * SLOT
def ring_off(k):
    i = k % RD
    return i * 2048 if i < 6 else UP + (i - 6) * 2048
def wd_load(k):
    o = ring_off(k)
    return [f"s_add_u32 m0, s74, {o}", f"s_add_u32 s72, s73, {16*896}", "buffer_load_dwordx4 v12, s[40:43], s73 offen lds",
            f"s_add_u32 m0, s74, {o + 1024}", f"s_cmp_eq_u32 s72, {28*16*896}", "buffer_load_dwordx4 v13, s[40:43], s73 offen lds",
            "s_cselect_b32 s73, 0, s72"]
def ring_setup(skip=6):
    t = Asm(); srd(t, 40, 24, 1792*448*2); tile_np(t, 70, 4)
    t.e(f"""s_and_b32 s5, s60, 3
    s_mul_i32 s5, s5, 7
    s_lshl_b32 s6, s70, 2
    s_add_u32 s5, s5, s6
    s_cmp_ge_u32 s5, 28
    s_cselect_b32 s6, 28, 0
    s_sub_u32 s63, s5, s6
    s_add_u32 s5, s63, {skip}
    s_cmp_ge_u32 s5, 28
    s_cselect_b32 s6, 28, 0
    s_sub_u32 s5, s5, s6
    s_mul_i32 s73, s5, {16*896}
    s_mul_i32 s74, s62, 12288
    s_add_u32 s74, s74, {SLOT}
    s_lshl_b32 s5, s70, 7
    s_mul_i32 s6, s62, {448*896}
    s_add_u32 s5, s5, s6
    v_lshrrev_b32 v7, 7, v0
    v_mul_u32_u24 v7, 896, v7
    v_and_b32 v13, 0x70, v0
    v_add_u32 v7, v7, v13
    v_add_u32 v12, s5, v7
    v_add_u32 v13, {8*896}, v12""")
    return [l.strip() for l in t.lines]

class Win:
    def __init__(self, regs): self.regs = regs; self.cur = 0
    def off(self, addr, span=16384):
        fix = []
        if not (0 <= addr - self.cur and addr - self.cur + span <= 65536):
            new = min((addr // 16384) * 16384, 6 * 16384)
            d = new - self.cur
            for r in self.regs:
                fix.append(f"v_add_u32 v{r}, {d & 0xffffffff}, v{r}")
            self.cur = new
        return fix, addr - self.cur

def a_addr_setup(a, dst, lane, t1, t2):
    a.e(f"""v_bfe_u32 v{t1}, v{lane}, 4, 1
    v_lshlrev_b32 v{dst}, 13, v{t1}
    v_bfe_u32 v{t2}, v{lane}, 2, 2
    v_lshl_add_u32 v{dst}, v{t2}, 7, v{dst}
    v_and_b32 v{t2}, 2, v{t2}
    v_xor_b32 v{t1}, v{t1}, v{t2}
    v_lshl_add_u32 v{dst}, v{t1}, 5, v{dst}
    v_lshrrev_b32 v{t1}, 5, v{lane}
    v_lshl_add_u32 v{dst}, v{t1}, 10, v{dst}
    v_and_b32 v{t1}, 3, v{lane}
    v_lshl_add_u32 v{dst}, v{t1}, 3, v{dst}""")

X0 = 16
ACC = [128, 144, 160, 176, 192, 208, 128, 144]
FR = 224

def ffn_epi(A, sbase, imm):
    o = []
    for r in range(8): o.append(f"v_mul_f32 v{A+r}, s75, v{A+r}")
    for r in range(8): o.append(f"v_exp_f32 v{A+r}, v{A+r}")
    for r in range(8): o.append(f"v_add_f32 v{A+r}, 1.0, v{A+r}")
    for r in range(8): o.append(f"v_rcp_f32 v{A+r}, v{A+r}")
    for r in range(8): o.append(f"v_mul_f32 v{A+r}, v{A+r}, v{A+8+r}")
    for i in range(4): o.append(f"v_cvt_pk_bf16_f32 v{A+8+i}, v{A+2*i}, v{A+2*i+1}")
    o.append(f"buffer_store_dwordx4 v[{A+8}:{A+11}], v0, s[52:55], s{sbase} offen offset:{imm}{SC}")
    return o

def q_epi(A, cbA, cbB):
    o = []
    for i in range(8): o.append(f"v_cvt_pk_bf16_f32 v{A+i}, v{A+2*i}, v{A+2*i+1}")
    for g, cb in ((0, cbA), (1, cbB)):
        o.append(f"buffer_store_dwordx4 v[{A+4*g}:{A+4*g+3}], v0, s[52:55], s{67 + cb//4} offen offset:{(cb%4)*1024}{SC}")
    return o

def k_epi(A):
    o = []
    for r in range(16): o.append(f"v_mul_f32 v{A+r}, s76, v{A+r}")
    for i in range(8): o.append(f"v_cvt_pk_bf16_f32 v{A+i}, v{A+2*i}, v{A+2*i+1}")
    o += [f"v_cndmask_b32 v{A+6}, v{A+6}, v5, vcc", f"v_cndmask_b32 v{A+7}, v{A+7}, v6, vcc",
          f"buffer_store_dwordx4 v[{A}:{A+3}], v0, s[52:55], s71 offen{SC}",
          f"buffer_store_dwordx4 v[{A+4}:{A+7}], v0, s[52:55], s71 offen offset:1024{SC}"]
    return o

def v_pre():
    return ["v_cmp_lt_u32 vcc, 511, v0", "v_mov_b32 v5, 0x3f803f80", "v_mov_b32 v6, 0x3f80",
          "s_lshl_b32 s5, s62, 11", f"s_add_u32 s5, s5, {VT}",
          "v_bfe_u32 v8, v0, 4, 5", "v_lshlrev_b32 v8, 6, v8", "v_lshrrev_b32 v9, 9, v0",
          "v_lshl_add_u32 v8, v9, 3, v8", "v_add_u32 v8, s5, v8",
          "v_bfe_u32 v10, v0, 6, 2", "v_lshl_add_u32 v10, v9, 2, v10", "v_lshlrev_b32 v10, 6, v10",
          "v_bfe_u32 v11, v0, 8, 1", "v_lshl_add_u32 v10, v11, 5, v10", "v_bfe_u32 v11, v0, 4, 2",
          "v_lshl_add_u32 v10, v11, 3, v10", "v_add_u32 v10, s5, v10"]

def v_epi(A):
    o = []
    for i in range(8): o.append(f"v_cvt_pk_bf16_f32 v{A+i}, v{A+2*i}, v{A+2*i+1}")
    o += [f"v_cndmask_b32 v{A+6}, v{A+6}, v6, vcc", f"v_cndmask_b32 v{A+7}, v{A+7}, 0, vcc"]
    for g in range(4): o.append(f"ds_write_b64 v8, v[{A+2*g}:{A+2*g+1}] offset:{16*g}")
    for i in range(4): o.append(f"ds_read_b64_tr_b16 v[{A+8+2*i}:{A+9+2*i}], v10 offset:{i*512}")
    o += ["WAIT", f"buffer_store_dwordx4 v[{A+8}:{A+11}], v0, s[52:55], s71 offen offset:2048{SC}",
          "WAIT", f"buffer_store_dwordx4 v[{A+12}:{A+15}], v0, s[52:55], s71 offen offset:3072{SC}"]
    return o

def mf(acc, fa, fb, first):
    return f"v_mfma_f32_32x32x16_bf16 v[{acc}:{acc+15}], v[{fa}:{fa+3}], v[{fb}:{fb+3}], " + ("0" if first else f"v[{acc}:{acc+15}]")

class Counted:
    def __init__(self, a): self.a = a; self.pend = []
    def emit(self, seq):
        a = self.a
        for i, t in enumerate(seq):
            if t.startswith("WAIT"):
                rs = set(Ins(seq[i + 1]).r)
                if len(t) > 4: rs |= regs_of(t[5:])
                k = -1
                for idx, w in enumerate(self.pend):
                    if w & rs: k = idx
                if k >= 0:
                    left = min(len(self.pend) - 1 - k, 15)
                    a.e(f"s_waitcnt lgkmcnt({left})")
                    self.pend = self.pend[len(self.pend) - left:] if left else []
                continue
            if t == "DRAIN":
                a.e("s_waitcnt lgkmcnt(0)"); self.pend = []; continue
            if t.startswith("STAMP"):
                if a.stamp(int(t[5:])): self.pend = []
                continue
            if t.endswith(":"):
                a.e(t); continue
            ins = Ins(t)
            if ins.ds: self.pend.append(set(ins.w))
            a.e(t)

def k1_entry(a, endlab):
    a.e(f"""s_cmp_ge_u32 s2, 256
    s_cbranch_scc1 {endlab}
    s_load_dwordx16 s[8:23], s[0:1], 0
    s_load_dwordx8 s[24:31], s[0:1], 64""")
    if PF:
        a.e(f"""s_cmp_lt_u32 s2, {os.environ.get("PFLO", 192)}
        s_cbranch_scc1 F_NOPF
        s_getpc_b64 s[6:7]
        F_PC:
        v_lshlrev_b32 v1, 7, v0
        v_min_u32 v1, F_CODE_END-F_PC-4, v1
        global_load_dword v255, v1, s[6:7]
        F_NOPF:""")
    a.e(f"""
    v_lshrrev_b32 v1, 6, v0
    v_and_b32 v0, 63, v0
    s_and_b32 s3, s2, 7
    s_lshr_b32 s4, s2, 3
    v_readfirstlane_b32 s62, v1
    s_and_b32 s60, s3, 3
    s_lshl_b32 s60, s60, 2
    s_and_b32 s5, s4, 3
    s_add_u32 s60, s60, s5             ; mt
    s_lshr_b32 s61, s3, 2
    s_lshl_b32 s61, s61, 3
    s_lshr_b32 s6, s4, 2
    s_add_u32 s61, s61, s6             ; j
    s_lshl_b32 s5, s5, 1
    s_add_u32 s63, s5, s6
    s_cmp_ge_u32 s63, 7
    s_cselect_b32 s6, 7, 0
    s_sub_u32 s63, s63, s6
    v_lshrrev_b32 v2, 3, v0
    v_and_b32 v3, 7, v0                ; p
    s_waitcnt lgkmcnt(0)""")
    srd(a, 52, 30, WS_SIZE)
    srd(a, 80, 28, 256)

def k1_compute(a, tail_hook=None, mid_hook=None):
    srd(a, 32, 8, 1835008)
    a.e("s_setprio 3")
    a.e(f"""v_lshrrev_b32 v4, 4, v0
    v_xor_b32 v4, v4, v3
    v_mul_u32_u24 v5, 896, v2
    v_lshl_add_u32 v12, v4, 4, v5
    v_xor_b32 v4, 4, v4
    v_lshl_add_u32 v13, v4, 4, v5
    s_lshl_b32 s64, s60, 2
    s_add_u32 s64, s64, s62            ; tt
    s_mul_i32 s72, s64, {32*896}
    s_lshl_b32 s73, s63, 7
    s_mul_i32 s74, s62, 28672""")
    def issue_x(c):
        a.e(f"s_add_u32 s6, s72, s73")
        for n in range(4):
            a.e(f"""s_add_u32 m0, s74, {c*4096 + n*1024}
            s_add_u32 s5, s6, {n*8*896}
            buffer_load_dwordx4 v{12 + (n&1)}, s[32:35], s5 offen lds""")
        a.e("s_add_u32 s73, s73, 128\ns_cmp_eq_u32 s73, 896\ns_cselect_b32 s73, 0, s73")
    XU = int(os.environ.get('XU', 4))
    for c in range(XU): issue_x(c)
    a_addr_setup(a, 1, 0, 5, 6)
    a.e(f"""v_xor_b32 v2, 32, v1
    v_xor_b32 v3, 64, v1
    v_xor_b32 v4, 0x60, v1
    v_mov_b32 v200, v1
    s_cmp_lg_u32 s61, 3
    s_cbranch_scc1 K1_NJ3
    v_and_b32 v1, 0x1fff, v1
    v_xor_b32 v2, 64, v1
    v_add_u32 v3, 0x2000, v1
    v_add_u32 v4, 0x2000, v2
    K1_NJ3:
    v_and_b32 v5, 31, v0
    v_bfe_u32 v6, v5, 1, 3
    v_lshrrev_b32 v7, 5, v0
    v_xor_b32 v6, v6, v7
    v_lshlrev_b32 v8, 7, v5
    v_lshl_add_u32 v8, v6, 4, v8
    v_add_u32 v8, s74, v8
    v_xor_b32 v9, 32, v8
    v_xor_b32 v10, 64, v8
    v_xor_b32 v11, 0x60, v8
    v_mov_b32 v5, 0
    v_mov_b32 v6, 0
    v_mov_b32 v7, 0
    v_mov_b32 v14, 0
    v_lshlrev_b32 v15, 3, v0
    v_lshlrev_b32 v0, 4, v0
    s_mov_b32 s77, 0x3f803f80
    s_mov_b32 s78, 0xffff0000
    s_mov_b32 s75, {f32(-LOG2E)}
    s_mov_b32 s76, {f32(LOG2E * 28 ** -0.5)}
    s_mul_i32 s65, s64, {144*1024}
    s_add_u32 s65, s65, {WS_ACT}
    s_add_u32 s5, s61, 24
    s_lshl_b32 s6, s61, 1
    s_sub_u32 s6, s6, 7
    s_cmp_lt_u32 s61, 4
    s_cselect_b32 s5, s5, s6
    s_lshl_b32 s5, s5, 12
    s_add_u32 s66, s65, s5
    s_sub_u32 s65, s66, 4096           ; act base sg0 (ffn only)
    s_mul_i32 s67, s64, {112*256}
    s_lshl_b32 s5, s61, 13             ; j*32 cgs*256
    s_add_u32 s67, s67, s5
    s_add_u32 s68, s67, 4096
    s_lshl_b32 s71, s64, 12
    s_add_u32 s71, s71, {WS_KV}""")
    for c in range(7):
        left = min(XU - 1, 6 - c)
        a.e(f"s_waitcnt vmcnt({4*left})")
        for s in range(4):
            n = 4 * c + s
            a.e(f"ds_read_b128 v[{X0+4*n}:{X0+4*n+3}], v{8+s} offset:{c*4096}")
        if c + XU < 7: issue_x(c + XU)
        for s in range(4):
            a.e(f"s_waitcnt lgkmcnt({3-s})")
            for t in range(4):
                r = X0 + 16 * c + 4 * s + t
                a.e(f"v_dot2_f32_bf16 v{5 if t&1 else 7}, v{r}, s77, v{5 if t&1 else 7}")
                a.e(f"v_dot2_f32_bf16 v{6 if t&1 else 14}, v{r}, v{r}, v{6 if t&1 else 14}")
    a.stamp(2)
    a.e("s_barrier")
    a.stamp(3)
    wa = Win([1, 2, 3, 4])
    def reads_sg0(n):
        c, s = divmod(n, 4)
        fa, oa = wa.off(WSLOT[c] * SLOT)
        g = []
        for t in range(4):
            b = FR + 16 * (n & 1) + 4 * t
            rd = [f"ds_read_b64_tr_b16 v[{b+2*u}:{b+2*u+1}], v{1+t} offset:{oa + s*2048 + u*512}" for u in range(2)]
            g.append((fa if t == 0 else []) + rd)
        return g
    def norm(n, t):
        r = X0 + 4 * n + t; T = 192 + 2 * t
        return [f"v_lshlrev_b32 v{T}, 16, v{r}", f"v_and_b32 v{T+1}, s78, v{r}",
                f"v_fma_f32 v{T}, v{T}, v12, v13", f"v_fma_f32 v{T+1}, v{T+1}, v12, v13",
                f"v_cvt_pk_bf16_f32 v{r}, v{T}, v{T+1}"]
    def reads_pair(n, e, t):
        c, s = divmod(n, 4)
        fa, oa = wa.off(VSLOT[c] * SLOT)
        b = FR + 8 * (n & 3) + 4 * e
        return fa + [f"ds_read_b64_tr_b16 v[{b+2*u}:{b+2*u+1}], v{1+t} offset:{oa + s*2048 + u*512}" for u in range(2)]
    C = Counted(a)
    seq = []
    for g in reads_sg0(0): seq += g
    seq += [x.strip() for x in f"""v_add_f32 v5, v5, v7
    v_add_f32 v6, v6, v14
    v_mov_b32 v8, v5
    v_mov_b32 v9, v6
    v_permlane32_swap_b32 v5, v8
    v_permlane32_swap_b32 v6, v9
    v_add_f32 v5, v5, v8
    v_add_f32 v6, v6, v9
    v_mul_f32 v5, {f32(1/448)}, v5
    v_mul_f32 v6, {f32(1/448)}, v6
    v_fma_f32 v6, -v5, v5, v6
    v_max_f32 v6, 0, v6
    v_cvt_pk_bf16_f32 v5, v5, v5
    v_cvt_pk_bf16_f32 v6, v6, v6
    v_lshlrev_b32 v5, 16, v5
    v_lshlrev_b32 v6, 16, v6
    v_add_f32 v6, {f32(1e-5)}, v6
    v_cvt_pk_bf16_f32 v6, v6, v6
    v_lshlrev_b32 v6, 16, v6
    v_sqrt_f32 v6, v6
    v_cvt_pk_bf16_f32 v6, v6, v6
    v_lshlrev_b32 v6, 16, v6
    v_rcp_f32 v12, v6
    v_mul_f32 v13, -v5, v12""".split("\n")]
    nrm = [norm(0, t) for t in range(4)]
    for i in range(5):
        for t in range(4): seq.append(nrm[t][i])
    for n in range(28):
        c = n // 4
        bar = (n % 4 == 3) and (c % 2 == 0)
        nxt = reads_sg0(n + 1) if (n < 27 and not bar) else None
        nl = v_pre() if n == 27 else []
        if n < 27:
            nn = [norm(n + 1, t) for t in range(4)]
            for p in (0, 2):
                for i in range(5): nl += [nn[p][i], nn[p + 1][i]]
        for t in range(4):
            fa = FR + 16 * (n & 1) + 4 * t
            if bar and t == 2: seq.append("DRAIN")
            elif t % 2 == 0: seq.append(f"WAIT v[{fa+4}:{fa+7}]")
            seq.append(mf(ACC[t], fa, X0 + 4 * n, n == 0))
            if not bar:
                if nxt: seq += nxt[t]
            elif t == 2:
                seq.append("s_barrier")
                if n < 27:
                    nxt = reads_sg0(n + 1); seq += nxt[0] + nxt[1]
                else:
                    wa.cur = 4 * SLOT
                    seq += ["STAMP5", f"v_add_u32 v1, {4*SLOT}, v200", "v_xor_b32 v2, 32, v1", "v_xor_b32 v3, 64, v1", "v_xor_b32 v4, 0x60, v1"]
                    seq += reads_pair(0, 0, 0) + reads_pair(0, 1, 1) + reads_pair(1, 0, 0) + reads_pair(1, 1, 1)
            elif t == 3 and n < 27:
                seq += nxt[2] + nxt[3]
            seq += nl[len(nl) * t // 4: len(nl) * (t + 1) // 4]
    C.emit(seq)
    def pair_phase(accs, tiles, next_tiles, first):
        groups = []
        for n in range(28):
            for e in range(2):
                fa = FR + 8 * (n & 3) + 4 * e
                g = [f"WAIT v[{fa+4}:{fa+7}]"] if e == 0 else []
                g.append(mf(accs[e], fa, X0 + 4 * n, n == 0))
                if first and n == 0: g += reads_pair(2, e, tiles[e])
                if n + 3 < 28: g += reads_pair(n + 3, e, tiles[e])
                elif next_tiles is not None: g += reads_pair(n + 3 - 28, e, next_tiles[e])
                groups.append(g)
        return groups
    save = (wa.cur, list(C.pend), None)
    def variant(kind):
        wa.cur = save[0]; C.pend = list(save[1])
        g2 = pair_phase([ACC[4], ACC[5]], [0, 1], [2, 3], True)
        g3 = pair_phase([ACC[6], ACC[7]], [2, 3], None, False)
        if B8:
            b8 = B8 + {"ffn": int(os.environ.get('B8F', 50)), "q": int(os.environ.get('B8Q', 46)), "kv": 0}[kind]
            gg = g2 if b8 < 56 else g3
            gg[b8 % 56] = gg[b8 % 56] + ["s_barrier"]
            rs = ring_setup(0 if CW else 6)
            assert QF_AT < 30
            r0 = 2 if (CW and kind == "ffn") else (12 if CW else 30)
            for i in range(10): g2[r0 + i] = g2[r0 + i] + rs[len(rs)*i//10: len(rs)*(i+1)//10]
            if CW and kind != "kv":
                for k in range(6):
                    p = (12 if kind == "ffn" else QF_AT + 1) + CW * k
                    g2[p] = g2[p] + wd_load(k)
            assert kind == "kv" or b8 >= 80
        if kind == "ffn":
            f2 = sum((ffn_epi(ACC[t], 65, t * 1024) for t in range(3)), [])
            f3 = ffn_epi(ACC[3], 65, 3072)
        elif kind == "q":
            f2 = sum((q_epi(ACC[t], t, 4 + t) for t in range(4)), []); f3 = []
        else:
            ve = v_epi(ACC[3])
            f2 = q_epi(ACC[0], 0, 1) + ve[:-4] + k_epi(ACC[2]) + ve[-4:] + q_epi(ACC[1], 2, 3); f3 = []
        f3 = f3 + ffn_epi(ACC[4], 66, 0) + ffn_epi(ACC[5], 66, 1024)
        def ilv(groups, fill):
            units = []
            i = 0
            while i < len(fill):
                if fill[i].startswith("WAIT"): units.append(fill[i:i+2]); i += 2
                else: units.append([fill[i]]); i += 1
            out = []; k = 0
            for gi, g in enumerate(groups):
                out += g
                tgt = (len(units) * (gi + 1)) // len(groups)
                for u in units[k:tgt]: out += u
                k = tgt
            return out
        seq = [nonce_load(14)] + (g2[0] + g2[1] + g2[2] + ilv(g2[3:56], f2) if kind == "ffn" else ilv(g2[:QD], f2))
        if kind != "ffn":
            pre = ["s_lshl_b32 s5, s60, 11", "s_lshl_b32 s6, s61, 9", "s_add_u32 s5, s5, s6", "s_lshl_b32 s6, s62, 7",
                   "s_add_u32 s5, s5, s6", f"s_add_u32 s79, s5, {FL_Q}"]
            pub = ["STAMP8", "s_waitcnt vmcnt(0)"] + nonce_check(14, 4) + ["s_mov_b64 exec, 1",
                   "buffer_store_dword v14, off, s[52:55], s79 sc1", "s_mov_b64 exec, -1", "STAMP9"] + (["s_barrier"] if kind == "q" and not CW else [])
            seq += ["STAMP4"] + ilv(g2[QD:QD+6], pre)
            for gi in range(QD+6, 56):
                if gi == QF_AT: seq += pub
                seq += g2[gi]
            if QF_AT >= 56: seq += pub
        seq += ["STAMP6"]
        lead = 1 if kind == "ffn" else 4
        for g in g3[:lead]: seq += g
        seq += ilv(g3[lead:], f3)
        C.emit(seq)
        a.stamp(7)
        e0 = ffn_epi(ACC[6], 66, 2048); e1 = ffn_epi(ACC[7], 66, 3072)
        a.e("\n".join(e0 + e1))
        a.e("s_branch K1_CDONE")
    hist = list(a.hist)
    a.e("s_cmp_lt_u32 s61, 4\ns_cbranch_scc1 K1_QKV")
    variant("ffn")
    a.label("K1_QKV"); a.hist = list(hist)
    a.e("s_cmp_eq_u32 s61, 3\ns_cbranch_scc1 K1_KV")
    variant("q")
    a.label("K1_KV"); a.hist = list(hist)
    variant("kv")
    a.label("K1_CDONE")

def k1_loader(a):
    srd(a, 44, 12, 25088)
    srd(a, 48, 14, 25088)
    srd(a, 32, 20, 448*1792*2)
    srd(a, 56, 22, 448*1792*2)
    a.e(f"""s_sub_u32 s62, s62, 4
    s_cmp_ge_u32 s61, 4
    s_cselect_b32 s36, s20, s10
    s_cselect_b32 s37, s21, s11
    s_cselect_b32 s40, s22, s10
    s_cselect_b32 s41, s23, s11
    s_mov_b32 s38, {448*448*2}
    s_mov_b32 s64, 896
    s_cselect_b32 s38, {448*1792*2}, s38
    s_cselect_b32 s64, 3584, s64
    s_cselect_b32 s5, 0, 128
    s_mov_b32 s39, 0x20000
    s_mov_b32 s42, s38
    s_mov_b32 s43, 0x20000
    s_sub_u32 s6, s61, 4
    s_cmp_ge_u32 s61, 4
    s_cselect_b32 s6, s6, s61
    s_lshl_b32 s65, s6, 8
    s_add_u32 s7, s65, 128
    s_lshl_b32 s6, s61, 7
    s_add_u32 s6, s6, {24*128}
    s_cmp_ge_u32 s61, 4
    s_cselect_b32 s67, s7, s6
    s_mul_i32 s7, s62, s64
    s_lshl_b32 s7, s7, 4
    s_add_u32 s65, s65, s7
    s_add_u32 s66, s65, s5              ; B sg0
    s_mul_i32 s7, s62, {16*3584}
    s_add_u32 s67, s67, s7              ; sg1
    s_lshl_b32 s69, s64, 3
    s_lshl_b32 s70, s64, 6
    s_lshl_b32 s73, s62, 11
    s_mul_i32 s74, s62, {16*56}         ; kv row base
    s_mov_b32 s71, s63
    s_mov_b32 s72, s63
    v_lshrrev_b32 v4, 1, v3             ; ps
    v_and_b32 v5, 2, v2
    v_xor_b32 v4, v4, v5                ; tA
    v_xor_b32 v5, 1, v4                 ; tB
    v_and_b32 v6, 1, v3
    v_mul_lo_u32 v7, v2, s64
    v_lshl_add_u32 v7, v6, 4, v7
    v_lshl_add_u32 v10, v4, 5, v7
    v_lshl_add_u32 v11, v5, 5, v7
    v_mul_u32_u24 v7, 3584, v2
    v_lshl_add_u32 v7, v6, 4, v7
    v_lshl_add_u32 v8, v4, 5, v7
    v_lshl_add_u32 v9, v5, 5, v7
    v_mul_u32_u24 v7, 56, v2
    v_and_b32 v6, 3, v3
    v_lshl_add_u32 v12, v6, 4, v7       ; kv voff
    v_cmp_gt_u32 s[76:77], 2, v4
    v_cmp_le_u32 s[78:79], 2, v4""")
    def adv(s): a.e(f"s_add_u32 s{s}, s{s}, 1\ns_cmp_eq_u32 s{s}, 7\ns_cselect_b32 s{s}, 0, s{s}")
    lab = [0]
    def issue_w(c):
        base = WSLOT[c] * SLOT; lab[0] += 1; L = lab[0]
        a.e(f"""s_mul_i32 s7, s71, s70
        s_add_u32 s5, s65, s7
        s_add_u32 s6, s66, s7
        s_cmp_eq_u32 s61, 3
        s_cbranch_scc1 K1_VS{L}
        s_add_u32 m0, s73, {base}
        s_add_u32 s7, s5, s69
        buffer_load_dwordx4 v10, s[36:39], s5 offen lds
        s_add_u32 m0, s73, {base + 1024}
        s_add_u32 s3, s6, s69
        buffer_load_dwordx4 v10, s[36:39], s7 offen lds
        s_add_u32 m0, s73, {base + 8192}
        s_nop 0
        buffer_load_dwordx4 v11, s[40:43], s6 offen lds
        s_add_u32 m0, s73, {base + 8192 + 1024}
        s_nop 0
        buffer_load_dwordx4 v11, s[40:43], s3 offen lds
        s_branch K1_VE{L}""")
        a.label(f"K1_VS{L}")
        a.e(f"""s_mul_i32 s7, s71, {64*56}
        s_add_u32 s7, s7, s74
        s_add_u32 m0, s73, {base}
        s_add_u32 s3, s5, s69
        buffer_load_dwordx4 v10, s[36:39], s5 offen lds
        s_add_u32 m0, s73, {base + 1024}
        s_add_u32 s4, s7, {8*56}
        buffer_load_dwordx4 v10, s[36:39], s3 offen lds""")
        for n in range(2):
            a.e(f"""s_add_u32 m0, s73, {base + 8192 + n*1024}
            s_mov_b64 exec, s[76:77]
            buffer_load_dwordx4 v12, s[44:47], s{7 if n == 0 else 4} offen lds
            s_mov_b64 exec, s[78:79]
            buffer_load_dwordx4 v12, s[48:51], s{7 if n == 0 else 4} offen lds""")
        a.e("s_mov_b64 exec, -1")
        a.label(f"K1_VE{L}")
        adv(71)
    def issue_v(c):
        base = VSLOT[c] * SLOT
        a.e(f"""s_mul_i32 s5, s72, {64*3584}
        s_add_u32 s5, s5, s67
        s_add_u32 m0, s73, {base}
        s_add_u32 s7, s5, {8*3584}
        buffer_load_dwordx4 v8, s[32:35], s5 offen lds
        s_add_u32 m0, s73, {base + 1024}
        s_nop 0
        buffer_load_dwordx4 v8, s[32:35], s7 offen lds
        s_add_u32 m0, s73, {base + 8192}
        s_nop 0
        buffer_load_dwordx4 v9, s[56:59], s5 offen lds
        s_add_u32 m0, s73, {base + 8192 + 1024}
        s_nop 0
        buffer_load_dwordx4 v9, s[56:59], s7 offen lds""")
        adv(72)
    def w3(n, n3):
        L = newlab("W3")
        a.e(f"s_cmp_eq_u32 s61, 3\ns_cbranch_scc1 {L}\ns_waitcnt vmcnt({n})\n{L}:\ns_waitcnt vmcnt({n3})")
    issue_w(0)
    a.e(f"""s_lshl_b32 s3, s2, 2
    s_xor_b32 s3, s3, 3
    s_mov_b32 s4, {FL_N}
    s_cmp_lg_u32 s3, s62
    s_cbranch_scc1 F_NN
    buffer_load_dword v20, off, s[52:55], s4 sc1
    s_waitcnt vmcnt(0)
    v_add_u32 v20, 1, v20
    v_or_b32 v20, 0x80000000, v20
    s_mov_b64 exec, 1
    buffer_store_dword v20, off, s[80:83], 0 sc1
    buffer_store_dword v20, off, s[52:55], s4 sc1
    s_mov_b64 exec, -1
    s_branch F_NN2
    F_NN:
    s_waitcnt vmcnt(0)
    F_NN2:""")
    issue_w(1)
    if os.environ.get("W2L"): a.e("s_waitcnt vmcnt(0)")
    issue_w(2)
    if os.environ.get("TLB"):
        srd(a, 84, 24, 1792*448*2)
        a.e(f"""s_mul_i32 s4, s62, {64*6272}
        v_mul_u32_u24 v21, 6272, v0
        buffer_load_dword v22, v21, s[84:87], s4 offen
        s_mov_b32 s84, s16
        s_mov_b32 s85, s17
        s_mov_b32 s86, {448*448*2}
        s_cmp_lg_u32 s62, 0
        s_cbranch_scc1 F_TL
        buffer_load_dword v22, v21, s[84:87], 0 offen
        F_TL:""")
    a.e("s_barrier")
    issue_w(3)
    w3(4, 6)
    a.e("s_barrier")
    issue_w(4); issue_w(5); issue_w(6); issue_v(0)
    w3(12, 16)
    a.e("s_barrier")
    issue_v(1); issue_v(2); issue_v(3); issue_v(4)
    if PFW == 3: wprefetch(a, 20)
    else: a.e("s_waitcnt vmcnt(20)")
    a.e("s_barrier")
    a.e(nonce_load(14))
    issue_v(5); issue_v(6)
    a.e("v_lshlrev_b32 v0, 4, v0")
    a.e("\n".join(ring_setup(0)))
    a.e("v_lshrrev_b32 v0, 4, v0\ns_waitcnt vmcnt(0)\ns_barrier")
    tile_np(a, 4, 5)
    if CW: a.e("s_branch F_NR")
    a.e("s_cbranch_scc1 F_NR\ns_cmp_ge_u32 s61, 3\ns_cbranch_scc1 F_NB\ns_barrier\nF_NB:")
    for k in range(6):
        a.e("\n".join(wd_load(k)))
        if os.environ.get("WTH") and k % 2 == 1: a.e(f"s_waitcnt vmcnt({os.environ['WTH']})")
    a.label("F_NR")
    a.e("\n".join(nonce_check(14, 4)))

PFW = int(os.environ.get("PFW", 0))
def tile_np(a, d, t):
    a.e(f"""s_and_b32 s{t}, s61, 7
    s_cmp_lt_u32 s61, 8
    s_cselect_b32 s{t+1}, 3, 7
    s_cmp_gt_u32 s{t}, s{t+1}
    s_subb_u32 s{d}, s{t}, 0
    s_cmp_eq_u32 s{t}, s{t+1}""")

def wprefetch(a, n):
    tile_np(a, 68, 4)
    a.e("s_cbranch_scc1 F_PW0")
    srd(a, 84, 24, 1792*448*2)
    srd(a, 44, 16, 448*448*2)
    a.e(f"""s_and_b32 s5, s60, 3
    s_lshl_b32 s5, s5, 2
    s_add_u32 s5, s5, s62
    s_lshl_b32 s68, s68, 7
    s_mul_i32 s6, s5, {112*896}
    s_add_u32 s6, s6, s68
    s_mul_i32 s7, s5, {28*896}
    s_add_u32 s7, s7, s68
    v_lshrrev_b32 v21, 1, v0
    v_min_u32 v21, 27, v21
    v_mul_u32_u24 v21, 896, v21
    v_and_b32 v22, 1, v0
    v_lshl_add_u32 v21, v22, 6, v21
    s_bfm_b64 exec, 56, 0""")
    for i in range(4):
        a.e(f"buffer_load_dword v22, v21, s[84:87], s6 offen\ns_add_u32 s6, s6, {28*896}")
    a.e(f"""buffer_load_dword v22, v21, s[44:47], s7 offen
    s_mov_b64 exec, -1
    s_waitcnt vmcnt({n+5})
    s_branch F_PW1
    F_PW0:
    s_waitcnt vmcnt({n})
    F_PW1:""")
```

```python
from asmlib import *
from k1 import WS_Q, WS_KV, WS_ACT, WS_WF, WS_P, WS_SIZE, srd, f32, SLOT, FL_Q, poll, nonce_check, SPIN, SLP, B8, LAY

Q0, O0, S0, P0, KV0, KS = 16, 48, 112, 144, 160, 224
MOFF = 40.0
PRIO = int(os.environ.get("PRIO", 2))
FLAG = 0 * SLOT
PART = 0

def mf(d, x, y, c):
    return f"v_mfma_f32_32x32x16_bf16 v[{d}:{d+15}], v[{x}:{x+3}], v[{y}:{y+3}], " + (f"v[{c}:{c+15}]" if c is not None else "0")

def kload(b): return [f"buffer_load_dwordx4 v[{KV0+16*b+4*i}:{KV0+16*b+4*i+3}], v1, s[52:55], s21 offen offset:{1024*i} sc1" for i in range(2)]
def vload(b): return [f"buffer_load_dwordx4 v[{KV0+16*b+4*i}:{KV0+16*b+4*i+3}], v1, s[52:55], s21 offen offset:{1024*i} sc1" for i in (2, 3)]
ADV = ["s_add_u32 s20, s20, 4096", "s_and_b32 s20, s20, 0xffff", "s_add_u32 s21, s20, s22"]

def maxtree(a, src, dst, acc=None):
    r = list(range(src, src + 16))
    if acc is None:
        a.e(f"v_max3_f32 v{dst}, v{r[0]}, v{r[1]}, v{r[2]}"); r = r[3:]
        while len(r) >= 2:
            a.e(f"v_max3_f32 v{dst}, v{dst}, v{r[0]}, v{r[1]}"); r = r[2:]
        a.e(f"v_max_f32 v{dst}, v{dst}, v{r[0]}")
    else:
        while r:
            a.e(f"v_max3_f32 v{dst}, v{dst}, v{r[0]}, v{r[1]}"); r = r[2:]

def flagread(a, donelab):
    a.e(f"""v_mov_b32 v3, {FLAG}
    ds_read_b128 v[4:7], v3
    s_waitcnt lgkmcnt(0)
    v_or3_b32 v4, v4, v5, v6
    v_or_b32 v4, v4, v7
    v_readfirstlane_b32 s6, v4
    s_cmp_eq_u32 s6, 0
    s_cbranch_scc1 {donelab}""")

def attention(a, wave_sgpr=62):
    a.e(f"""v_lshlrev_b32 v1, 4, v0
    v_cmp_lt_u32 s[30:31], 31, v0
    s_mul_i32 s5, s61, 7
    v_lshrrev_b32 v2, 5, v0
    v_add_u32 v2, s5, v2
    v_and_b32 v3, 31, v0
    v_lshlrev_b32 v3, 4, v3
    s_mov_b32 s24, 0
    s_mov_b32 s19, 0x20000000
    s_cmp_eq_u32 s61, 3
    s_mov_b32 s18, {4*SLOT}
    s_cselect_b32 s18, {SLOT}, s18
    s_lshl_b32 s22, s62, 16
    s_add_u32 s22, s22, {WS_KV}
    s_lshr_b32 s23, s2, 3
    s_and_b32 s23, s23, 15
    s_lshl_b32 s23, s23, 12              ; rotation
    s_lshl_b32 s7, s60, 2
    s_and_b32 s5, s61, 3
    s_add_u32 s7, s7, s5
    s_lshl_b32 s7, s7, 12
    s_add_u32 s7, s7, {WS_KV}""")
    for f in range(2):
        a.e(f"""v_add_u32 v4, {2*f}, v2
        v_lshrrev_b32 v5, 2, v4
        v_lshl_add_u32 v{8+f}, v5, 10, v3
        v_and_b32 v5, 1, v4
        v_lshl_add_u32 v{8+f}, v5, 9, v{8+f}
        v_and_b32 v5, 2, v4
        v_lshl_add_u32 v{8+f}, v5, 2, v{8+f}""")
    if PRIO: a.e("s_setprio 3")
    a.e(f"""s_mov_b32 s27, 0                     ; o published
    s_mul_i32 s5, s61, 28
    v_bfe_u32 v4, v0, 2, 2
    v_mul_u32_u24 v4, 27, v4
    v_add_u32 v4, s5, v4
    v_lshrrev_b32 v4, 7, v4
    v_bfe_u32 v5, v0, 3, 1
    v_mul_u32_u24 v5, 3, v5
    v_or_b32 v4, v4, v5
    v_and_b32 v4, 3, v4
    v_and_b32 v5, 3, v0
    v_lshlrev_b32 v5, 7, v5
    v_lshl_add_u32 v4, v4, 9, v5
    v_bfe_u32 v12, v0, 2, 2
    v_lshl_add_u32 v12, v12, 11, v5
    s_lshl_b32 s29, s60, 11
    s_add_u32 s29, s29, {FL_Q}
    s_lshl_b32 s28, s62, 13
    s_add_u32 s28, s28, {FL_Q + 12*128}
    s_sub_u32 s5, s29, s28
    v_add_u32 v4, s5, v4
    v_cmp_lt_u32 vcc, 15, v0
    v_add_u32 v12, s28, v12
    v_add_u32 v4, s28, v4
    s_mov_b32 s28, 0
    v_cndmask_b32 v12, v12, v4, vcc""")
    def zero():
        for r in range(64): a.e(f"v_mov_b32 v{O0+r}, 0")
        for r in range(8): a.e(f"v_mov_b32 v{KV0+48+8+r}, 0")
    zero()
    a.e(f"""s_add_u32 s5, s18, 10240
    v_and_b32 v13, 3, v0
    v_mul_u32_u24 v13, 12288, v13
    v_add_u32 v13, s5, v13""")
    for i in range(4):
        a.e(f"""s_add_u32 s6, s62, {i}
        s_and_b32 s6, s6, 3
        s_mul_i32 s6, s6, 12288
        s_add_u32 s6, s6, s5
        v_add_u32 v{248+i}, s6, v1""")
    if B8:
        a.e("s_waitcnt vmcnt(0)\ns_barrier")
    a.e(f"""s_mov_b32 s4, {SPIN}
    s_bfm_b64 exec, 28, 0
    s_branch K2_P1F
    K2_P1:
    s_sleep {SLP}
    K2_P1F:
    buffer_load_dword v6, v12, s[52:55], s28 offen sc1
    s_waitcnt vmcnt(0)""")
    a.e(f"""v_cmp_ne_u32 vcc, v6, v14
    s_sub_u32 s4, s4, 1
    s_mov_b32 s20, vcc_lo
    s_cmp_lt_u32 s20, 0x10000
    s_cbranch_scc1 K2_P1E
    s_cmp_lg_u32 s4, 0
    s_cbranch_scc1 K2_P1
    K2_P1E:""")
    a.stamp(2)
    if STAMP: a.e(f"s_sub_u32 s96, {SPIN}, s4\ns_add_u32 s96, s96, s88")
    a.e("s_cmp_eq_u32 s20, 0\ns_cbranch_scc1 K2_NK\ns_bfm_b64 exec, 16, 0\nbuffer_load_dword v6, v12, s[52:55], s28 offen sc1\nK2_NK:\ns_mov_b64 exec, -1")
    for i in range(1):
        a.e(f"""s_add_u32 s6, s62, {i}
        s_and_b32 s6, s6, 3
        s_lshl_b32 s26, s60, 2
        s_add_u32 s6, s6, s26
        s_mul_i32 s6, s6, {112*256}""")
        for f in range(4):
            a.e(f"buffer_load_dwordx2 v[{Q0+8*i+2*f}:{Q0+8*i+2*f+1}], v{8+(f&1)}, s[52:55], s6 offen offset:{(f>>1)*1024} sc1")
    a.e(f"""buffer_load_dwordx4 v[{KS}:{KS+3}], v1, s[52:55], s7 offen sc1
    buffer_load_dwordx4 v[{KS+4}:{KS+7}], v1, s[52:55], s7 offen offset:1024 sc1""")
    a.e("s_cmp_eq_u32 s20, 0\ns_cbranch_scc1 K2_GO")
    a.e("s_waitcnt vmcnt(6)\nv_cmp_ne_u32 vcc, v6, v14\ns_nop 0\ns_and_b32 s20, vcc_lo, 0xffff\ns_cbranch_scc0 K2_GO")
    poll(a, [(6, 12, 28)], 14, 4, lanes=16)
    a.label("K2_GO")
    a.stamp(3)
    def kv_prologue(b0=0, b1=4):
        if b0 == 0: a.e("s_mov_b32 s20, s23\ns_add_u32 s21, s20, s22")
        for b in range(b0, b1):
            if b: a.e("\n".join(ADV))
            a.e("\n".join(kload(b)))
            if b < 3: a.e("\n".join(vload(b)))
    kv_prologue(0, 2)
    a.e(f"""s_waitcnt vmcnt(10)
    ds_write_b128 v248, v[{Q0}:{Q0+3}]
    ds_write_b128 v248, v[{Q0+4}:{Q0+7}] offset:1024
    s_mov_b64 exec, 1
    ds_write_b32 v248, v14 offset:2044
    s_mov_b64 exec, -1
    s_mov_b32 s4, {SPIN * 4}
    K2_XQ:
    ds_read_b32 v6, v13 offset:2044
    s_sub_u32 s4, s4, 1
    s_waitcnt lgkmcnt(0)
    v_cmp_ne_u32 vcc, v6, v14
    s_cmp_eq_u32 s4, 0
    s_cbranch_scc1 K2_XE
    s_cmp_lg_u64 vcc, 0
    s_cbranch_scc1 K2_XQ
    K2_XE:""")
    for i in range(1, 4):
        for h in range(2): a.e(f"ds_read_b128 v[{Q0+8*i+4*h}:{Q0+8*i+4*h+3}], v{248+i} offset:{1024*h}")
    a.e("s_waitcnt vmcnt(8) lgkmcnt(0)")
    SM = [S0, S0 + 16, P0, 232]
    for i in range(4):
        for r in (6, 7): a.e(f"v_cndmask_b32 v{Q0+8*i+r}, v{Q0+8*i+r}, 0, s[30:31]")
    for i in range(4): a.e(mf(SM[i], KS, Q0 + 8 * i, None))
    for i in range(4): a.e(mf(SM[i], KS + 4, Q0 + 8 * i + 4, SM[i]))
    kv_prologue(2, 4)
    for i in range(4): maxtree(a, SM[i], 4 + i)
    for i in range(4): a.e(f"v_mov_b32 v{8+i}, v{4+i}")
    for i in range(4): a.e(f"v_permlane32_swap_b32 v{4+i}, v{8+i}")
    for i in range(4): a.e(f"v_max_f32 v{4+i}, v{4+i}, v{8+i}")
    for i in range(4): a.e(f"v_add_f32 v{4+i}, {f32(MOFF)}, v{4+i}")
    for i in range(4):
        a.e(f"v_cvt_pk_bf16_f32 v{8+i}, -v{4+i}, 0")
    for i in range(4): a.e(f"v_cndmask_b32 v{Q0+8*i+6}, v{Q0+8*i+6}, v{8+i}, s[30:31]")
    a.label("K2_SETM")
    for r in range(8): a.e(f"v_mov_b32 v{P0+8+r}, 0")
    a.e("s_waitcnt vmcnt(12)")
    a.e(mf(S0, KV0, Q0, None)); a.e(mf(S0, KV0 + 4, Q0 + 4, S0))
    a.e(f"s_mov_b32 s25, {os.environ.get('ITER', 4)}")
    if PRIO == 1: a.e("s_setprio 0")
    a.stamp(4)
    a.fence()
    a.raw(".p2align 6")
    def body():
        for u in range(16):
            n = (u + 1) % 16; p = (u - 1) % 16
            Sn = S0 + 16 * ((u + 1) & 1); Sc = S0 + 16 * (u & 1)
            Pc = P0 + 8 * (u & 1); Pp = P0 + 8 * ((u - 1) & 1)
            kb = KV0 + 16 * (n // 4); vb = KV0 + 16 * (p // 4) + 8
            qn = Q0 + 8 * (n % 4); op = O0 + 16 * (p % 4)
            ms = [mf(Sn, kb, qn, None), mf(Sn, kb + 4, qn + 4, Sn), mf(op, vb, Pp, op), mf(op, vb + 4, Pp + 4, op)]
            pre = [[], [], [], []]; post = [[], [], [], []]
            if n % 4 == 0: pre[0].append("s_waitcnt vmcnt(12)")
            if p % 4 == 0: pre[2].append("s_waitcnt vmcnt(12)")
            pr = (lambda l: ["s_setprio 3"] + l + ["s_setprio 0"]) if PRIO == 1 else (lambda l: l)
            if u % 4 == 2: post[0] += ADV; post[1] += pr(kload(u // 4))
            if u % 4 == 0: post[3] += pr(vload(((u // 4) - 1) % 4))
            for g in range(4):
                a.e("\n".join(pre[g] + [ms[g]] + post[g]))
                for r in range(4): a.e(f"v_exp_f32 v{Sc+4*g+r}, v{Sc+4*g+r}")
                if g >= 1:
                    for h in range(2): a.e(f"v_cvt_pk_bf16_f32 v{Pc+2*(g-1)+h}, v{Sc+4*(g-1)+2*h}, v{Sc+4*(g-1)+2*h+1}")
                if g == 3:
                    if u == 15: a.e("s_sub_u32 s25, s25, 1\ns_cmp_lg_u32 s25, 0")
                    for h in range(2): a.e(f"v_cvt_pk_bf16_f32 v{Pc+6+h}, v{Sc+12+2*h}, v{Sc+12+2*h+1}")
    a.label("K2_LOOP")
    n0 = a.nops
    body()
    assert a.nops == n0, "unexpected nops in attention loop"
    a.e("s_cbranch_scc1 K2_LOOP")
    t = Asm(); t.hist = list(a.hist); sv = a;
    a2 = Asm(); a2.hist = list(a.hist)
    a.stamp(5)
    if PRIO: a.e("s_setprio 3")
    vb = KV0 + 48 + 8
    a.e(mf(O0 + 48, vb, P0 + 8, O0 + 48)); a.e(mf(O0 + 48, vb + 4, P0 + 12, O0 + 48))
    a.e("v_add_u32 v2, s18, v1" if LAY else f"v_add_u32 v2, {7*SLOT}, v1\ns_barrier")
    for i in (1, 2, 3):
        a.e(f"""s_add_u32 s6, s62, {i}
        s_and_b32 s6, s6, 3
        s_mul_i32 s6, s6, {3*4096}
        v_add_u32 v3, s6, v2""")
        for g in range(4):
            a.e(f"ds_write_b128 v3, v[{O0+16*i+4*g}:{O0+16*i+4*g+3}] offset:{PART + (i-1)*4096 + g*1024}")
    a.e(f"""s_mul_i32 s6, s62, {3*4096}
    v_add_u32 v3, s6, v2
    s_waitcnt lgkmcnt(0)
    s_barrier""")
    a.stamp(6)
    for i in range(3):
        for g in range(4):
            a.e(f"ds_read_b128 v[{O0+16+16*i+4*g}:{O0+16+16*i+4*g+3}], v3 offset:{PART + i*4096 + g*1024}")
    a.e(f"""s_lshl_b32 s6, s60, 2
    s_add_u32 s6, s6, s62
    s_mul_i32 s6, s6, 144
    s_lshl_b32 s7, s61, 1
    s_add_u32 s6, s6, s7
    s_lshl_b32 s6, s6, 10
    s_add_u32 s6, s6, {WS_ACT + 112*1024}""")
    for i in range(3):
        a.e(f"s_waitcnt lgkmcnt({8 - 4*i})")
        for r in range(16): a.e(f"v_add_f32 v{O0+r}, v{O0+r}, v{O0+16+16*i+r}")
    a.e(f"""v_mov_b32 v4, v{O0+12}
    v_mov_b32 v5, v{O0+12}
    v_mul_f32 v6, 0, v{O0}
    v_permlane32_swap_b32 v4, v5
    v_rcp_f32 v5, v5""")
    for r in range(1, 16): a.e(f"v_fmac_f32 v6, 0, v{O0+r}")
    a.e("v_mul_f32 v4, 0x5f800000, v5\nv_fmac_f32 v6, 0, v4")
    a.e(f"""v_cndmask_b32 v{O0+12}, v{O0+12}, v{O0+7}, s[30:31]
    v_and_b32 v7, 0x1fff, v14
    v_permlane32_swap_b32 v{O0+14}, v{O0+15}
    v_permlane32_swap_b32 v{O0+13}, v{O0+7}
    v_lshl_or_b32 v7, v7, 16, s19""")
    for r in range(16):
        if r % 8 != 7: a.e(f"v_mul_f32 v{O0+r}, v5, v{O0+r}")
    for i in range(8): a.e(f"v_cvt_pk_bf16_f32 v{O0+i}, v{O0+2*i}, v{O0+2*i+1 if i % 4 != 3 else 7}")
    a.e(f"""v_cmp_u_f32 vcc, v6, v6
    s_cmp_lg_u64 vcc, 0
    s_cselect_b32 s5, 1, 0
    s_andn2_b32 s5, s5, s24
    s_lshl_b32 s4, s62, 2
    s_add_u32 s4, s4, {FLAG}
    v_mov_b32 v3, s4
    v_mov_b32 v4, s5
    ds_write_b32 v3, v4
    s_or_b32 s4, s5, s27
    s_cmp_lg_u32 s4, 0
    s_cbranch_scc1 K2_OK
    buffer_store_dwordx4 v[{O0}:{O0+3}], v1, s[52:55], s6 offen sc1
    buffer_store_dwordx4 v[{O0+4}:{O0+7}], v1, s[52:55], s6 offen offset:1024 sc1
    s_mov_b32 s27, 1""")
    if int(os.environ.get('TV', 2)): a.e("s_waitcnt vmcnt(0)")
    a.label("K2_OK")
    a.stamp(7)
    a.e(f"""s_waitcnt lgkmcnt(0)
    s_barrier""")
    flagread(a, "K2_END")
    a.e("s_mov_b32 s24, 1\ns_mov_b32 s25, 16\ns_mov_b32 s21, s22\ns_waitcnt vmcnt(0)")
    for i in range(4):
        for r in (6, 7): a.e(f"v_cndmask_b32 v{Q0+8*i+r}, v{Q0+8*i+r}, 0, s[30:31]")
        a.e(f"v_mov_b32 v{4+i}, 0xff800000")
    a.fence()
    a.label("K2_MAXLOOP")
    a.e("\n".join(kload(0)))
    a.e("s_add_u32 s21, s21, 4096\ns_waitcnt vmcnt(0)")
    for i in range(4):
        a.e(mf(O0 + 16 * i, KV0, Q0 + 8 * i, None))
        a.e(mf(O0 + 16 * i, KV0 + 4, Q0 + 8 * i + 4, O0 + 16 * i))
    for i in range(4): maxtree(a, O0 + 16 * i, 4 + i, acc=True)
    a.e("s_sub_u32 s25, s25, 1\ns_cmp_lg_u32 s25, 0")
    a.fence()
    a.e("s_cbranch_scc1 K2_MAXLOOP")
    for i in range(4): a.e(f"v_mov_b32 v{8+i}, v{4+i}")
    for i in range(4): a.e(f"v_permlane32_swap_b32 v{4+i}, v{8+i}")
    for i in range(4): a.e(f"v_max_f32 v{4+i}, v{4+i}, v{8+i}")
    a.e("v_lshlrev_b32 v12, 2, v0")
    for i in range(4):
        a.e(f"""s_add_u32 s6, s62, {i}
        s_and_b32 s6, s6, 3
        s_lshl_b32 s6, s6, 10
        s_add_u32 s6, s6, {FLAG + 256}
        v_add_u32 v{8+i}, s6, v12
        s_lshl_b32 s7, s62, 8
        v_add_u32 v13, s7, v{8+i}
        ds_write_b32 v13, v{4+i}""")
    a.e("s_waitcnt lgkmcnt(0)\ns_barrier")
    for i in range(4):
        for w in range(4): a.e(f"ds_read_b32 v{O0+4*i+w}, v{8+i} offset:{w*256}")
    a.e("s_waitcnt lgkmcnt(0)")
    for i in range(4):
        a.e(f"v_max3_f32 v{4+i}, v{O0+4*i}, v{O0+4*i+1}, v{O0+4*i+2}\nv_max_f32 v{4+i}, v{4+i}, v{O0+4*i+3}")
    kv_prologue()
    zero()
    for i in range(4):
        m = 4 + i
        a.e(f"""v_cvt_pk_bf16_f32 v8, -v{m}, -v{m}
        v_lshlrev_b32 v8, 16, v8
        v_sub_f32 v9, -v{m}, v8
        v_cvt_pk_bf16_f32 v10, v9, v9
        v_lshlrev_b32 v10, 16, v10
        v_sub_f32 v10, v9, v10
        v_cvt_pk_bf16_f32 v8, -v{m}, v9
        v_cvt_pk_bf16_f32 v10, v10, 0
        v_cndmask_b32 v{Q0+8*i+6}, v{Q0+8*i+6}, v8, s[30:31]
        v_cndmask_b32 v{Q0+8*i+7}, v{Q0+8*i+7}, v10, s[30:31]""")
    a.fence()
    a.e("s_branch K2_SETM")
```

```python
from asmlib import *
WS_Q, WS_KV, WS_ACT, WS_WF, WS_P = 0x0, 0x200000, 0x400000, 0xD00000, 0x1000000
WS_SIZE = 0x2000000
LOG2E = 1.4426950408889634
import struct
def f32(x): return "0x%08x" % struct.unpack("<I", struct.pack("<f", x))[0]
SC = " sc1" if os.environ.get("NOSC1") is None else ""

def srd(a, d, lo, size):
    a.e(f"s_mov_b32 s{d}, s{lo}\ns_mov_b32 s{d+1}, s{lo+1}\ns_mov_b32 s{d+2}, {size}\ns_mov_b32 s{d+3}, 0x20000")

SLOT = 16384
PF = os.environ.get("NOPF") is None
WSLOT = [7, 8, 9, 0, 1, 2, 3]
VSLOT = [4, 5, 6, 7, 8, 9, 0]
VT = 3 * SLOT
FL = 0x1400000
FL_Q, FL_N, FL_H, FL_R = FL, FL + 0x8000, FL + 0x10000, FL + 0x30000
B8 = int(os.environ.get('B8', 34))
SLP = int(os.environ.get('SLP', 4))
SPIN = 400000
QF_AT = int(os.environ.get("QF_AT", 26)); QD = int(os.environ.get("QD", 4))
_lab = [0]
def newlab(p):
    _lab[0] += 1; return f"{p}{_lab[0]}"
def nonce_load(v): return f"buffer_load_dword v{v}, off, s[80:83], 0 sc1"
def nonce_check(v, st):
    L = newlab("NC")
    return [f"v_readfirstlane_b32 s{st}, v{v}", f"s_cmp_lg_u32 s{st}, 0", f"s_cbranch_scc1 {L}E", f"s_mov_b32 s{st+1}, {SPIN}",
            f"{L}:", nonce_load(v), "s_waitcnt vmcnt(0)", f"v_readfirstlane_b32 s{st}, v{v}", f"s_cmp_lg_u32 s{st}, 0",
            f"s_cbranch_scc1 {L}E", f"s_sub_u32 s{st+1}, s{st+1}, 1", f"s_cmp_lg_u32 s{st+1}, 0", f"s_cbranch_scc1 {L}", f"{L}E:"]
def poll(a, loads, vn, st, first=None, lanes=64):
    L = newlab("PL")
    def ld():
        if lanes < 64: a.e(f"s_bfm_b64 exec, {lanes}, 0")
        for d, o, so in loads: a.e(f"buffer_load_dword v{d}, v{o}, s[52:55], s{so} offen sc1")
        a.e("s_waitcnt vmcnt(0)")
    a.e(f"s_mov_b32 s{st}, {SPIN}")
    if first:
        ld()
        if lanes < 64: a.e("s_mov_b64 exec, -1")
        first()
        if lanes < 64: a.e(f"s_bfm_b64 exec, {lanes}, 0")
        a.e(f"s_branch {L}C")
    else:
        a.e(f"s_branch {L}F")
    a.label(L)
    if SLP: a.e(f"s_sleep {SLP}")
    a.label(L + "F"); ld()
    a.label(L + "C")
    d0 = loads[0][0]
    a.e(f"v_xor_b32 v{d0}, v{d0}, v{vn}")
    for d, o, so in loads[1:]:
        a.e(f"v_xor_b32 v{d}, v{d}, v{vn}\nv_or_b32 v{d0}, v{d0}, v{d}")
    a.e(f"v_cmp_ne_u32 vcc, 0, v{d0}\ns_sub_u32 s{st}, s{st}, 1\ns_cmp_eq_u64 vcc, 0\ns_cbranch_scc1 {L}E\ns_cmp_lg_u32 s{st}, 0\ns_cbranch_scc1 {L}")
    a.label(L + "E")
    if lanes < 64: a.e("s_mov_b64 exec, -1")


RD = 11
JS = int(os.environ.get('JS', 0))
CW = int(os.environ.get('CW', 0))
LAY = int(os.environ.get('LAY', 1))
UP = (6 if LAY else 3) * SLOT
def ring_off(k):
    i = k % RD
    return i * 2048 if i < 6 else UP + (i - 6) * 2048
def wd_load(k):
    o = ring_off(k)
    return [f"s_add_u32 m0, s74, {o}", f"s_add_u32 s72, s73, {16*896}", "buffer_load_dwordx4 v12, s[40:43], s73 offen lds",
            f"s_add_u32 m0, s74, {o + 1024}", f"s_cmp_eq_u32 s72, {28*16*896}", "buffer_load_dwordx4 v13, s[40:43], s73 offen lds",
            "s_cselect_b32 s73, 0, s72"]
def ring_setup(skip=6):
    t = Asm(); srd(t, 40, 24, 1792*448*2); tile_np(t, 70, 4)
    t.e(f"""s_and_b32 s5, s60, 3
    s_mul_i32 s5, s5, 7
    s_lshl_b32 s6, s70, 2
    s_add_u32 s5, s5, s6
    s_cmp_ge_u32 s5, 28
    s_cselect_b32 s6, 28, 0
    s_sub_u32 s63, s5, s6
    s_add_u32 s5, s63, {skip}
    s_cmp_ge_u32 s5, 28
    s_cselect_b32 s6, 28, 0
    s_sub_u32 s5, s5, s6
    s_mul_i32 s73, s5, {16*896}
    s_mul_i32 s74, s62, 12288
    s_add_u32 s74, s74, {SLOT}
    s_lshl_b32 s5, s70, 7
    s_mul_i32 s6, s62, {448*896}
    s_add_u32 s5, s5, s6
    v_lshrrev_b32 v7, 7, v0
    v_mul_u32_u24 v7, 896, v7
    v_and_b32 v13, 0x70, v0
    v_add_u32 v7, v7, v13
    v_add_u32 v12, s5, v7
    v_add_u32 v13, {8*896}, v12""")
    return [l.strip() for l in t.lines]

class Win:
    def __init__(self, regs): self.regs = regs; self.cur = 0
    def off(self, addr, span=16384):
        fix = []
        if not (0 <= addr - self.cur and addr - self.cur + span <= 65536):
            new = min((addr // 16384) * 16384, 6 * 16384)
            d = new - self.cur
            for r in self.regs:
                fix.append(f"v_add_u32 v{r}, {d & 0xffffffff}, v{r}")
            self.cur = new
        return fix, addr - self.cur

def a_addr_setup(a, dst, lane, t1, t2):
    a.e(f"""v_bfe_u32 v{t1}, v{lane}, 4, 1
    v_lshlrev_b32 v{dst}, 13, v{t1}
    v_bfe_u32 v{t2}, v{lane}, 2, 2
    v_lshl_add_u32 v{dst}, v{t2}, 7, v{dst}
    v_and_b32 v{t2}, 2, v{t2}
    v_xor_b32 v{t1}, v{t1}, v{t2}
    v_lshl_add_u32 v{dst}, v{t1}, 5, v{dst}
    v_lshrrev_b32 v{t1}, 5, v{lane}
    v_lshl_add_u32 v{dst}, v{t1}, 10, v{dst}
    v_and_b32 v{t1}, 3, v{lane}
    v_lshl_add_u32 v{dst}, v{t1}, 3, v{dst}""")

X0 = 16
ACC = [128, 144, 160, 176, 192, 208, 128, 144]
FR = 224

def ffn_epi(A, sbase, imm):
    o = []
    for r in range(8): o.append(f"v_mul_f32 v{A+r}, s75, v{A+r}")
    for r in range(8): o.append(f"v_exp_f32 v{A+r}, v{A+r}")
    for r in range(8): o.append(f"v_add_f32 v{A+r}, 1.0, v{A+r}")
    for r in range(8): o.append(f"v_rcp_f32 v{A+r}, v{A+r}")
    for r in range(8): o.append(f"v_mul_f32 v{A+r}, v{A+r}, v{A+8+r}")
    for i in range(4): o.append(f"v_cvt_pk_bf16_f32 v{A+8+i}, v{A+2*i}, v{A+2*i+1}")
    o.append(f"buffer_store_dwordx4 v[{A+8}:{A+11}], v0, s[52:55], s{sbase} offen offset:{imm}{SC}")
    return o

def q_epi(A, cbA, cbB):
    o = []
    for i in range(8): o.append(f"v_cvt_pk_bf16_f32 v{A+i}, v{A+2*i}, v{A+2*i+1}")
    for g, cb in ((0, cbA), (1, cbB)):
        o.append(f"buffer_store_dwordx4 v[{A+4*g}:{A+4*g+3}], v0, s[52:55], s{67 + cb//4} offen offset:{(cb%4)*1024}{SC}")
    return o

def k_epi(A):
    o = []
    for r in range(16): o.append(f"v_mul_f32 v{A+r}, s76, v{A+r}")
    for i in range(8): o.append(f"v_cvt_pk_bf16_f32 v{A+i}, v{A+2*i}, v{A+2*i+1}")
    o += [f"v_cndmask_b32 v{A+6}, v{A+6}, v5, vcc", f"v_cndmask_b32 v{A+7}, v{A+7}, v6, vcc",
          f"buffer_store_dwordx4 v[{A}:{A+3}], v0, s[52:55], s71 offen{SC}",
          f"buffer_store_dwordx4 v[{A+4}:{A+7}], v0, s[52:55], s71 offen offset:1024{SC}"]
    return o

def v_pre():
    return ["v_cmp_lt_u32 vcc, 511, v0", "v_mov_b32 v5, 0x3f803f80", "v_mov_b32 v6, 0x3f80",
          "s_lshl_b32 s5, s62, 11", f"s_add_u32 s5, s5, {VT}",
          "v_bfe_u32 v8, v0, 4, 5", "v_lshlrev_b32 v8, 6, v8", "v_lshrrev_b32 v9, 9, v0",
          "v_lshl_add_u32 v8, v9, 3, v8", "v_add_u32 v8, s5, v8",
          "v_bfe_u32 v10, v0, 6, 2", "v_lshl_add_u32 v10, v9, 2, v10", "v_lshlrev_b32 v10, 6, v10",
          "v_bfe_u32 v11, v0, 8, 1", "v_lshl_add_u32 v10, v11, 5, v10", "v_bfe_u32 v11, v0, 4, 2",
          "v_lshl_add_u32 v10, v11, 3, v10", "v_add_u32 v10, s5, v10"]

def v_epi(A):
    o = []
    for i in range(8): o.append(f"v_cvt_pk_bf16_f32 v{A+i}, v{A+2*i}, v{A+2*i+1}")
    o += [f"v_cndmask_b32 v{A+6}, v{A+6}, v6, vcc", f"v_cndmask_b32 v{A+7}, v{A+7}, 0, vcc"]
    for g in range(4): o.append(f"ds_write_b64 v8, v[{A+2*g}:{A+2*g+1}] offset:{16*g}")
    for i in range(4): o.append(f"ds_read_b64_tr_b16 v[{A+8+2*i}:{A+9+2*i}], v10 offset:{i*512}")
    o += ["WAIT", f"buffer_store_dwordx4 v[{A+8}:{A+11}], v0, s[52:55], s71 offen offset:2048{SC}",
          "WAIT", f"buffer_store_dwordx4 v[{A+12}:{A+15}], v0, s[52:55], s71 offen offset:3072{SC}"]
    return o

def mf(acc, fa, fb, first):
    return f"v_mfma_f32_32x32x16_bf16 v[{acc}:{acc+15}], v[{fa}:{fa+3}], v[{fb}:{fb+3}], " + ("0" if first else f"v[{acc}:{acc+15}]")

class Counted:
    def __init__(self, a): self.a = a; self.pend = []
    def emit(self, seq):
        a = self.a
        for i, t in enumerate(seq):
            if t.startswith("WAIT"):
                rs = set(Ins(seq[i + 1]).r)
                if len(t) > 4: rs |= regs_of(t[5:])
                k = -1
                for idx, w in enumerate(self.pend):
                    if w & rs: k = idx
                if k >= 0:
                    left = min(len(self.pend) - 1 - k, 15)
                    a.e(f"s_waitcnt lgkmcnt({left})")
                    self.pend = self.pend[len(self.pend) - left:] if left else []
                continue
            if t == "DRAIN":
                a.e("s_waitcnt lgkmcnt(0)"); self.pend = []; continue
            if t.startswith("STAMP"):
                if a.stamp(int(t[5:])): self.pend = []
                continue
            if t.endswith(":"):
                a.e(t); continue
            ins = Ins(t)
            if ins.ds: self.pend.append(set(ins.w))
            a.e(t)

def k1_entry(a, endlab):
    a.e(f"""s_cmp_ge_u32 s2, 256
    s_cbranch_scc1 {endlab}
    s_load_dwordx16 s[8:23], s[0:1], 0
    s_load_dwordx8 s[24:31], s[0:1], 64""")
    if PF:
        a.e(f"""s_cmp_lt_u32 s2, {os.environ.get("PFLO", 192)}
        s_cbranch_scc1 F_NOPF
        s_getpc_b64 s[6:7]
        F_PC:
        v_lshlrev_b32 v1, 7, v0
        v_min_u32 v1, F_CODE_END-F_PC-4, v1
        global_load_dword v255, v1, s[6:7]
        F_NOPF:""")
    a.e(f"""
    v_lshrrev_b32 v1, 6, v0
    v_and_b32 v0, 63, v0
    s_and_b32 s3, s2, 7
    s_lshr_b32 s4, s2, 3
    v_readfirstlane_b32 s62, v1
    s_and_b32 s60, s3, 3
    s_lshl_b32 s60, s60, 2
    s_and_b32 s5, s4, 3
    s_add_u32 s60, s60, s5             ; mt
    s_lshr_b32 s61, s3, 2
    s_lshl_b32 s61, s61, 3
    s_lshr_b32 s6, s4, 2
    s_add_u32 s61, s61, s6             ; j
    s_lshl_b32 s5, s5, 1
    s_add_u32 s63, s5, s6
    s_cmp_ge_u32 s63, 7
    s_cselect_b32 s6, 7, 0
    s_sub_u32 s63, s63, s6
    v_lshrrev_b32 v2, 3, v0
    v_and_b32 v3, 7, v0                ; p
    s_waitcnt lgkmcnt(0)""")
    srd(a, 52, 30, WS_SIZE)
    srd(a, 80, 28, 256)

def k1_compute(a, tail_hook=None, mid_hook=None):
    srd(a, 32, 8, 1835008)
    a.e("s_setprio 3")
    a.e(f"""v_lshrrev_b32 v4, 4, v0
    v_xor_b32 v4, v4, v3
    v_mul_u32_u24 v5, 896, v2
    v_lshl_add_u32 v12, v4, 4, v5
    v_xor_b32 v4, 4, v4
    v_lshl_add_u32 v13, v4, 4, v5
    s_lshl_b32 s64, s60, 2
    s_add_u32 s64, s64, s62            ; tt
    s_mul_i32 s72, s64, {32*896}
    s_lshl_b32 s73, s63, 7
    s_mul_i32 s74, s62, 28672""")
    def issue_x(c):
        a.e(f"s_add_u32 s6, s72, s73")
        for n in range(4):
            a.e(f"""s_add_u32 m0, s74, {c*4096 + n*1024}
            s_add_u32 s5, s6, {n*8*896}
            buffer_load_dwordx4 v{12 + (n&1)}, s[32:35], s5 offen lds""")
        a.e("s_add_u32 s73, s73, 128\ns_cmp_eq_u32 s73, 896\ns_cselect_b32 s73, 0, s73")
    XU = int(os.environ.get('XU', 4))
    for c in range(XU): issue_x(c)
    a_addr_setup(a, 1, 0, 5, 6)
    a.e(f"""v_xor_b32 v2, 32, v1
    v_xor_b32 v3, 64, v1
    v_xor_b32 v4, 0x60, v1
    v_mov_b32 v200, v1
    s_cmp_lg_u32 s61, 3
    s_cbranch_scc1 K1_NJ3
    v_and_b32 v1, 0x1fff, v1
    v_xor_b32 v2, 64, v1
    v_add_u32 v3, 0x2000, v1
    v_add_u32 v4, 0x2000, v2
    K1_NJ3:
    v_and_b32 v5, 31, v0
    v_bfe_u32 v6, v5, 1, 3
    v_lshrrev_b32 v7, 5, v0
    v_xor_b32 v6, v6, v7
    v_lshlrev_b32 v8, 7, v5
    v_lshl_add_u32 v8, v6, 4, v8
    v_add_u32 v8, s74, v8
    v_xor_b32 v9, 32, v8
    v_xor_b32 v10, 64, v8
    v_xor_b32 v11, 0x60, v8
    v_mov_b32 v5, 0
    v_mov_b32 v6, 0
    v_mov_b32 v7, 0
    v_mov_b32 v14, 0
    v_lshlrev_b32 v15, 3, v0
    v_lshlrev_b32 v0, 4, v0
    s_mov_b32 s77, 0x3f803f80
    s_mov_b32 s78, 0xffff0000
    s_mov_b32 s75, {f32(-LOG2E)}
    s_mov_b32 s76, {f32(LOG2E * 28 ** -0.5)}
    s_mul_i32 s65, s64, {144*1024}
    s_add_u32 s65, s65, {WS_ACT}
    s_add_u32 s5, s61, 24
    s_lshl_b32 s6, s61, 1
    s_sub_u32 s6, s6, 7
    s_cmp_lt_u32 s61, 4
    s_cselect_b32 s5, s5, s6
    s_lshl_b32 s5, s5, 12
    s_add_u32 s66, s65, s5
    s_sub_u32 s65, s66, 4096           ; act base sg0 (ffn only)
    s_mul_i32 s67, s64, {112*256}
    s_lshl_b32 s5, s61, 13             ; j*32 cgs*256
    s_add_u32 s67, s67, s5
    s_add_u32 s68, s67, 4096
    s_lshl_b32 s71, s64, 12
    s_add_u32 s71, s71, {WS_KV}""")
    for c in range(7):
        left = min(XU - 1, 6 - c)
        a.e(f"s_waitcnt vmcnt({4*left})")
        for s in range(4):
            n = 4 * c + s
            a.e(f"ds_read_b128 v[{X0+4*n}:{X0+4*n+3}], v{8+s} offset:{c*4096}")
        if c + XU < 7: issue_x(c + XU)
        for s in range(4):
            a.e(f"s_waitcnt lgkmcnt({3-s})")
            for t in range(4):
                r = X0 + 16 * c + 4 * s + t
                a.e(f"v_dot2_f32_bf16 v{5 if t&1 else 7}, v{r}, s77, v{5 if t&1 else 7}")
                a.e(f"v_dot2_f32_bf16 v{6 if t&1 else 14}, v{r}, v{r}, v{6 if t&1 else 14}")
    a.stamp(2)
    a.e("s_barrier")
    a.stamp(3)
    wa = Win([1, 2, 3, 4])
    def reads_sg0(n):
        c, s = divmod(n, 4)
        fa, oa = wa.off(WSLOT[c] * SLOT)
        g = []
        for t in range(4):
            b = FR + 16 * (n & 1) + 4 * t
            rd = [f"ds_read_b64_tr_b16 v[{b+2*u}:{b+2*u+1}], v{1+t} offset:{oa + s*2048 + u*512}" for u in range(2)]
            g.append((fa if t == 0 else []) + rd)
        return g
    def norm(n, t):
        r = X0 + 4 * n + t; T = 192 + 2 * t
        return [f"v_lshlrev_b32 v{T}, 16, v{r}", f"v_and_b32 v{T+1}, s78, v{r}",
                f"v_fma_f32 v{T}, v{T}, v12, v13", f"v_fma_f32 v{T+1}, v{T+1}, v12, v13",
                f"v_cvt_pk_bf16_f32 v{r}, v{T}, v{T+1}"]
    def reads_pair(n, e, t):
        c, s = divmod(n, 4)
        fa, oa = wa.off(VSLOT[c] * SLOT)
        b = FR + 8 * (n & 3) + 4 * e
        return fa + [f"ds_read_b64_tr_b16 v[{b+2*u}:{b+2*u+1}], v{1+t} offset:{oa + s*2048 + u*512}" for u in range(2)]
    C = Counted(a)
    seq = []
    for g in reads_sg0(0): seq += g
    seq += [x.strip() for x in f"""v_add_f32 v5, v5, v7
    v_add_f32 v6, v6, v14
    v_mov_b32 v8, v5
    v_mov_b32 v9, v6
    v_permlane32_swap_b32 v5, v8
    v_permlane32_swap_b32 v6, v9
    v_add_f32 v5, v5, v8
    v_add_f32 v6, v6, v9
    v_mul_f32 v5, {f32(1/448)}, v5
    v_mul_f32 v6, {f32(1/448)}, v6
    v_fma_f32 v6, -v5, v5, v6
    v_max_f32 v6, 0, v6
    v_cvt_pk_bf16_f32 v5, v5, v5
    v_cvt_pk_bf16_f32 v6, v6, v6
    v_lshlrev_b32 v5, 16, v5
    v_lshlrev_b32 v6, 16, v6
    v_add_f32 v6, {f32(1e-5)}, v6
    v_cvt_pk_bf16_f32 v6, v6, v6
    v_lshlrev_b32 v6, 16, v6
    v_sqrt_f32 v6, v6
    v_cvt_pk_bf16_f32 v6, v6, v6
    v_lshlrev_b32 v6, 16, v6
    v_rcp_f32 v12, v6
    v_mul_f32 v13, -v5, v12""".split("\n")]
    nrm = [norm(0, t) for t in range(4)]
    for i in range(5):
        for t in range(4): seq.append(nrm[t][i])
    for n in range(28):
        c = n // 4
        bar = (n % 4 == 3) and (c % 2 == 0)
        nxt = reads_sg0(n + 1) if (n < 27 and not bar) else None
        nl = v_pre() if n == 27 else []
        if n < 27:
            nn = [norm(n + 1, t) for t in range(4)]
            for p in (0, 2):
                for i in range(5): nl += [nn[p][i], nn[p + 1][i]]
        for t in range(4):
            fa = FR + 16 * (n & 1) + 4 * t
            if bar and t == 2: seq.append("DRAIN")
            elif t % 2 == 0: seq.append(f"WAIT v[{fa+4}:{fa+7}]")
            seq.append(mf(ACC[t], fa, X0 + 4 * n, n == 0))
            if not bar:
                if nxt: seq += nxt[t]
            elif t == 2:
                seq.append("s_barrier")
                if n < 27:
                    nxt = reads_sg0(n + 1); seq += nxt[0] + nxt[1]
                else:
                    wa.cur = 4 * SLOT
                    seq += ["STAMP5", f"v_add_u32 v1, {4*SLOT}, v200", "v_xor_b32 v2, 32, v1", "v_xor_b32 v3, 64, v1", "v_xor_b32 v4, 0x60, v1"]
                    seq += reads_pair(0, 0, 0) + reads_pair(0, 1, 1) + reads_pair(1, 0, 0) + reads_pair(1, 1, 1)
            elif t == 3 and n < 27:
                seq += nxt[2] + nxt[3]
            seq += nl[len(nl) * t // 4: len(nl) * (t + 1) // 4]
    C.emit(seq)
    def pair_phase(accs, tiles, next_tiles, first):
        groups = []
        for n in range(28):
            for e in range(2):
                fa = FR + 8 * (n & 3) + 4 * e
                g = [f"WAIT v[{fa+4}:{fa+7}]"] if e == 0 else []
                g.append(mf(accs[e], fa, X0 + 4 * n, n == 0))
                if first and n == 0: g += reads_pair(2, e, tiles[e])
                if n + 3 < 28: g += reads_pair(n + 3, e, tiles[e])
                elif next_tiles is not None: g += reads_pair(n + 3 - 28, e, next_tiles[e])
                groups.append(g)
        return groups
    save = (wa.cur, list(C.pend), None)
    def variant(kind):
        wa.cur = save[0]; C.pend = list(save[1])
        g2 = pair_phase([ACC[4], ACC[5]], [0, 1], [2, 3], True)
        g3 = pair_phase([ACC[6], ACC[7]], [2, 3], None, False)
        if B8:
            b8 = B8 + {"ffn": int(os.environ.get('B8F', 50)), "q": int(os.environ.get('B8Q', 46)), "kv": 0}[kind]
            gg = g2 if b8 < 56 else g3
            gg[b8 % 56] = gg[b8 % 56] + ["s_barrier"]
            rs = ring_setup(0 if (CW or (JS and kind == 'q')) else 6)
            assert QF_AT < 30
            r0 = 2 if (CW and kind == "ffn") else (12 if CW else 30)
            for i in range(10): g2[r0 + i] = g2[r0 + i] + rs[len(rs)*i//10: len(rs)*(i+1)//10]
            if CW and kind != "kv":
                for k in range(6):
                    p = (12 if kind == "ffn" else QF_AT + 1) + CW * k
                    g2[p] = g2[p] + wd_load(k)
            assert kind == "kv" or b8 >= 80
        if kind == "ffn":
            f2 = sum((ffn_epi(ACC[t], 65, t * 1024) for t in range(3)), [])
            f3 = ffn_epi(ACC[3], 65, 3072)
        elif kind == "q":
            f2 = sum((q_epi(ACC[t], t, 4 + t) for t in range(4)), []); f3 = []
        else:
            ve = v_epi(ACC[3])
            f2 = q_epi(ACC[0], 0, 1) + ve[:-4] + k_epi(ACC[2]) + ve[-4:] + q_epi(ACC[1], 2, 3); f3 = []
        f3 = f3 + ffn_epi(ACC[4], 66, 0) + ffn_epi(ACC[5], 66, 1024)
        def ilv(groups, fill):
            units = []
            i = 0
            while i < len(fill):
                if fill[i].startswith("WAIT"): units.append(fill[i:i+2]); i += 2
                else: units.append([fill[i]]); i += 1
            out = []; k = 0
            for gi, g in enumerate(groups):
                out += g
                tgt = (len(units) * (gi + 1)) // len(groups)
                for u in units[k:tgt]: out += u
                k = tgt
            return out
        seq = [nonce_load(14)] + (g2[0] + g2[1] + g2[2] + ilv(g2[3:56], f2) if kind == "ffn" else ilv(g2[:QD], f2))
        if kind != "ffn":
            pre = ["s_lshl_b32 s5, s60, 11", "s_lshl_b32 s6, s61, 9", "s_add_u32 s5, s5, s6", "s_lshl_b32 s6, s62, 7",
                   "s_add_u32 s5, s5, s6", f"s_add_u32 s79, s5, {FL_Q}"]
            pub = ["STAMP8", "s_waitcnt vmcnt(0)"] + nonce_check(14, 4) + ["s_mov_b64 exec, 1",
                   "buffer_store_dword v14, off, s[52:55], s79 sc1", "s_mov_b64 exec, -1", "STAMP9"] + (["s_barrier"] if kind == "q" and not CW and not JS else [])
            seq += ["STAMP4"] + ilv(g2[QD:QD+6], pre)
            for gi in range(QD+6, 56):
                if gi == QF_AT: seq += pub
                seq += g2[gi]
            if QF_AT >= 56: seq += pub
        seq += ["STAMP6"]
        lead = 1 if kind == "ffn" else 4
        for g in g3[:lead]: seq += g
        seq += ilv(g3[lead:], f3)
        C.emit(seq)
        a.stamp(7)
        e0 = ffn_epi(ACC[6], 66, 2048); e1 = ffn_epi(ACC[7], 66, 3072)
        a.e("\n".join(e0 + e1))
        a.e("s_branch K1_CDONE")
    hist = list(a.hist)
    a.e("s_cmp_lt_u32 s61, 4\ns_cbranch_scc1 K1_QKV")
    variant("ffn")
    a.label("K1_QKV"); a.hist = list(hist)
    a.e("s_cmp_eq_u32 s61, 3\ns_cbranch_scc1 K1_KV")
    variant("q")
    a.label("K1_KV"); a.hist = list(hist)
    variant("kv")
    a.label("K1_CDONE")

def k1_loader(a):
    srd(a, 44, 12, 25088)
    srd(a, 48, 14, 25088)
    srd(a, 32, 20, 448*1792*2)
    srd(a, 56, 22, 448*1792*2)
    a.e(f"""s_sub_u32 s62, s62, 4
    s_cmp_ge_u32 s61, 4
    s_cselect_b32 s36, s20, s10
    s_cselect_b32 s37, s21, s11
    s_cselect_b32 s40, s22, s10
    s_cselect_b32 s41, s23, s11
    s_mov_b32 s38, {448*448*2}
    s_mov_b32 s64, 896
    s_cselect_b32 s38, {448*1792*2}, s38
    s_cselect_b32 s64, 3584, s64
    s_cselect_b32 s5, 0, 128
    s_mov_b32 s39, 0x20000
    s_mov_b32 s42, s38
    s_mov_b32 s43, 0x20000
    s_sub_u32 s6, s61, 4
    s_cmp_ge_u32 s61, 4
    s_cselect_b32 s6, s6, s61
    s_lshl_b32 s65, s6, 8
    s_add_u32 s7, s65, 128
    s_lshl_b32 s6, s61, 7
    s_add_u32 s6, s6, {24*128}
    s_cmp_ge_u32 s61, 4
    s_cselect_b32 s67, s7, s6
    s_mul_i32 s7, s62, s64
    s_lshl_b32 s7, s7, 4
    s_add_u32 s65, s65, s7
    s_add_u32 s66, s65, s5              ; B sg0
    s_mul_i32 s7, s62, {16*3584}
    s_add_u32 s67, s67, s7              ; sg1
    s_lshl_b32 s69, s64, 3
    s_lshl_b32 s70, s64, 6
    s_lshl_b32 s73, s62, 11
    s_mul_i32 s74, s62, {16*56}         ; kv row base
    s_mov_b32 s71, s63
    s_mov_b32 s72, s63
    v_lshrrev_b32 v4, 1, v3             ; ps
    v_and_b32 v5, 2, v2
    v_xor_b32 v4, v4, v5                ; tA
    v_xor_b32 v5, 1, v4                 ; tB
    v_and_b32 v6, 1, v3
    v_mul_lo_u32 v7, v2, s64
    v_lshl_add_u32 v7, v6, 4, v7
    v_lshl_add_u32 v10, v4, 5, v7
    v_lshl_add_u32 v11, v5, 5, v7
    v_mul_u32_u24 v7, 3584, v2
    v_lshl_add_u32 v7, v6, 4, v7
    v_lshl_add_u32 v8, v4, 5, v7
    v_lshl_add_u32 v9, v5, 5, v7
    v_mul_u32_u24 v7, 56, v2
    v_and_b32 v6, 3, v3
    v_lshl_add_u32 v12, v6, 4, v7       ; kv voff
    v_cmp_gt_u32 s[76:77], 2, v4
    v_cmp_le_u32 s[78:79], 2, v4""")
    def adv(s): a.e(f"s_add_u32 s{s}, s{s}, 1\ns_cmp_eq_u32 s{s}, 7\ns_cselect_b32 s{s}, 0, s{s}")
    lab = [0]
    def issue_w(c):
        base = WSLOT[c] * SLOT; lab[0] += 1; L = lab[0]
        a.e(f"""s_mul_i32 s7, s71, s70
        s_add_u32 s5, s65, s7
        s_add_u32 s6, s66, s7
        s_cmp_eq_u32 s61, 3
        s_cbranch_scc1 K1_VS{L}
        s_add_u32 m0, s73, {base}
        s_add_u32 s7, s5, s69
        buffer_load_dwordx4 v10, s[36:39], s5 offen lds
        s_add_u32 m0, s73, {base + 1024}
        s_add_u32 s3, s6, s69
        buffer_load_dwordx4 v10, s[36:39], s7 offen lds
        s_add_u32 m0, s73, {base + 8192}
        s_nop 0
        buffer_load_dwordx4 v11, s[40:43], s6 offen lds
        s_add_u32 m0, s73, {base + 8192 + 1024}
        s_nop 0
        buffer_load_dwordx4 v11, s[40:43], s3 offen lds
        s_branch K1_VE{L}""")
        a.label(f"K1_VS{L}")
        a.e(f"""s_mul_i32 s7, s71, {64*56}
        s_add_u32 s7, s7, s74
        s_add_u32 m0, s73, {base}
        s_add_u32 s3, s5, s69
        buffer_load_dwordx4 v10, s[36:39], s5 offen lds
        s_add_u32 m0, s73, {base + 1024}
        s_add_u32 s4, s7, {8*56}
        buffer_load_dwordx4 v10, s[36:39], s3 offen lds""")
        for n in range(2):
            a.e(f"""s_add_u32 m0, s73, {base + 8192 + n*1024}
            s_mov_b64 exec, s[76:77]
            buffer_load_dwordx4 v12, s[44:47], s{7 if n == 0 else 4} offen lds
            s_mov_b64 exec, s[78:79]
            buffer_load_dwordx4 v12, s[48:51], s{7 if n == 0 else 4} offen lds""")
        a.e("s_mov_b64 exec, -1")
        a.label(f"K1_VE{L}")
        adv(71)
    def issue_v(c):
        base = VSLOT[c] * SLOT
        a.e(f"""s_mul_i32 s5, s72, {64*3584}
        s_add_u32 s5, s5, s67
        s_add_u32 m0, s73, {base}
        s_add_u32 s7, s5, {8*3584}
        buffer_load_dwordx4 v8, s[32:35], s5 offen lds
        s_add_u32 m0, s73, {base + 1024}
        s_nop 0
        buffer_load_dwordx4 v8, s[32:35], s7 offen lds
        s_add_u32 m0, s73, {base + 8192}
        s_nop 0
        buffer_load_dwordx4 v9, s[56:59], s5 offen lds
        s_add_u32 m0, s73, {base + 8192 + 1024}
        s_nop 0
        buffer_load_dwordx4 v9, s[56:59], s7 offen lds""")
        adv(72)
    def w3(n, n3):
        L = newlab("W3")
        a.e(f"s_cmp_eq_u32 s61, 3\ns_cbranch_scc1 {L}\ns_waitcnt vmcnt({n})\n{L}:\ns_waitcnt vmcnt({n3})")
    issue_w(0)
    a.e(f"""s_lshl_b32 s3, s2, 2
    s_xor_b32 s3, s3, 3
    s_mov_b32 s4, {FL_N}
    s_cmp_lg_u32 s3, s62
    s_cbranch_scc1 F_NN
    buffer_load_dword v20, off, s[52:55], s4 sc1
    s_waitcnt vmcnt(0)
    v_add_u32 v20, 1, v20
    v_or_b32 v20, 0x80000000, v20
    s_mov_b64 exec, 1
    buffer_store_dword v20, off, s[80:83], 0 sc1
    buffer_store_dword v20, off, s[52:55], s4 sc1
    s_mov_b64 exec, -1
    s_branch F_NN2
    F_NN:
    s_waitcnt vmcnt(0)
    F_NN2:""")
    issue_w(1)
    if os.environ.get("W2L"): a.e("s_waitcnt vmcnt(0)")
    issue_w(2)
    if os.environ.get("TLB"):
        srd(a, 84, 24, 1792*448*2)
        a.e(f"""s_mul_i32 s4, s62, {64*6272}
        v_mul_u32_u24 v21, 6272, v0
        buffer_load_dword v22, v21, s[84:87], s4 offen
        s_mov_b32 s84, s16
        s_mov_b32 s85, s17
        s_mov_b32 s86, {448*448*2}
        s_cmp_lg_u32 s62, 0
        s_cbranch_scc1 F_TL
        buffer_load_dword v22, v21, s[84:87], 0 offen
        F_TL:""")
    a.e("s_barrier")
    issue_w(3)
    w3(4, 6)
    a.e("s_barrier")
    issue_w(4); issue_w(5); issue_w(6); issue_v(0)
    w3(12, 16)
    a.e("s_barrier")
    issue_v(1); issue_v(2); issue_v(3); issue_v(4)
    if PFW == 3: wprefetch(a, 20)
    else: a.e("s_waitcnt vmcnt(20)")
    a.e("s_barrier")
    a.e(nonce_load(14))
    issue_v(5); issue_v(6)
    a.e("v_lshlrev_b32 v0, 4, v0")
    a.e("\n".join(ring_setup(0)))
    a.e("v_lshrrev_b32 v0, 4, v0\ns_waitcnt vmcnt(0)\ns_barrier")
    tile_np(a, 4, 5)
    if CW: a.e("s_branch F_NR")
    if JS: a.e("s_cbranch_scc1 F_NR\ns_cmp_lt_u32 s61, 3")
    a.e("s_cbranch_scc1 F_NR\ns_cmp_ge_u32 s61, 3\ns_cbranch_scc1 F_NB\ns_barrier\nF_NB:")
    for k in range(6):
        a.e("\n".join(wd_load(k)))
        if os.environ.get("WTH") and k % 2 == 1: a.e(f"s_waitcnt vmcnt({os.environ['WTH']})")
    a.label("F_NR")
    a.e("\n".join(nonce_check(14, 4)))

PFW = int(os.environ.get("PFW", 0))
def tile_np(a, d, t):
    a.e(f"""s_and_b32 s{t}, s61, 7
    s_cmp_lt_u32 s61, 8
    s_cselect_b32 s{t+1}, 3, 7
    s_cmp_gt_u32 s{t}, s{t+1}
    s_subb_u32 s{d}, s{t}, 0
    s_cmp_eq_u32 s{t}, s{t+1}""")

def wprefetch(a, n):
    tile_np(a, 68, 4)
    a.e("s_cbranch_scc1 F_PW0")
    srd(a, 84, 24, 1792*448*2)
    srd(a, 44, 16, 448*448*2)
    a.e(f"""s_and_b32 s5, s60, 3
    s_lshl_b32 s5, s5, 2
    s_add_u32 s5, s5, s62
    s_lshl_b32 s68, s68, 7
    s_mul_i32 s6, s5, {112*896}
    s_add_u32 s6, s6, s68
    s_mul_i32 s7, s5, {28*896}
    s_add_u32 s7, s7, s68
    v_lshrrev_b32 v21, 1, v0
    v_min_u32 v21, 27, v21
    v_mul_u32_u24 v21, 896, v21
    v_and_b32 v22, 1, v0
    v_lshl_add_u32 v21, v22, 6, v21
    s_bfm_b64 exec, 56, 0""")
    for i in range(4):
        a.e(f"buffer_load_dword v22, v21, s[84:87], s6 offen\ns_add_u32 s6, s6, {28*896}")
    a.e(f"""buffer_load_dword v22, v21, s[44:47], s7 offen
    s_mov_b64 exec, -1
    s_waitcnt vmcnt({n+5})
    s_branch F_PW1
    F_PW0:
    s_waitcnt vmcnt({n})
    F_PW1:""")
```

```python
from asmlib import *
from k1 import WS_Q, WS_KV, WS_ACT, WS_WF, WS_P, WS_SIZE, srd, f32, SLOT, FL_Q, poll, nonce_check, SPIN, SLP, B8, LAY

Q0, O0, S0, P0, KV0, KS = 16, 48, 112, 144, 160, 224
MOFF = 40.0
CL = int(os.environ.get('CL', 0))
PRIO = int(os.environ.get("PRIO", 2))
FLAG = 0 * SLOT
PART = 0

def mf(d, x, y, c):
    return f"v_mfma_f32_32x32x16_bf16 v[{d}:{d+15}], v[{x}:{x+3}], v[{y}:{y+3}], " + (f"v[{c}:{c+15}]" if c is not None else "0")

def kload(b): return [f"buffer_load_dwordx4 v[{KV0+16*b+4*i}:{KV0+16*b+4*i+3}], v1, s[52:55], s21 offen offset:{1024*i} sc1" for i in range(2)]
def vload(b): return [f"buffer_load_dwordx4 v[{KV0+16*b+4*i}:{KV0+16*b+4*i+3}], v1, s[52:55], s21 offen offset:{1024*i} sc1" for i in (2, 3)]
ADV = ["s_add_u32 s20, s20, 4096", "s_and_b32 s20, s20, 0xffff", "s_add_u32 s21, s20, s22"]

def maxtree(a, src, dst, acc=None):
    r = list(range(src, src + 16))
    if acc is None:
        a.e(f"v_max3_f32 v{dst}, v{r[0]}, v{r[1]}, v{r[2]}"); r = r[3:]
        while len(r) >= 2:
            a.e(f"v_max3_f32 v{dst}, v{dst}, v{r[0]}, v{r[1]}"); r = r[2:]
        a.e(f"v_max_f32 v{dst}, v{dst}, v{r[0]}")
    else:
        while r:
            a.e(f"v_max3_f32 v{dst}, v{dst}, v{r[0]}, v{r[1]}"); r = r[2:]

def flagread(a, donelab):
    a.e(f"""v_mov_b32 v3, {FLAG}
    ds_read_b128 v[4:7], v3
    s_waitcnt lgkmcnt(0)
    v_or3_b32 v4, v4, v5, v6
    v_or_b32 v4, v4, v7
    v_readfirstlane_b32 s6, v4
    s_cmp_eq_u32 s6, 0
    s_cbranch_scc1 {donelab}""")

def attention(a, wave_sgpr=62):
    a.e(f"""v_lshlrev_b32 v1, 4, v0
    v_cmp_lt_u32 s[30:31], 31, v0
    s_mul_i32 s5, s61, 7
    v_lshrrev_b32 v2, 5, v0
    v_add_u32 v2, s5, v2
    v_and_b32 v3, 31, v0
    v_lshlrev_b32 v3, 4, v3
    s_mov_b32 s24, 0
    s_mov_b32 s19, 0x20000000
    s_cmp_eq_u32 s61, 3
    s_mov_b32 s18, {4*SLOT}
    s_cselect_b32 s18, {SLOT}, s18
    s_lshl_b32 s22, s62, 16
    s_add_u32 s22, s22, {WS_KV}
    s_lshr_b32 s23, s2, 3
    s_and_b32 s23, s23, 15
    s_lshl_b32 s23, s23, 12              ; rotation
    s_lshl_b32 s7, s60, 2
    s_and_b32 s5, s61, 3
    s_add_u32 s7, s7, s5
    s_lshl_b32 s7, s7, 12
    s_add_u32 s7, s7, {WS_KV}""")
    for f in range(2):
        a.e(f"""v_add_u32 v4, {2*f}, v2
        v_lshrrev_b32 v5, 2, v4
        v_lshl_add_u32 v{8+f}, v5, 10, v3
        v_and_b32 v5, 1, v4
        v_lshl_add_u32 v{8+f}, v5, 9, v{8+f}
        v_and_b32 v5, 2, v4
        v_lshl_add_u32 v{8+f}, v5, 2, v{8+f}""")
    if PRIO: a.e("s_setprio 3")
    a.e(f"""s_mov_b32 s27, 0                     ; o published
    s_mul_i32 s5, s61, 28
    v_bfe_u32 v4, v0, 2, 2
    v_mul_u32_u24 v4, 27, v4
    v_add_u32 v4, s5, v4
    v_lshrrev_b32 v4, 7, v4
    v_bfe_u32 v5, v0, 3, 1
    v_mul_u32_u24 v5, 3, v5
    v_or_b32 v4, v4, v5
    v_and_b32 v4, 3, v4
    v_and_b32 v5, 3, v0
    v_lshlrev_b32 v5, 7, v5
    v_lshl_add_u32 v4, v4, 9, v5
    v_bfe_u32 v12, v0, 2, 2
    v_lshl_add_u32 v12, v12, 11, v5
    s_lshl_b32 s29, s60, 11
    s_add_u32 s29, s29, {FL_Q}
    s_lshl_b32 s28, s62, 13
    s_add_u32 s28, s28, {FL_Q + 12*128}
    s_sub_u32 s5, s29, s28
    v_add_u32 v4, s5, v4
    v_cmp_lt_u32 vcc, 15, v0
    v_add_u32 v12, s28, v12
    v_add_u32 v4, s28, v4
    s_mov_b32 s28, 0
    v_cndmask_b32 v12, v12, v4, vcc""")
    def zero():
        for r in range(64): a.e(f"v_mov_b32 v{O0+r}, 0")
        for r in range(8): a.e(f"v_mov_b32 v{KV0+48+8+r}, 0")
    zero()
    a.e(f"""s_add_u32 s5, s18, 10240
    v_and_b32 v13, 3, v0
    v_mul_u32_u24 v13, 12288, v13
    v_add_u32 v13, s5, v13""")
    for i in range(4):
        a.e(f"""s_add_u32 s6, s62, {i}
        s_and_b32 s6, s6, 3
        s_mul_i32 s6, s6, 12288
        s_add_u32 s6, s6, s5
        v_add_u32 v{248+i}, s6, v1""")
    if B8:
        a.e("s_waitcnt vmcnt(0)\ns_barrier")
    a.e(f"""s_mov_b32 s4, {SPIN}
    s_bfm_b64 exec, 28, 0
    s_branch K2_P1F
    K2_P1:
    s_sleep {SLP}
    K2_P1F:
    buffer_load_dword v6, v12, s[52:55], s28 offen sc1
    s_waitcnt vmcnt(0)""")
    a.e(f"""v_cmp_ne_u32 vcc, v6, v14
    s_sub_u32 s4, s4, 1
    s_mov_b32 s20, vcc_lo
    s_cmp_lt_u32 s20, 0x10000
    s_cbranch_scc1 K2_P1E
    s_cmp_lg_u32 s4, 0
    s_cbranch_scc1 K2_P1
    K2_P1E:""")
    a.stamp(2)
    if STAMP: a.e(f"s_sub_u32 s96, {SPIN}, s4\ns_add_u32 s96, s96, s88")
    a.e("s_cmp_eq_u32 s20, 0\ns_cbranch_scc1 K2_NK\ns_bfm_b64 exec, 16, 0\nbuffer_load_dword v6, v12, s[52:55], s28 offen sc1\nK2_NK:\ns_mov_b64 exec, -1")
    for i in range(1):
        a.e(f"""s_add_u32 s6, s62, {i}
        s_and_b32 s6, s6, 3
        s_lshl_b32 s26, s60, 2
        s_add_u32 s6, s6, s26
        s_mul_i32 s6, s6, {112*256}""")
        for f in range(4):
            a.e(f"buffer_load_dwordx2 v[{Q0+8*i+2*f}:{Q0+8*i+2*f+1}], v{8+(f&1)}, s[52:55], s6 offen offset:{(f>>1)*1024} sc1")
    a.e(f"""buffer_load_dwordx4 v[{KS}:{KS+3}], v1, s[52:55], s7 offen sc1
    buffer_load_dwordx4 v[{KS+4}:{KS+7}], v1, s[52:55], s7 offen offset:1024 sc1""")
    a.e("s_cmp_eq_u32 s20, 0\ns_cbranch_scc1 K2_GO")
    a.e("s_waitcnt vmcnt(6)\nv_cmp_ne_u32 vcc, v6, v14\ns_nop 0\ns_and_b32 s20, vcc_lo, 0xffff\ns_cbranch_scc0 K2_GO")
    poll(a, [(6, 12, 28)], 14, 4, lanes=16)
    a.label("K2_GO")
    a.stamp(3)
    def kv_prologue(b0=0, b1=4):
        if b0 == 0: a.e("s_mov_b32 s20, s23\ns_add_u32 s21, s20, s22")
        for b in range(b0, b1):
            if b: a.e("\n".join(ADV))
            a.e("\n".join(kload(b)))
            if b < 3: a.e("\n".join(vload(b)))
    kv_prologue(0, 2)
    a.e(f"""s_waitcnt vmcnt(10)
    ds_write_b128 v248, v[{Q0}:{Q0+3}]
    ds_write_b128 v248, v[{Q0+4}:{Q0+7}] offset:1024
    s_mov_b64 exec, 1
    ds_write_b32 v248, v14 offset:2044
    s_mov_b64 exec, -1
    s_mov_b32 s4, {SPIN * 4}
    K2_XQ:
    ds_read_b32 v6, v13 offset:2044
    s_sub_u32 s4, s4, 1
    s_waitcnt lgkmcnt(0)
    v_cmp_ne_u32 vcc, v6, v14
    s_cmp_eq_u32 s4, 0
    s_cbranch_scc1 K2_XE
    s_cmp_lg_u64 vcc, 0
    s_cbranch_scc1 K2_XQ
    K2_XE:""")
    for i in range(1, 4):
        for h in range(2): a.e(f"ds_read_b128 v[{Q0+8*i+4*h}:{Q0+8*i+4*h+3}], v{248+i} offset:{1024*h}")
    a.e("s_waitcnt vmcnt(8) lgkmcnt(0)")
    SM = [S0, S0 + 16, P0, 232]
    for i in range(4):
        for r in (6, 7): a.e(f"v_cndmask_b32 v{Q0+8*i+r}, v{Q0+8*i+r}, 0, s[30:31]")
    for i in range(4): a.e(mf(SM[i], KS, Q0 + 8 * i, None))
    for i in range(4): a.e(mf(SM[i], KS + 4, Q0 + 8 * i + 4, SM[i]))
    kv_prologue(2, 4)
    for i in range(4): maxtree(a, SM[i], 4 + i)
    for i in range(4): a.e(f"v_mov_b32 v{8+i}, v{4+i}")
    for i in range(4): a.e(f"v_permlane32_swap_b32 v{4+i}, v{8+i}")
    for i in range(4): a.e(f"v_max_f32 v{4+i}, v{4+i}, v{8+i}")
    for i in range(4): a.e(f"v_add_f32 v{4+i}, {f32(MOFF)}, v{4+i}")
    for i in range(4):
        a.e(f"v_cvt_pk_bf16_f32 v{8+i}, -v{4+i}, 0")
    for i in range(4): a.e(f"v_cndmask_b32 v{Q0+8*i+6}, v{Q0+8*i+6}, v{8+i}, s[30:31]")
    a.label("K2_SETM")
    for r in range(8): a.e(f"v_mov_b32 v{P0+8+r}, 0")
    a.e("s_waitcnt vmcnt(12)")
    a.e(mf(S0, KV0, Q0, None)); a.e(mf(S0, KV0 + 4, Q0 + 4, S0))
    a.e(f"s_mov_b32 s25, {os.environ.get('ITER', 4)}")
    if PRIO == 1: a.e("s_setprio 0")
    a.stamp(4)
    a.fence()
    a.raw(".p2align 6")
    def body():
        for u in range(16):
            n = (u + 1) % 16; p = (u - 1) % 16
            Sn = S0 + 16 * ((u + 1) & 1); Sc = S0 + 16 * (u & 1)
            Pc = P0 + 8 * (u & 1); Pp = P0 + 8 * ((u - 1) & 1)
            kb = KV0 + 16 * (n // 4); vb = KV0 + 16 * (p // 4) + 8
            qn = Q0 + 8 * (n % 4); op = O0 + 16 * (p % 4)
            ms = [mf(Sn, kb, qn, None), mf(Sn, kb + 4, qn + 4, Sn), mf(op, vb, Pp, op), mf(op, vb + 4, Pp + 4, op)]
            pre = [[], [], [], []]; post = [[], [], [], []]
            if n % 4 == 0: pre[0].append("s_waitcnt vmcnt(12)")
            if p % 4 == 0: pre[2].append("s_waitcnt vmcnt(12)")
            pr = (lambda l: ["s_setprio 3"] + l + ["s_setprio 0"]) if PRIO == 1 else (lambda l: l)
            if u % 4 == 2: post[0] += ADV; post[1] += pr(kload(u // 4))
            if u % 4 == 0: post[3] += pr(vload(((u // 4) - 1) % 4))
            for g in range(4):
                a.e("\n".join(pre[g] + [ms[g]] + post[g]))
                for r in range(4): a.e(f"v_exp_f32 v{Sc+4*g+r}, v{Sc+4*g+r}")
                if CL and g == 3:
                    for h in range(6): a.e(f"v_cvt_pk_bf16_f32 v{Pc+h}, v{Sc+2*h}, v{Sc+2*h+1}")
                if g >= 1 and not CL:
                    for h in range(2): a.e(f"v_cvt_pk_bf16_f32 v{Pc+2*(g-1)+h}, v{Sc+4*(g-1)+2*h}, v{Sc+4*(g-1)+2*h+1}")
                if g == 3:
                    if u == 15: a.e("s_sub_u32 s25, s25, 1\ns_cmp_lg_u32 s25, 0")
                    for h in range(2): a.e(f"v_cvt_pk_bf16_f32 v{Pc+6+h}, v{Sc+12+2*h}, v{Sc+12+2*h+1}")
    a.label("K2_LOOP")
    n0 = a.nops
    body()
    assert a.nops == n0, "unexpected nops in attention loop"
    a.e("s_cbranch_scc1 K2_LOOP")
    t = Asm(); t.hist = list(a.hist); sv = a;
    a2 = Asm(); a2.hist = list(a.hist)
    a.stamp(5)
    if PRIO: a.e("s_setprio 3")
    vb = KV0 + 48 + 8
    a.e(mf(O0 + 48, vb, P0 + 8, O0 + 48)); a.e(mf(O0 + 48, vb + 4, P0 + 12, O0 + 48))
    a.e("v_add_u32 v2, s18, v1" if LAY else f"v_add_u32 v2, {7*SLOT}, v1\ns_barrier")
    for i in (1, 2, 3):
        a.e(f"""s_add_u32 s6, s62, {i}
        s_and_b32 s6, s6, 3
        s_mul_i32 s6, s6, {3*4096}
        v_add_u32 v3, s6, v2""")
        for g in range(4):
            a.e(f"ds_write_b128 v3, v[{O0+16*i+4*g}:{O0+16*i+4*g+3}] offset:{PART + (i-1)*4096 + g*1024}")
    a.e(f"""s_mul_i32 s6, s62, {3*4096}
    v_add_u32 v3, s6, v2
    s_waitcnt lgkmcnt(0)
    s_barrier""")
    a.stamp(6)
    for i in range(3):
        for g in range(4):
            a.e(f"ds_read_b128 v[{O0+16+16*i+4*g}:{O0+16+16*i+4*g+3}], v3 offset:{PART + i*4096 + g*1024}")
    a.e(f"""s_lshl_b32 s6, s60, 2
    s_add_u32 s6, s6, s62
    s_mul_i32 s6, s6, 144
    s_lshl_b32 s7, s61, 1
    s_add_u32 s6, s6, s7
    s_lshl_b32 s6, s6, 10
    s_add_u32 s6, s6, {WS_ACT + 112*1024}""")
    for i in range(3):
        a.e(f"s_waitcnt lgkmcnt({8 - 4*i})")
        for r in range(16): a.e(f"v_add_f32 v{O0+r}, v{O0+r}, v{O0+16+16*i+r}")
    a.e(f"""v_mov_b32 v4, v{O0+12}
    v_mov_b32 v5, v{O0+12}
    v_mul_f32 v6, 0, v{O0}
    v_permlane32_swap_b32 v4, v5
    v_rcp_f32 v5, v5""")
    for r in range(1, 16): a.e(f"v_fmac_f32 v6, 0, v{O0+r}")
    a.e("v_mul_f32 v4, 0x5f800000, v5\nv_fmac_f32 v6, 0, v4")
    a.e(f"""v_cndmask_b32 v{O0+12}, v{O0+12}, v{O0+7}, s[30:31]
    v_and_b32 v7, 0x1fff, v14
    v_permlane32_swap_b32 v{O0+14}, v{O0+15}
    v_permlane32_swap_b32 v{O0+13}, v{O0+7}
    v_lshl_or_b32 v7, v7, 16, s19""")
    for r in range(16):
        if r % 8 != 7: a.e(f"v_mul_f32 v{O0+r}, v5, v{O0+r}")
    for i in range(8): a.e(f"v_cvt_pk_bf16_f32 v{O0+i}, v{O0+2*i}, v{O0+2*i+1 if i % 4 != 3 else 7}")
    a.e(f"""v_cmp_u_f32 vcc, v6, v6
    s_cmp_lg_u64 vcc, 0
    s_cselect_b32 s5, 1, 0
    s_andn2_b32 s5, s5, s24
    s_lshl_b32 s4, s62, 2
    s_add_u32 s4, s4, {FLAG}
    v_mov_b32 v3, s4
    v_mov_b32 v4, s5
    ds_write_b32 v3, v4
    s_or_b32 s4, s5, s27
    s_cmp_lg_u32 s4, 0
    s_cbranch_scc1 K2_OK
    buffer_store_dwordx4 v[{O0}:{O0+3}], v1, s[52:55], s6 offen sc1
    buffer_store_dwordx4 v[{O0+4}:{O0+7}], v1, s[52:55], s6 offen offset:1024 sc1
    s_mov_b32 s27, 1""")
    if int(os.environ.get('TV', 2)): a.e("s_waitcnt vmcnt(0)")
    a.label("K2_OK")
    a.stamp(7)
    a.e(f"""s_waitcnt lgkmcnt(0)
    s_barrier""")
    flagread(a, "K2_END")
    a.e("s_mov_b32 s24, 1\ns_mov_b32 s25, 16\ns_mov_b32 s21, s22\ns_waitcnt vmcnt(0)")
    for i in range(4):
        for r in (6, 7): a.e(f"v_cndmask_b32 v{Q0+8*i+r}, v{Q0+8*i+r}, 0, s[30:31]")
        a.e(f"v_mov_b32 v{4+i}, 0xff800000")
    a.fence()
    a.label("K2_MAXLOOP")
    a.e("\n".join(kload(0)))
    a.e("s_add_u32 s21, s21, 4096\ns_waitcnt vmcnt(0)")
    for i in range(4):
        a.e(mf(O0 + 16 * i, KV0, Q0 + 8 * i, None))
        a.e(mf(O0 + 16 * i, KV0 + 4, Q0 + 8 * i + 4, O0 + 16 * i))
    for i in range(4): maxtree(a, O0 + 16 * i, 4 + i, acc=True)
    a.e("s_sub_u32 s25, s25, 1\ns_cmp_lg_u32 s25, 0")
    a.fence()
    a.e("s_cbranch_scc1 K2_MAXLOOP")
    for i in range(4): a.e(f"v_mov_b32 v{8+i}, v{4+i}")
    for i in range(4): a.e(f"v_permlane32_swap_b32 v{4+i}, v{8+i}")
    for i in range(4): a.e(f"v_max_f32 v{4+i}, v{4+i}, v{8+i}")
    a.e("v_lshlrev_b32 v12, 2, v0")
    for i in range(4):
        a.e(f"""s_add_u32 s6, s62, {i}
        s_and_b32 s6, s6, 3
        s_lshl_b32 s6, s6, 10
        s_add_u32 s6, s6, {FLAG + 256}
        v_add_u32 v{8+i}, s6, v12
        s_lshl_b32 s7, s62, 8
        v_add_u32 v13, s7, v{8+i}
        ds_write_b32 v13, v{4+i}""")
    a.e("s_waitcnt lgkmcnt(0)\ns_barrier")
    for i in range(4):
        for w in range(4): a.e(f"ds_read_b32 v{O0+4*i+w}, v{8+i} offset:{w*256}")
    a.e("s_waitcnt lgkmcnt(0)")
    for i in range(4):
        a.e(f"v_max3_f32 v{4+i}, v{O0+4*i}, v{O0+4*i+1}, v{O0+4*i+2}\nv_max_f32 v{4+i}, v{4+i}, v{O0+4*i+3}")
    kv_prologue()
    zero()
    for i in range(4):
        m = 4 + i
        a.e(f"""v_cvt_pk_bf16_f32 v8, -v{m}, -v{m}
        v_lshlrev_b32 v8, 16, v8
        v_sub_f32 v9, -v{m}, v8
        v_cvt_pk_bf16_f32 v10, v9, v9
        v_lshlrev_b32 v10, 16, v10
        v_sub_f32 v10, v9, v10
        v_cvt_pk_bf16_f32 v8, -v{m}, v9
        v_cvt_pk_bf16_f32 v10, v10, 0
        v_cndmask_b32 v{Q0+8*i+6}, v{Q0+8*i+6}, v8, s[30:31]
        v_cndmask_b32 v{Q0+8*i+7}, v{Q0+8*i+7}, v10, s[30:31]""")
    a.fence()
    a.e("s_branch K2_SETM")
```

```python
from asmlib import *
from k1 import WS_Q, WS_KV, WS_ACT, WS_P, WS_SIZE, srd, f32, FL_H, poll, nonce_check, SPIN, SLP, SLOT, tile_np, RD, ring_off, wd_load, LAY, UP, JS
from k2 import mf, flagread
D = int(os.environ.get('D3', 3)); NK = 28; TV = int(os.environ.get('TV', 2))
AC = 16; WO = 80; OR_ = 144; WF = 144; HR = 160; XR = [248, 252]; PS = 224
RST = 272
def ffn2(a, endlab):
    srd(a, 44, 16, 448*448*2); srd(a, 36, 26, 1835008)
    tile_np(a, 65, 4)
    a.e(f"""s_cselect_b32 s64, 1, 0
    s_lshl_b32 s69, s60, 13
    s_add_u32 s69, s69, {FL_H}
    s_lshl_b32 s5, s61, 9
    s_add_u32 s7, s69, s5
    s_lshl_b32 s5, s62, 7
    s_add_u32 s7, s7, s5
    s_lshr_b32 s3, s61, 3                ; half
    s_lshl_b32 s71, s63, 10
    s_lshl_b32 s63, s60, 1
    s_add_u32 s63, s63, s3               ; tp
    s_lshl_b32 s3, s3, 8
    s_add_u32 s69, s69, s3
    v_mov_b32 v1, v0
    v_lshrrev_b32 v0, 4, v0
    s_lshl_b32 s5, s62, 6
    v_add_u32 v15, s5, v0                ; tid
    s_mul_i32 s20, s63, {2*144*1024}
    s_add_u32 s20, s20, {WS_ACT}
    s_lshl_b32 s5, s62, 13
    s_add_u32 s66, s20, s5
    s_add_u32 s66, s66, {112*1024}
    s_add_u32 s67, s66, {144*1024}
    s_mul_i32 s5, s62, {NK*1024}
    s_add_u32 s20, s20, s5
    s_add_u32 s21, s20, {144*1024}
    s_lshl_b32 s5, s65, 7
    s_mul_i32 s68, s62, {112*896}
    s_add_u32 s68, s68, s5
    s_mul_i32 s5, s62, 7
    v_lshrrev_b32 v3, 1, v0
    v_min_u32 v3, 6, v3
    v_add_u32 v3, s5, v3                 ; sg
    v_lshrrev_b32 v4, 1, v3
    v_add_u32 v4, 4, v4
    v_subrev_u32 v5, 24, v3
    v_cmp_gt_u32 vcc, 24, v3
    v_cndmask_b32 v3, v5, v4, vcc        ; j
    v_and_b32 v4, 1, v0
    v_lshlrev_b32 v4, 7, v4
    v_lshl_add_u32 v3, v3, 9, v4
    s_lshl_b32 s5, s61, 9
    s_sub_u32 s5, s5, s3
    v_and_b32 v4, 3, v0
    v_lshl_add_u32 v4, v4, 7, s5
    v_cmp_lt_u32 vcc, 15, v0
    v_cndmask_b32 v3, v3, v4, vcc
    v_add_u32 v3, s69, v3
    s_mov_b32 s69, 0
    v_lshrrev_b32 v4, 3, v0
    v_and_b32 v5, 7, v0
    v_mul_u32_u24 v7, 896, v4
    v_lshl_add_u32 v7, v5, 4, v7         ; rows 0-7
    v_add_u32 v8, {8*896}, v7            ; rows 8-15
    s_mov_b32 s5, {(13<<0) | (18<<8) | (3<<16) | (4<<24)}
    v_lshlrev_b32 v5, 3, v4
    v_lshrrev_b32 v5, v5, s5
    v_and_b32 v5, 31, v5
    v_cmp_lt_u32 vcc, 3, v4
    v_cndmask_b32 v5, 0, v5, vcc
    v_sub_u32 v5, 24, v5
    v_mul_u32_u24 v5, 896, v5
    v_add_u32 v9, v7, v5
    v_lshrrev_b32 v4, 5, v0
    v_bfe_u32 v10, v0, 2, 2
    v_lshl_add_u32 v10, v4, 2, v10
    v_lshlrev_b32 v10, 7, v10
    v_bfe_u32 v4, v0, 4, 1
    v_lshl_add_u32 v10, v4, 5, v10
    v_and_b32 v4, 3, v0
    v_lshl_add_u32 v10, v4, 3, v10
    v_add_u32 v10, s74, v10
    v_add_u32 v241, {UP}, v10
    v_add_u32 v242, s20, v1
    v_add_u32 v243, s21, v1
    s_mov_b32 s20, s71
    s_waitcnt vmcnt(0)""")
    a.e("\n".join(nonce_check(14, 4)))
    a.e(f"""s_mov_b64 exec, 1
    buffer_store_dword v14, off, s[52:55], s7 sc1
    s_mov_b64 exec, -1
    s_setprio 0""")
    a.stamp(4)
    a.e(f"s_cmp_eq_u32 s64, 1\ns_cbranch_scc1 {endlab}")
    def wl(k):
        o = ring_off(k)
        if k < NK: return "\n".join(wd_load(k))
        if k % 2 == 0:
            return f"""s_add_u32 m0, s74, {o}
            s_add_u32 s22, s68, {16*896}
            buffer_load_dwordx4 v7, s[44:47], s68 offen lds
            s_add_u32 m0, s74, {o + 1024}
            s_nop 0
            buffer_load_dwordx4 v8, s[44:47], s68 offen lds"""
        return f"""s_add_u32 m0, s74, {o}
            s_nop 0
            buffer_load_dwordx4 v7, s[44:47], s22 offen lds
            s_add_u32 m0, s74, {o + 1024}
            s_nop 0
            buffer_load_dwordx4 v9, s[44:47], s68 offen lds
            s_add_u32 s68, s68, {28*896}"""
    def wreg(k): return WF + 8 * (k & 1) if k < NK else WO + 8 * (k - NK)
    def wr(k):
        for e in range(2):
            for u in range(2):
                b = wreg(k) + 4 * e + 2 * u
                a.e(f"ds_read_b64_tr_b16 v[{b}:{b+1}], v{10 if k % RD < 6 else 241} offset:{(k % RD % 6)*2048 + u*1024 + e*64}")
    def hl(k):
        r = HR + 8 * (k % D)
        return f"""buffer_load_dwordx4 v[{r}:{r+3}], v242, s[52:55], s20 offen sc1
        s_add_u32 s5, s20, 1024
        buffer_load_dwordx4 v[{r+4}:{r+7}], v243, s[52:55], s20 offen sc1
        s_cmp_eq_u32 s5, {28*1024}
        s_cselect_b32 s20, 0, s5"""
    if JS:
        a.e("s_cmp_ge_u32 s61, 3\ns_cbranch_scc1 K3_JS")
        for k in range(6): a.e(wl(k))
        a.label("K3_JS")
    if not LAY:
        for k in range(6, RD): a.e(wl(k))
    a.e(f"""v_lshrrev_b32 v2, 3, v15
    v_and_b32 v245, 7, v15
    v_mul_u32_u24 v244, 896, v2
    v_lshl_add_u32 v244, v245, 4, v244
    s_mul_i32 s23, s63, {64*896}
    s_lshl_b32 s5, s65, 7
    s_add_u32 s23, s23, s5
    s_add_u32 s24, s23, {32*896}
    buffer_load_dwordx4 v[{XR[0]}:{XR[0]+3}], v244, s[32:35], s23 offen
    buffer_load_dwordx4 v[{XR[1]}:{XR[1]+3}], v244, s[32:35], s24 offen""")
    poll(a, [(6, 3, 69)], 14, 4, lanes=20 if LAY else 14)
    a.stamp(5)
    q = []
    def issue(txt, tag):
        a.e(txt); q.extend([tag, tag])
    def wait(tags):
        last = max([i for i, t in enumerate(q) if t in tags], default=-1)
        if last >= 0:
            a.e(f"s_waitcnt vmcnt({len(q) - 1 - last})"); del q[:last + 1]
    def mms(w, h, first=False):
        for e in range(2):
            for t in range(2):
                acc = AC + 16 * (2 * t + e)
                a.e(mf(acc, w + 4 * e, h + 4 * t, None if first else acc))
    for k in range(D): issue(hl(k), ("h", k))
    nw = [6 if LAY else RD]
    wr(0)
    for k in range(NK + 8):
        wait([("h", k), ("w", k + 1)])
        a.e("s_waitcnt lgkmcnt(0)")
        if k < NK: mms(wreg(k), HR + 8 * (k % D), k == 0)
        if k + 1 < NK + 8: wr(k + 1)
        if k + D < NK: issue(hl(k + D), ("h", k + D))
        for _ in range(2):
            if nw[0] <= k + RD and nw[0] < NK + 8:
                issue(wl(nw[0]), ("w", nw[0])); nw[0] += 1
    for b in range(16): a.e(f"v_and_b32 v{WO+4*b+3}, 0xffff, v{WO+4*b+3}")
    a.stamp(6)
    a.e(f"""v_and_b32 v10, 31, v0
    v_mul_u32_u24 v10, {RST}, v10
    v_lshrrev_b32 v11, 5, v0
    v_lshl_add_u32 v10, v11, 4, v10
    v_add_u32 v10, s74, v10
    v_add_u32 v13, {UP}, v10
    v_mul_u32_u24 v11, {RST}, v2
    v_lshl_add_u32 v11, v245, 5, v11
    v_add_u32 v11, {SLOT}, v11
    v_add_u32 v12, {UP}, v11
    v_and_b32 v8, 0x1fff, v14
    v_or_b32 v8, 0x2000, v8
    v_lshlrev_b32 v8, 16, v8
    s_add_u32 s69, s66, 4096
    s_add_u32 s70, s67, 4096
    v_and_b32 v9, 3, v0
    v_lshlrev_b32 v9, 11, v9
    v_bfe_u32 v4, v0, 2, 1
    v_mul_u32_u24 v4, {144*1024}, v4
    v_add_u32 v9, v9, v4""")
    def pwrite(nb):
        for t in range(2):
            for e in range(2):
                for g in range(4):
                    acc = AC + 16 * (2 * t + e) + 4 * g
                    a.e(f"ds_write_b128 v{10+3*t}, v[{acc}:{acc+3}] offset:{e*128 + g*32}")
        a.e("s_waitcnt lgkmcnt(0)" + "\ns_barrier" * nb)
        for i in range(2):
            for w in range(4):
                for h in range(2):
                    r = AC + 32 * i + 8 * w + 4 * h
                    a.e(f"ds_read_b128 v[{r}:{r+3}], v{11+i} offset:{w * 12288 + h * 16}")
    pwrite(1 if LAY else 2)
    for i in range(2):
        for r in range(4):
            a.e(f"v_lshlrev_b32 v{PS+8*i+2*r}, 16, v{XR[i]+r}\nv_and_b32 v{PS+8*i+2*r+1}, 0xffff0000, v{XR[i]+r}")
    def psum(i):
        a.e(f"s_waitcnt lgkmcnt({8 - 8*i})")
        for w in range(4):
            for r in range(8): a.e(f"v_add_f32 v{PS+8*i+r}, v{PS+8*i+r}, v{AC+32*i+8*w+r}")
    psum(0); psum(1)
    a.e("s_setprio 3\ns_barrier")
    flagread(a, "K3_NOFB")
    a.e("s_barrier\n" * (3 if LAY else 4))
    a.label("K3_NOFB")
    a.stamp(7)
    a.e(f"""s_mov_b32 s4, {SPIN}
    s_brev_b32 s5, 0xffff
    s_branch {'K3_OS' if TV == 1 else 'K3_OQ'}
    K3_OP:
    s_sleep {os.environ.get('SLO', 1)}
    K3_OQ:
    s_mov_b64 exec, 0xff
    buffer_load_dword v6, v9, s[52:55], s66 offen offset:2044 sc1
    s_sub_u32 s4, s4, 1
    s_waitcnt vmcnt(0)
    v_xor_b32 v6, v6, v8
    v_and_b32 v6, s5, v6
    v_cmp_ne_u32 vcc, 0, v6
    s_mov_b64 exec, -1
    s_cmp_eq_u32 s4, 0
    s_cbranch_scc1 K3_OE
    s_cmp_lg_u64 vcc, 0
    s_cbranch_scc1 K3_OP
    K3_OS:""")
    for b in range(8):
        r = OR_ + 8 * b
        a.e(f"""buffer_load_dwordx4 v[{r}:{r+3}], v1, s[52:55], s{66 if b < 4 else 69} offen offset:{(b&3)*1024} sc1
        buffer_load_dwordx4 v[{r+4}:{r+7}], v1, s[52:55], s{67 if b < 4 else 70} offen offset:{(b&3)*1024} sc1""")
    for b in range(8):
        r = OR_ + 8 * b
        a.e(f"s_waitcnt vmcnt({2*(7-b)})")
        mms(WO + 8 * b, r, b == 0)
        a.e(f"v_xor_b32 v4, v{r+3}, v8\nv_xor_b32 v5, v{r+7}, v8")
        a.e(f"v_or_b32 v6, v4, v5" if b == 0 else "v_or3_b32 v6, v4, v5, v6")
    a.e(f"""v_and_b32 v6, s5, v6
    v_cmp_ne_u32 vcc, 0, v6
    s_cmp_lg_u64 vcc, 0
    s_cbranch_scc1 K3_OP
    K3_OE:""")
    a.stamp(8)
    a.fence()
    pwrite(1)
    for i in range(2):
        psum(i)
        for r in range(4): a.e(f"v_cvt_pk_bf16_f32 v{XR[i]+r}, v{PS+8*i+2*r}, v{PS+8*i+2*r+1}")
        a.e(f"buffer_store_dwordx4 v[{XR[i]}:{XR[i]+3}], v244, s[36:39], s{23+i} offen{os.environ.get('OSC', '')}")
```

```python
from asmlib import *
from k1 import WS_Q, WS_KV, WS_ACT, WS_WF, WS_P, WS_SIZE, srd, f32, SLOT, FL_Q, poll, nonce_check, SPIN, SLP, B8, LAY

Q0, O0, S0, P0, KV0, KS = 16, 48, 112, 144, 160, 224
MOFF = 40.0
CL = int(os.environ.get('CL', 0))
PRIO = int(os.environ.get("PRIO", 2))
FLAG = 0 * SLOT
PART = 0

def mf(d, x, y, c):
    return f"v_mfma_f32_32x32x16_bf16 v[{d}:{d+15}], v[{x}:{x+3}], v[{y}:{y+3}], " + (f"v[{c}:{c+15}]" if c is not None else "0")

def kload(b): return [f"buffer_load_dwordx4 v[{KV0+16*b+4*i}:{KV0+16*b+4*i+3}], v1, s[52:55], s21 offen offset:{1024*i} sc1" for i in range(2)]
def vload(b): return [f"buffer_load_dwordx4 v[{KV0+16*b+4*i}:{KV0+16*b+4*i+3}], v1, s[52:55], s21 offen offset:{1024*i} sc1" for i in (2, 3)]
ADV = ["s_add_u32 s20, s20, 4096", "s_and_b32 s20, s20, 0xffff", "s_add_u32 s21, s20, s22"]

def maxtree(a, src, dst, acc=None):
    r = list(range(src, src + 16))
    if acc is None:
        a.e(f"v_max3_f32 v{dst}, v{r[0]}, v{r[1]}, v{r[2]}"); r = r[3:]
        while len(r) >= 2:
            a.e(f"v_max3_f32 v{dst}, v{dst}, v{r[0]}, v{r[1]}"); r = r[2:]
        a.e(f"v_max_f32 v{dst}, v{dst}, v{r[0]}")
    else:
        while r:
            a.e(f"v_max3_f32 v{dst}, v{dst}, v{r[0]}, v{r[1]}"); r = r[2:]

def flagread(a, donelab, base):
    a.e(f"""v_and_b32 v3, 3, v0
    v_mul_u32_u24 v3, 12288, v3
    v_add_u32 v3, {base}, v3
    ds_read_b32 v4, v3
    s_waitcnt lgkmcnt(0)
    v_cmp_ne_u32 vcc, 0, v4
    s_cmp_eq_u64 vcc, 0
    s_cbranch_scc1 {donelab}""")

def attention(a, wave_sgpr=62):
    a.e(f"""v_lshlrev_b32 v1, 4, v0
    v_cmp_lt_u32 s[30:31], 31, v0
    s_mul_i32 s5, s61, 7
    v_lshrrev_b32 v2, 5, v0
    v_add_u32 v2, s5, v2
    v_and_b32 v3, 31, v0
    v_lshlrev_b32 v3, 4, v3
    s_mov_b32 s24, 0
    s_mov_b32 s19, 0x20000000
    s_cmp_eq_u32 s61, 3
    s_mov_b32 s18, {4*SLOT}
    s_cselect_b32 s18, {SLOT}, s18
    s_lshl_b32 s22, s62, 16
    s_add_u32 s22, s22, {WS_KV}
    s_lshr_b32 s23, s2, 3
    s_and_b32 s23, s23, 15
    s_lshl_b32 s23, s23, 12              ; rotation
    s_lshl_b32 s7, s60, 2
    s_and_b32 s5, s61, 3
    s_add_u32 s7, s7, s5
    s_lshl_b32 s7, s7, 12
    s_add_u32 s7, s7, {WS_KV}""")
    for f in range(2):
        a.e(f"""v_add_u32 v4, {2*f}, v2
        v_lshrrev_b32 v5, 2, v4
        v_lshl_add_u32 v{8+f}, v5, 10, v3
        v_and_b32 v5, 1, v4
        v_lshl_add_u32 v{8+f}, v5, 9, v{8+f}
        v_and_b32 v5, 2, v4
        v_lshl_add_u32 v{8+f}, v5, 2, v{8+f}""")
    if PRIO: a.e("s_setprio 3")
    a.e(f"""s_mov_b32 s27, 0                     ; o published
    s_mul_i32 s5, s61, 28
    v_bfe_u32 v4, v0, 2, 2
    v_mul_u32_u24 v4, 27, v4
    v_add_u32 v4, s5, v4
    v_lshrrev_b32 v4, 7, v4
    v_bfe_u32 v5, v0, 3, 1
    v_mul_u32_u24 v5, 3, v5
    v_or_b32 v4, v4, v5
    v_and_b32 v4, 3, v4
    v_and_b32 v5, 3, v0
    v_lshlrev_b32 v5, 7, v5
    v_lshl_add_u32 v4, v4, 9, v5
    v_bfe_u32 v12, v0, 2, 2
    v_lshl_add_u32 v12, v12, 11, v5
    s_lshl_b32 s29, s60, 11
    s_add_u32 s29, s29, {FL_Q}
    s_lshl_b32 s28, s62, 13
    s_add_u32 s28, s28, {FL_Q + 12*128}
    s_sub_u32 s5, s29, s28
    v_add_u32 v4, s5, v4
    v_cmp_lt_u32 vcc, 15, v0
    v_add_u32 v12, s28, v12
    v_add_u32 v4, s28, v4
    s_mov_b32 s28, 0
    v_cndmask_b32 v12, v12, v4, vcc""")
    def zero():
        for r in range(64): a.e(f"v_mov_b32 v{O0+r}, 0")
        for r in range(8): a.e(f"v_mov_b32 v{KV0+48+8+r}, 0")
    zero()
    a.e(f"""s_add_u32 s5, s18, 10240
    v_and_b32 v13, 3, v0
    v_mul_u32_u24 v13, 12288, v13
    v_add_u32 v13, s5, v13""")
    for i in range(4):
        a.e(f"""s_add_u32 s6, s62, {i}
        s_and_b32 s6, s6, 3
        s_mul_i32 s6, s6, 12288
        s_add_u32 s6, s6, s5
        v_add_u32 v{248+i}, s6, v1""")
    if B8:
        a.e("s_waitcnt vmcnt(0)\ns_barrier")
    a.e(f"""s_mov_b32 s4, {SPIN}
    s_bfm_b64 exec, 28, 0
    s_branch K2_P1F
    K2_P1:
    s_sleep {SLP}
    K2_P1F:
    buffer_load_dword v6, v12, s[52:55], s28 offen sc1
    s_waitcnt vmcnt(0)""")
    a.e(f"""v_cmp_ne_u32 vcc, v6, v14
    s_sub_u32 s4, s4, 1
    s_mov_b32 s20, vcc_lo
    s_cmp_lt_u32 s20, 0x10000
    s_cbranch_scc1 K2_P1E
    s_cmp_lg_u32 s4, 0
    s_cbranch_scc1 K2_P1
    K2_P1E:""")
    a.stamp(2)
    if STAMP: a.e(f"s_sub_u32 s96, {SPIN}, s4\ns_add_u32 s96, s96, s88")
    a.e("s_cmp_eq_u32 s20, 0\ns_cbranch_scc1 K2_NK\ns_bfm_b64 exec, 16, 0\nbuffer_load_dword v6, v12, s[52:55], s28 offen sc1\nK2_NK:\ns_mov_b64 exec, -1")
    for i in range(1):
        a.e(f"""s_add_u32 s6, s62, {i}
        s_and_b32 s6, s6, 3
        s_lshl_b32 s26, s60, 2
        s_add_u32 s6, s6, s26
        s_mul_i32 s6, s6, {112*256}""")
        for f in range(4):
            a.e(f"buffer_load_dwordx2 v[{Q0+8*i+2*f}:{Q0+8*i+2*f+1}], v{8+(f&1)}, s[52:55], s6 offen offset:{(f>>1)*1024} sc1")
    a.e(f"""buffer_load_dwordx4 v[{KS}:{KS+3}], v1, s[52:55], s7 offen sc1
    buffer_load_dwordx4 v[{KS+4}:{KS+7}], v1, s[52:55], s7 offen offset:1024 sc1""")
    a.e("s_cmp_eq_u32 s20, 0\ns_cbranch_scc1 K2_GO")
    a.e("s_waitcnt vmcnt(6)\nv_cmp_ne_u32 vcc, v6, v14\ns_nop 0\ns_and_b32 s20, vcc_lo, 0xffff\ns_cbranch_scc0 K2_GO")
    poll(a, [(6, 12, 28)], 14, 4, lanes=16)
    a.label("K2_GO")
    a.stamp(3)
    def kv_prologue(b0=0, b1=4):
        if b0 == 0: a.e("s_mov_b32 s20, s23\ns_add_u32 s21, s20, s22")
        for b in range(b0, b1):
            if b: a.e("\n".join(ADV))
            a.e("\n".join(kload(b)))
            if b < 3: a.e("\n".join(vload(b)))
    kv_prologue(0, 2)
    a.e(f"""s_waitcnt vmcnt(10)
    ds_write_b128 v248, v[{Q0}:{Q0+3}]
    ds_write_b128 v248, v[{Q0+4}:{Q0+7}] offset:1024
    s_mov_b64 exec, 1
    ds_write_b32 v248, v14 offset:2044
    s_mov_b64 exec, -1
    s_mov_b32 s4, {SPIN * 4}
    K2_XQ:
    ds_read_b32 v6, v13 offset:2044
    s_sub_u32 s4, s4, 1
    s_waitcnt lgkmcnt(0)
    v_cmp_ne_u32 vcc, v6, v14
    s_cmp_eq_u32 s4, 0
    s_cbranch_scc1 K2_XE
    s_cmp_lg_u64 vcc, 0
    s_cbranch_scc1 K2_XQ
    K2_XE:""")
    for i in range(1, 4):
        for h in range(2): a.e(f"ds_read_b128 v[{Q0+8*i+4*h}:{Q0+8*i+4*h+3}], v{248+i} offset:{1024*h}")
    a.e("s_waitcnt vmcnt(8) lgkmcnt(0)")
    SM = [S0, S0 + 16, P0, 232]
    for i in range(4):
        for r in (6, 7): a.e(f"v_cndmask_b32 v{Q0+8*i+r}, v{Q0+8*i+r}, 0, s[30:31]")
    for i in range(4): a.e(mf(SM[i], KS, Q0 + 8 * i, None))
    for i in range(4): a.e(mf(SM[i], KS + 4, Q0 + 8 * i + 4, SM[i]))
    kv_prologue(2, 4)
    for i in range(4): maxtree(a, SM[i], 4 + i)
    for i in range(4): a.e(f"v_mov_b32 v{8+i}, v{4+i}")
    for i in range(4): a.e(f"v_permlane32_swap_b32 v{4+i}, v{8+i}")
    for i in range(4): a.e(f"v_max_f32 v{4+i}, v{4+i}, v{8+i}")
    for i in range(4): a.e(f"v_add_f32 v{4+i}, {f32(MOFF)}, v{4+i}")
    for i in range(4):
        a.e(f"v_cvt_pk_bf16_f32 v{8+i}, -v{4+i}, 0")
    for i in range(4): a.e(f"v_cndmask_b32 v{Q0+8*i+6}, v{Q0+8*i+6}, v{8+i}, s[30:31]")
    a.label("K2_SETM")
    for r in range(8): a.e(f"v_mov_b32 v{P0+8+r}, 0")
    a.e("s_waitcnt vmcnt(12)")
    a.e(mf(S0, KV0, Q0, None)); a.e(mf(S0, KV0 + 4, Q0 + 4, S0))
    a.e(f"s_mov_b32 s25, {os.environ.get('ITER', 4)}")
    if PRIO == 1: a.e("s_setprio 0")
    a.stamp(4)
    a.fence()
    a.raw(".p2align 6")
    def body():
        for u in range(16):
            n = (u + 1) % 16; p = (u - 1) % 16
            Sn = S0 + 16 * ((u + 1) & 1); Sc = S0 + 16 * (u & 1)
            Pc = P0 + 8 * (u & 1); Pp = P0 + 8 * ((u - 1) & 1)
            kb = KV0 + 16 * (n // 4); vb = KV0 + 16 * (p // 4) + 8
            qn = Q0 + 8 * (n % 4); op = O0 + 16 * (p % 4)
            ms = [mf(Sn, kb, qn, None), mf(Sn, kb + 4, qn + 4, Sn), mf(op, vb, Pp, op), mf(op, vb + 4, Pp + 4, op)]
            pre = [[], [], [], []]; post = [[], [], [], []]
            if n % 4 == 0: pre[0].append("s_waitcnt vmcnt(12)")
            if p % 4 == 0: pre[2].append("s_waitcnt vmcnt(12)")
            pr = (lambda l: ["s_setprio 3"] + l + ["s_setprio 0"]) if PRIO == 1 else (lambda l: l)
            if u % 4 == 2: post[0] += ADV; post[1] += pr(kload(u // 4))
            if u % 4 == 0: post[3] += pr(vload(((u // 4) - 1) % 4))
            for g in range(4):
                a.e("\n".join(pre[g] + [ms[g]] + post[g]))
                for r in range(4): a.e(f"v_exp_f32 v{Sc+4*g+r}, v{Sc+4*g+r}")
                if CL and g == 3:
                    for h in range(6): a.e(f"v_cvt_pk_bf16_f32 v{Pc+h}, v{Sc+2*h}, v{Sc+2*h+1}")
                if g >= 1 and not CL:
                    for h in range(2): a.e(f"v_cvt_pk_bf16_f32 v{Pc+2*(g-1)+h}, v{Sc+4*(g-1)+2*h}, v{Sc+4*(g-1)+2*h+1}")
                if g == 3:
                    if u == 15: a.e("s_sub_u32 s25, s25, 1\ns_cmp_lg_u32 s25, 0")
                    for h in range(2): a.e(f"v_cvt_pk_bf16_f32 v{Pc+6+h}, v{Sc+12+2*h}, v{Sc+12+2*h+1}")
    a.label("K2_LOOP")
    n0 = a.nops
    body()
    assert a.nops == n0, "unexpected nops in attention loop"
    a.e("s_cbranch_scc1 K2_LOOP")
    t = Asm(); t.hist = list(a.hist); sv = a;
    a2 = Asm(); a2.hist = list(a.hist)
    a.stamp(5)
    if PRIO: a.e("s_setprio 3")
    vb = KV0 + 48 + 8
    a.e(mf(O0 + 48, vb, P0 + 8, O0 + 48)); a.e(mf(O0 + 48, vb + 4, P0 + 12, O0 + 48))
    a.e("v_and_b32 v8, 0x1fff, v14\nv_lshl_or_b32 v8, v8, 16, s19\nv_or_b32 v8, s24, v8")
    a.e("v_add_u32 v2, s18, v1" if LAY else f"v_add_u32 v2, {7*SLOT}, v1\ns_barrier")
    for i in (1, 2, 3):
        a.e(f"""s_add_u32 s6, s62, {i}
        s_and_b32 s6, s6, 3
        s_mul_i32 s6, s6, {3*4096}
        v_add_u32 v3, s6, v2""")
        for g in range(4):
            a.e(f"ds_write_b128 v3, v[{O0+16*i+4*g}:{O0+16*i+4*g+3}] offset:{PART + (i-1)*4096 + g*1024}")
        a.e(f"s_mov_b64 exec, 1\nds_write_b32 v3, v8 offset:{(i-1)*4096 + 4092}\ns_mov_b64 exec, -1")
    a.e(f"""s_mul_i32 s6, s62, {3*4096}
    v_add_u32 v3, s6, v2
    s_add_u32 s6, s6, s18
    v_min_u32 v9, 2, v0
    v_lshl_add_u32 v9, v9, 12, s6
    s_mov_b32 s4, {SPIN * 4}
    K2_RQ:
    ds_read_b32 v6, v9 offset:4092
    s_sub_u32 s4, s4, 1
    s_waitcnt lgkmcnt(0)
    v_cmp_ne_u32 vcc, v6, v8
    s_cmp_eq_u32 s4, 0
    s_cbranch_scc1 K2_RE
    s_cmp_lg_u64 vcc, 0
    s_cbranch_scc1 K2_RQ
    K2_RE:""")
    a.stamp(6)
    for i in range(3):
        for g in range(4):
            a.e(f"ds_read_b128 v[{O0+16+16*i+4*g}:{O0+16+16*i+4*g+3}], v3 offset:{PART + i*4096 + g*1024}")
    a.e(f"""s_lshl_b32 s6, s60, 2
    s_add_u32 s6, s6, s62
    s_mul_i32 s6, s6, 144
    s_lshl_b32 s7, s61, 1
    s_add_u32 s6, s6, s7
    s_lshl_b32 s6, s6, 10
    s_add_u32 s6, s6, {WS_ACT + 112*1024}""")
    for i in range(3):
        a.e(f"s_waitcnt lgkmcnt({8 - 4*i})")
        for r in range(16): a.e(f"v_add_f32 v{O0+r}, v{O0+r}, v{O0+16+16*i+r}")
    a.e(f"""v_mov_b32 v4, v{O0+12}
    v_mov_b32 v5, v{O0+12}
    v_mul_f32 v6, 0, v{O0}
    v_permlane32_swap_b32 v4, v5
    v_rcp_f32 v5, v5""")
    for r in range(1, 16): a.e(f"v_fmac_f32 v6, 0, v{O0+r}")
    a.e("v_mul_f32 v4, 0x5f800000, v5\nv_fmac_f32 v6, 0, v4")
    a.e(f"""v_cndmask_b32 v{O0+12}, v{O0+12}, v{O0+7}, s[30:31]
    v_and_b32 v7, 0x1fff, v14
    v_permlane32_swap_b32 v{O0+14}, v{O0+15}
    v_permlane32_swap_b32 v{O0+13}, v{O0+7}
    v_lshl_or_b32 v7, v7, 16, s19""")
    for r in range(16):
        if r % 8 != 7: a.e(f"v_mul_f32 v{O0+r}, v5, v{O0+r}")
    for i in range(8): a.e(f"v_cvt_pk_bf16_f32 v{O0+i}, v{O0+2*i}, v{O0+2*i+1 if i % 4 != 3 else 7}")
    a.e(f"""v_cmp_u_f32 vcc, v6, v6
    s_cmp_lg_u64 vcc, 0
    s_cselect_b32 s5, 1, 0
    s_andn2_b32 s5, s5, s24
    s_mul_i32 s4, s62, 12288
    s_add_u32 s4, s4, s18
    v_mov_b32 v3, s4
    v_mov_b32 v4, s5
    ds_write_b32 v3, v4
    s_or_b32 s4, s5, s27
    s_cmp_lg_u32 s4, 0
    s_cbranch_scc1 K2_OK
    buffer_store_dwordx4 v[{O0}:{O0+3}], v1, s[52:55], s6 offen sc1
    buffer_store_dwordx4 v[{O0+4}:{O0+7}], v1, s[52:55], s6 offen offset:1024 sc1
    s_mov_b32 s27, 1""")
    if int(os.environ.get('TV', 0)): a.e("s_waitcnt vmcnt(0)")
    a.label("K2_OK")
    a.stamp(7)
    a.e(f"""s_waitcnt lgkmcnt(0)
    s_barrier""")
    flagread(a, "K2_END", "s18")
    a.e("s_mov_b32 s24, 1\ns_mov_b32 s25, 16\ns_mov_b32 s21, s22\ns_waitcnt vmcnt(0)")
    for i in range(4):
        for r in (6, 7): a.e(f"v_cndmask_b32 v{Q0+8*i+r}, v{Q0+8*i+r}, 0, s[30:31]")
        a.e(f"v_mov_b32 v{4+i}, 0xff800000")
    a.fence()
    a.label("K2_MAXLOOP")
    a.e("\n".join(kload(0)))
    a.e("s_add_u32 s21, s21, 4096\ns_waitcnt vmcnt(0)")
    for i in range(4):
        a.e(mf(O0 + 16 * i, KV0, Q0 + 8 * i, None))
        a.e(mf(O0 + 16 * i, KV0 + 4, Q0 + 8 * i + 4, O0 + 16 * i))
    for i in range(4): maxtree(a, O0 + 16 * i, 4 + i, acc=True)
    a.e("s_sub_u32 s25, s25, 1\ns_cmp_lg_u32 s25, 0")
    a.fence()
    a.e("s_cbranch_scc1 K2_MAXLOOP")
    for i in range(4): a.e(f"v_mov_b32 v{8+i}, v{4+i}")
    for i in range(4): a.e(f"v_permlane32_swap_b32 v{4+i}, v{8+i}")
    for i in range(4): a.e(f"v_max_f32 v{4+i}, v{4+i}, v{8+i}")
    a.e("v_lshlrev_b32 v12, 2, v0")
    for i in range(4):
        a.e(f"""s_add_u32 s6, s62, {i}
        s_and_b32 s6, s6, 3
        s_lshl_b32 s6, s6, 10
        s_add_u32 s6, s6, {FLAG + 256}
        v_add_u32 v{8+i}, s6, v12
        s_lshl_b32 s7, s62, 8
        v_add_u32 v13, s7, v{8+i}
        ds_write_b32 v13, v{4+i}""")
    a.e("s_waitcnt lgkmcnt(0)\ns_barrier")
    for i in range(4):
        for w in range(4): a.e(f"ds_read_b32 v{O0+4*i+w}, v{8+i} offset:{w*256}")
    a.e("s_waitcnt lgkmcnt(0)")
    for i in range(4):
        a.e(f"v_max3_f32 v{4+i}, v{O0+4*i}, v{O0+4*i+1}, v{O0+4*i+2}\nv_max_f32 v{4+i}, v{4+i}, v{O0+4*i+3}")
    kv_prologue()
    zero()
    for i in range(4):
        m = 4 + i
        a.e(f"""v_cvt_pk_bf16_f32 v8, -v{m}, -v{m}
        v_lshlrev_b32 v8, 16, v8
        v_sub_f32 v9, -v{m}, v8
        v_cvt_pk_bf16_f32 v10, v9, v9
        v_lshlrev_b32 v10, 16, v10
        v_sub_f32 v10, v9, v10
        v_cvt_pk_bf16_f32 v8, -v{m}, v9
        v_cvt_pk_bf16_f32 v10, v10, 0
        v_cndmask_b32 v{Q0+8*i+6}, v{Q0+8*i+6}, v8, s[30:31]
        v_cndmask_b32 v{Q0+8*i+7}, v{Q0+8*i+7}, v10, s[30:31]""")
    a.fence()
    a.e("s_branch K2_SETM")
```

```python
from asmlib import *
from k1 import WS_Q, WS_KV, WS_ACT, WS_P, WS_SIZE, srd, f32, FL_H, poll, nonce_check, SPIN, SLP, SLOT, tile_np, RD, ring_off, wd_load, LAY, UP, JS
from k2 import mf, flagread
D = int(os.environ.get('D3', 3)); NK = 28; TV = int(os.environ.get('TV', 0))
AC = 16; WO = 80; OR_ = 144; WF = 144; HR = 160; XR = [248, 252]; PS = 224
RST = 272
def ffn2(a, endlab):
    srd(a, 44, 16, 448*448*2); srd(a, 36, 26, 1835008)
    tile_np(a, 65, 4)
    a.e(f"""s_cselect_b32 s64, 1, 0
    s_lshl_b32 s69, s60, 13
    s_add_u32 s69, s69, {FL_H}
    s_lshl_b32 s5, s61, 9
    s_add_u32 s7, s69, s5
    s_lshl_b32 s5, s62, 7
    s_add_u32 s7, s7, s5
    s_lshr_b32 s3, s61, 3                ; half
    s_lshl_b32 s71, s63, 10
    s_lshl_b32 s63, s60, 1
    s_add_u32 s63, s63, s3               ; tp
    s_lshl_b32 s3, s3, 8
    s_add_u32 s69, s69, s3
    v_mov_b32 v1, v0
    v_lshrrev_b32 v0, 4, v0
    s_lshl_b32 s5, s62, 6
    v_add_u32 v15, s5, v0                ; tid
    s_mul_i32 s20, s63, {2*144*1024}
    s_add_u32 s20, s20, {WS_ACT}
    s_lshl_b32 s5, s62, 13
    s_add_u32 s66, s20, s5
    s_add_u32 s66, s66, {112*1024}
    s_add_u32 s67, s66, {144*1024}
    s_mul_i32 s5, s62, {NK*1024}
    s_add_u32 s20, s20, s5
    s_add_u32 s21, s20, {144*1024}
    s_lshl_b32 s5, s65, 7
    s_mul_i32 s68, s62, {112*896}
    s_add_u32 s68, s68, s5
    s_mul_i32 s5, s62, 7
    v_lshrrev_b32 v3, 1, v0
    v_min_u32 v3, 6, v3
    v_add_u32 v3, s5, v3                 ; sg
    v_lshrrev_b32 v4, 1, v3
    v_add_u32 v4, 4, v4
    v_subrev_u32 v5, 24, v3
    v_cmp_gt_u32 vcc, 24, v3
    v_cndmask_b32 v3, v5, v4, vcc        ; j
    v_and_b32 v4, 1, v0
    v_lshlrev_b32 v4, 7, v4
    v_lshl_add_u32 v3, v3, 9, v4
    s_lshl_b32 s5, s61, 9
    s_sub_u32 s5, s5, s3
    v_and_b32 v4, 3, v0
    v_lshl_add_u32 v4, v4, 7, s5
    v_cmp_lt_u32 vcc, 15, v0
    v_cndmask_b32 v3, v3, v4, vcc
    v_add_u32 v3, s69, v3
    s_mov_b32 s69, 0
    v_lshrrev_b32 v4, 3, v0
    v_and_b32 v5, 7, v0
    v_mul_u32_u24 v7, 896, v4
    v_lshl_add_u32 v7, v5, 4, v7         ; rows 0-7
    v_add_u32 v8, {8*896}, v7            ; rows 8-15
    s_mov_b32 s5, {(13<<0) | (18<<8) | (3<<16) | (4<<24)}
    v_lshlrev_b32 v5, 3, v4
    v_lshrrev_b32 v5, v5, s5
    v_and_b32 v5, 31, v5
    v_cmp_lt_u32 vcc, 3, v4
    v_cndmask_b32 v5, 0, v5, vcc
    v_sub_u32 v5, 24, v5
    v_mul_u32_u24 v5, 896, v5
    v_add_u32 v9, v7, v5
    v_lshrrev_b32 v4, 5, v0
    v_bfe_u32 v10, v0, 2, 2
    v_lshl_add_u32 v10, v4, 2, v10
    v_lshlrev_b32 v10, 7, v10
    v_bfe_u32 v4, v0, 4, 1
    v_lshl_add_u32 v10, v4, 5, v10
    v_and_b32 v4, 3, v0
    v_lshl_add_u32 v10, v4, 3, v10
    v_add_u32 v10, s74, v10
    v_add_u32 v241, {UP}, v10
    v_add_u32 v242, s20, v1
    v_add_u32 v243, s21, v1
    s_mov_b32 s20, s71
    s_waitcnt vmcnt(0)""")
    a.e("\n".join(nonce_check(14, 4)))
    a.e(f"""s_mov_b64 exec, 1
    buffer_store_dword v14, off, s[52:55], s7 sc1
    s_mov_b64 exec, -1
    s_setprio 0""")
    a.stamp(4)
    a.e(f"s_cmp_eq_u32 s64, 1\ns_cbranch_scc1 {endlab}")
    def wl(k):
        o = ring_off(k)
        if k < NK: return "\n".join(wd_load(k))
        if k % 2 == 0:
            return f"""s_add_u32 m0, s74, {o}
            s_add_u32 s22, s68, {16*896}
            buffer_load_dwordx4 v7, s[44:47], s68 offen lds
            s_add_u32 m0, s74, {o + 1024}
            s_nop 0
            buffer_load_dwordx4 v8, s[44:47], s68 offen lds"""
        return f"""s_add_u32 m0, s74, {o}
            s_nop 0
            buffer_load_dwordx4 v7, s[44:47], s22 offen lds
            s_add_u32 m0, s74, {o + 1024}
            s_nop 0
            buffer_load_dwordx4 v9, s[44:47], s68 offen lds
            s_add_u32 s68, s68, {28*896}"""
    def wreg(k): return WF + 8 * (k & 1) if k < NK else WO + 8 * (k - NK)
    def wr(k):
        for e in range(2):
            for u in range(2):
                b = wreg(k) + 4 * e + 2 * u
                a.e(f"ds_read_b64_tr_b16 v[{b}:{b+1}], v{10 if k % RD < 6 else 241} offset:{(k % RD % 6)*2048 + u*1024 + e*64}")
    def hl(k):
        r = HR + 8 * (k % D)
        return f"""buffer_load_dwordx4 v[{r}:{r+3}], v242, s[52:55], s20 offen sc1
        s_add_u32 s5, s20, 1024
        buffer_load_dwordx4 v[{r+4}:{r+7}], v243, s[52:55], s20 offen sc1
        s_cmp_eq_u32 s5, {28*1024}
        s_cselect_b32 s20, 0, s5"""
    if JS:
        a.e("s_cmp_ge_u32 s61, 3\ns_cbranch_scc1 K3_JS")
        for k in range(6): a.e(wl(k))
        a.label("K3_JS")
    if not LAY:
        for k in range(6, RD): a.e(wl(k))
    a.e(f"""v_lshrrev_b32 v2, 3, v15
    v_and_b32 v245, 7, v15
    v_mul_u32_u24 v244, 896, v2
    v_lshl_add_u32 v244, v245, 4, v244
    s_mul_i32 s23, s63, {64*896}
    s_lshl_b32 s5, s65, 7
    s_add_u32 s23, s23, s5
    s_add_u32 s24, s23, {32*896}
    buffer_load_dwordx4 v[{XR[0]}:{XR[0]+3}], v244, s[32:35], s23 offen
    buffer_load_dwordx4 v[{XR[1]}:{XR[1]+3}], v244, s[32:35], s24 offen""")
    poll(a, [(6, 3, 69)], 14, 4, lanes=20 if LAY else 14)
    a.stamp(5)
    q = []
    def issue(txt, tag):
        a.e(txt); q.extend([tag, tag])
    def wait(tags):
        last = max([i for i, t in enumerate(q) if t in tags], default=-1)
        if last >= 0:
            a.e(f"s_waitcnt vmcnt({len(q) - 1 - last})"); del q[:last + 1]
    def mms(w, h, first=False):
        for e in range(2):
            for t in range(2):
                acc = AC + 16 * (2 * t + e)
                a.e(mf(acc, w + 4 * e, h + 4 * t, None if first else acc))
    for k in range(D): issue(hl(k), ("h", k))
    nw = [6 if LAY else RD]
    wr(0)
    for k in range(NK + 8):
        wait([("h", k), ("w", k + 1)])
        a.e("s_waitcnt lgkmcnt(0)")
        if k < NK: mms(wreg(k), HR + 8 * (k % D), k == 0)
        if k + 1 < NK + 8: wr(k + 1)
        if k + D < NK: issue(hl(k + D), ("h", k + D))
        for _ in range(2):
            if nw[0] <= k + RD and nw[0] < NK + 8:
                issue(wl(nw[0]), ("w", nw[0])); nw[0] += 1
    for b in range(16): a.e(f"v_and_b32 v{WO+4*b+3}, 0xffff, v{WO+4*b+3}")
    a.stamp(6)
    a.e(f"""v_and_b32 v10, 31, v0
    v_mul_u32_u24 v10, {RST}, v10
    v_lshrrev_b32 v11, 5, v0
    v_lshl_add_u32 v10, v11, 4, v10
    v_add_u32 v10, s74, v10
    v_add_u32 v13, {UP}, v10
    v_mul_u32_u24 v11, {RST}, v2
    v_lshl_add_u32 v11, v245, 5, v11
    v_add_u32 v11, {SLOT}, v11
    v_add_u32 v12, {UP}, v11
    v_and_b32 v8, 0x1fff, v14
    v_or_b32 v8, 0x2000, v8
    v_lshlrev_b32 v8, 16, v8
    s_add_u32 s69, s66, 4096
    s_add_u32 s70, s67, 4096
    v_and_b32 v9, 3, v0
    v_lshlrev_b32 v9, 11, v9
    v_bfe_u32 v4, v0, 2, 1
    v_mul_u32_u24 v4, {144*1024}, v4
    v_add_u32 v9, v9, v4""")
    def pwrite(nb, mid=None):
        for t in range(2):
            for e in range(2):
                for g in range(4):
                    acc = AC + 16 * (2 * t + e) + 4 * g
                    a.e(f"ds_write_b128 v{10+3*t}, v[{acc}:{acc+3}] offset:{e*128 + g*32}")
        a.e("s_waitcnt lgkmcnt(0)" + "\ns_barrier" * nb)
        if mid: mid()
        for i in range(2):
            for w in range(4):
                for h in range(2):
                    r = AC + 32 * i + 8 * w + 4 * h
                    a.e(f"ds_read_b128 v[{r}:{r+3}], v{11+i} offset:{w * 12288 + h * 16}")
    def mid():
        a.e("s_setprio 3")
        flagread(a, "K3_NOFB", 4 * SLOT)
        a.e("s_barrier\ns_barrier")
        a.label("K3_NOFB")
        a.stamp(7)
    pwrite(1, mid)
    for i in range(2):
        for r in range(4):
            a.e(f"v_lshlrev_b32 v{PS+8*i+2*r}, 16, v{XR[i]+r}\nv_and_b32 v{PS+8*i+2*r+1}, 0xffff0000, v{XR[i]+r}")
    def psum(i):
        a.e(f"s_waitcnt lgkmcnt({8 - 8*i})")
        for w in range(4):
            for r in range(8): a.e(f"v_add_f32 v{PS+8*i+r}, v{PS+8*i+r}, v{AC+32*i+8*w+r}")
    psum(0); psum(1)
    a.e("s_barrier")
    a.e(f"""s_mov_b32 s4, {SPIN}
    s_brev_b32 s5, 0xffff
    s_branch {'K3_OS' if TV == 1 else 'K3_OQ'}
    K3_OP:
    s_sleep {os.environ.get('SLO', 1)}
    K3_OQ:
    s_mov_b64 exec, 0xff
    buffer_load_dword v6, v9, s[52:55], s66 offen offset:2044 sc1
    s_sub_u32 s4, s4, 1
    s_waitcnt vmcnt(0)
    v_xor_b32 v6, v6, v8
    v_and_b32 v6, s5, v6
    v_cmp_ne_u32 vcc, 0, v6
    s_mov_b64 exec, -1
    s_cmp_eq_u32 s4, 0
    s_cbranch_scc1 K3_OE
    s_cmp_lg_u64 vcc, 0
    s_cbranch_scc1 K3_OP
    K3_OS:""")
    for b in range(8):
        r = OR_ + 8 * b
        a.e(f"""buffer_load_dwordx4 v[{r}:{r+3}], v1, s[52:55], s{66 if b < 4 else 69} offen offset:{(b&3)*1024} sc1
        buffer_load_dwordx4 v[{r+4}:{r+7}], v1, s[52:55], s{67 if b < 4 else 70} offen offset:{(b&3)*1024} sc1""")
    for b in range(8):
        r = OR_ + 8 * b
        a.e(f"s_waitcnt vmcnt({2*(7-b)})")
        mms(WO + 8 * b, r, b == 0)
        a.e(f"v_xor_b32 v4, v{r+3}, v8\nv_xor_b32 v5, v{r+7}, v8")
        a.e(f"v_or_b32 v6, v4, v5" if b == 0 else "v_or3_b32 v6, v4, v5, v6")
    a.e(f"""v_and_b32 v6, s5, v6
    v_cmp_ne_u32 vcc, 0, v6
    s_cmp_lg_u64 vcc, 0
    s_cbranch_scc1 K3_OP
    K3_OE:""")
    a.stamp(8)
    a.fence()
    pwrite(1)
    for i in range(2):
        psum(i)
        for r in range(4): a.e(f"v_cvt_pk_bf16_f32 v{XR[i]+r}, v{PS+8*i+2*r}, v{PS+8*i+2*r+1}")
        a.e(f"buffer_store_dwordx4 v[{XR[i]}:{XR[i]+3}], v244, s[36:39], s{23+i} offen{os.environ.get('OSC', '')}")
```

```python
from asmlib import *
from k1 import WS_Q, WS_KV, WS_ACT, WS_P, WS_SIZE, srd, f32, FL_H, poll, nonce_check, SPIN, SLP, SLOT, tile_np, RD, ring_off, wd_load, LAY, UP, JS
from k2 import mf, flagread
D = int(os.environ.get('D3', 3)); PH = int(os.environ.get('PH', 1)); NK = 28; TV = int(os.environ.get('TV', 0))
AC = 16; WO = 80; OR_ = 144; WF = 144; HR = 160; XR = [248, 252]; PS = 224
RST = 272
def ffn2(a, endlab):
    srd(a, 44, 16, 448*448*2); srd(a, 36, 26, 1835008)
    tile_np(a, 65, 4)
    a.e(f"""s_cselect_b32 s64, 1, 0
    s_lshl_b32 s69, s60, 13
    s_add_u32 s69, s69, {FL_H}
    s_lshl_b32 s5, s61, 9
    s_add_u32 s7, s69, s5
    s_lshl_b32 s5, s62, 7
    s_add_u32 s7, s7, s5
    s_lshr_b32 s3, s61, 3                ; half
    s_lshl_b32 s71, s63, 10
    s_lshl_b32 s63, s60, 1
    s_add_u32 s63, s63, s3               ; tp
    s_lshl_b32 s3, s3, 8
    s_add_u32 s69, s69, s3
    v_mov_b32 v1, v0
    v_lshrrev_b32 v0, 4, v0
    s_lshl_b32 s5, s62, 6
    v_add_u32 v15, s5, v0                ; tid
    s_mul_i32 s20, s63, {2*144*1024}
    s_add_u32 s20, s20, {WS_ACT}
    s_lshl_b32 s5, s62, 13
    s_add_u32 s66, s20, s5
    s_add_u32 s66, s66, {112*1024}
    s_add_u32 s67, s66, {144*1024}
    s_mul_i32 s5, s62, {NK*1024}
    s_add_u32 s20, s20, s5
    s_add_u32 s21, s20, {144*1024}
    s_lshl_b32 s5, s65, 7
    s_mul_i32 s68, s62, {112*896}
    s_add_u32 s68, s68, s5
    s_mul_i32 s5, s62, 7
    v_lshrrev_b32 v3, 1, v0
    v_min_u32 v3, 6, v3
    v_add_u32 v3, s5, v3                 ; sg
    v_lshrrev_b32 v4, 1, v3
    v_add_u32 v4, 4, v4
    v_subrev_u32 v5, 24, v3
    v_cmp_gt_u32 vcc, 24, v3
    v_cndmask_b32 v3, v5, v4, vcc        ; j
    v_and_b32 v4, 1, v0
    v_lshlrev_b32 v4, 7, v4
    v_lshl_add_u32 v3, v3, 9, v4
    s_lshl_b32 s5, s61, 9
    s_sub_u32 s5, s5, s3
    v_and_b32 v4, 3, v0
    v_lshl_add_u32 v4, v4, 7, s5
    v_cmp_lt_u32 vcc, 15, v0
    v_cndmask_b32 v3, v3, v4, vcc
    v_add_u32 v3, s69, v3
    s_mov_b32 s69, 0
    v_lshrrev_b32 v4, 3, v0
    v_and_b32 v5, 7, v0
    v_mul_u32_u24 v7, 896, v4
    v_lshl_add_u32 v7, v5, 4, v7         ; rows 0-7
    v_add_u32 v8, {8*896}, v7            ; rows 8-15
    s_mov_b32 s5, {(13<<0) | (18<<8) | (3<<16) | (4<<24)}
    v_lshlrev_b32 v5, 3, v4
    v_lshrrev_b32 v5, v5, s5
    v_and_b32 v5, 31, v5
    v_cmp_lt_u32 vcc, 3, v4
    v_cndmask_b32 v5, 0, v5, vcc
    v_sub_u32 v5, 24, v5
    v_mul_u32_u24 v5, 896, v5
    v_add_u32 v9, v7, v5
    v_lshrrev_b32 v4, 5, v0
    v_bfe_u32 v10, v0, 2, 2
    v_lshl_add_u32 v10, v4, 2, v10
    v_lshlrev_b32 v10, 7, v10
    v_bfe_u32 v4, v0, 4, 1
    v_lshl_add_u32 v10, v4, 5, v10
    v_and_b32 v4, 3, v0
    v_lshl_add_u32 v10, v4, 3, v10
    v_add_u32 v10, s74, v10
    v_add_u32 v241, {UP}, v10
    v_add_u32 v242, s20, v1
    v_add_u32 v243, s21, v1
    s_mov_b32 s20, s71
    s_waitcnt vmcnt(0)""")
    a.e("\n".join(nonce_check(14, 4)))
    a.e(f"""s_mov_b64 exec, 1
    buffer_store_dword v14, off, s[52:55], s7 sc1
    s_mov_b64 exec, -1
    s_setprio 0""")
    a.stamp(4)
    a.e(f"s_cmp_eq_u32 s64, 1\ns_cbranch_scc1 {endlab}")
    def wl(k):
        o = ring_off(k)
        if k < NK: return "\n".join(wd_load(k))
        if k % 2 == 0:
            return f"""s_add_u32 m0, s74, {o}
            s_add_u32 s22, s68, {16*896}
            buffer_load_dwordx4 v7, s[44:47], s68 offen lds
            s_add_u32 m0, s74, {o + 1024}
            s_nop 0
            buffer_load_dwordx4 v8, s[44:47], s68 offen lds"""
        return f"""s_add_u32 m0, s74, {o}
            s_nop 0
            buffer_load_dwordx4 v7, s[44:47], s22 offen lds
            s_add_u32 m0, s74, {o + 1024}
            s_nop 0
            buffer_load_dwordx4 v9, s[44:47], s68 offen lds
            s_add_u32 s68, s68, {28*896}"""
    def wreg(k): return WF + 8 * (k & 1) if k < NK else WO + 8 * (k - NK)
    def wr(k):
        for e in range(2):
            for u in range(2):
                b = wreg(k) + 4 * e + 2 * u
                a.e(f"ds_read_b64_tr_b16 v[{b}:{b+1}], v{10 if k % RD < 6 else 241} offset:{(k % RD % 6)*2048 + u*1024 + e*64}")
    def hl(k):
        r = HR + 8 * (k % D)
        return f"""buffer_load_dwordx4 v[{r}:{r+3}], v242, s[52:55], s20 offen sc1
        s_add_u32 s5, s20, 1024
        buffer_load_dwordx4 v[{r+4}:{r+7}], v243, s[52:55], s20 offen sc1
        s_cmp_eq_u32 s5, {28*1024}
        s_cselect_b32 s20, 0, s5"""
    if JS:
        a.e("s_cmp_ge_u32 s61, 3\ns_cbranch_scc1 K3_JS")
        for k in range(6): a.e(wl(k))
        a.label("K3_JS")
    if not LAY:
        for k in range(6, RD): a.e(wl(k))
    a.e(f"""v_lshrrev_b32 v2, 3, v15
    v_and_b32 v245, 7, v15
    v_mul_u32_u24 v244, 896, v2
    v_lshl_add_u32 v244, v245, 4, v244
    s_mul_i32 s23, s63, {64*896}
    s_lshl_b32 s5, s65, 7
    s_add_u32 s23, s23, s5
    s_add_u32 s24, s23, {32*896}
    buffer_load_dwordx4 v[{XR[0]}:{XR[0]+3}], v244, s[32:35], s23 offen
    buffer_load_dwordx4 v[{XR[1]}:{XR[1]+3}], v244, s[32:35], s24 offen""")
    poll(a, [(6, 3, 69)], 14, 4, lanes=20 if LAY else 14)
    a.stamp(5)
    q = []
    def issue(txt, tag):
        a.e(txt); q.extend([tag, tag])
    def wait(tags):
        last = max([i for i, t in enumerate(q) if t in tags], default=-1)
        if last >= 0:
            a.e(f"s_waitcnt vmcnt({len(q) - 1 - last})"); del q[:last + 1]
    def mms(w, h, first=False):
        for e in range(2):
            for t in range(2):
                acc = AC + 16 * (2 * t + e)
                a.e(mf(acc, w + 4 * e, h + 4 * t, None if first else acc))
    for k in range(D): issue(hl(k), ("h", k))
    nw = [6 if LAY else RD]
    wr(0)
    for k in range(NK + 8):
        wait([("h", k), ("w", k + 1)])
        a.e("s_waitcnt lgkmcnt(0)")
        if k < NK: mms(wreg(k), HR + 8 * (k % D), k == 0)
        if k + 1 < NK + 8: wr(k + 1)
        if k + D < NK: issue(hl(k + D), ("h", k + D))
        for _ in range(2):
            if nw[0] <= k + RD and nw[0] < NK + 8:
                issue(wl(nw[0]), ("w", nw[0])); nw[0] += 1
    for b in range(16): a.e(f"v_and_b32 v{WO+4*b+3}, 0xffff, v{WO+4*b+3}")
    a.stamp(6)
    a.e(f"""v_and_b32 v10, 31, v0
    v_mul_u32_u24 v10, {RST}, v10
    v_lshrrev_b32 v11, 5, v0
    v_lshl_add_u32 v10, v11, 4, v10
    v_add_u32 v10, s74, v10
    v_add_u32 v13, {UP}, v10
    v_mul_u32_u24 v11, {RST}, v2
    v_lshl_add_u32 v11, v245, 5, v11
    v_add_u32 v11, {SLOT}, v11
    v_add_u32 v12, {UP}, v11
    v_and_b32 v8, 0x1fff, v14
    v_or_b32 v8, 0x2000, v8
    v_lshlrev_b32 v8, 16, v8
    s_add_u32 s69, s66, 4096
    s_add_u32 s70, s67, 4096
    v_and_b32 v9, 3, v0
    v_lshlrev_b32 v9, 11, v9
    v_bfe_u32 v4, v0, 2, 1
    v_mul_u32_u24 v4, {144*1024}, v4
    v_add_u32 v9, v9, v4""")
    def pwrite(nb, mid=None):
        for t in range(2):
            for e in range(2):
                for g in range(4):
                    acc = AC + 16 * (2 * t + e) + 4 * g
                    a.e(f"ds_write_b128 v{10+3*t}, v[{acc}:{acc+3}] offset:{e*128 + g*32}")
        a.e("s_waitcnt lgkmcnt(0)" + "\ns_barrier" * nb)
        if mid: mid()
        for i in range(2):
            for w in range(4):
                for h in range(2):
                    r = AC + 32 * i + 8 * w + 4 * h
                    a.e(f"ds_read_b128 v[{r}:{r+3}], v{11+i} offset:{w * 12288 + h * 16}")
    def mid():
        a.e("s_setprio 3")
        flagread(a, "K3_NOFB", 4 * SLOT)
        a.e("s_barrier\ns_barrier")
        a.label("K3_NOFB")
        a.stamp(7)
    pwrite(1, mid)
    for i in range(2):
        for r in range(4):
            a.e(f"v_lshlrev_b32 v{PS+8*i+2*r}, 16, v{XR[i]+r}\nv_and_b32 v{PS+8*i+2*r+1}, 0xffff0000, v{XR[i]+r}")
    def psum(i):
        a.e(f"s_waitcnt lgkmcnt({8 - 8*i})")
        for w in range(4):
            for r in range(8): a.e(f"v_add_f32 v{PS+8*i+r}, v{PS+8*i+r}, v{AC+32*i+8*w+r}")
    psum(0); psum(1)
    if PH:
        for r in range(64): a.e(f"v_mov_b32 v{AC+r}, 0")
    a.e("s_barrier")
    if PH:
        a.e(f"""s_mov_b32 s4, {SPIN}
        s_brev_b32 s5, 0xffff
        s_mov_b32 s75, 0
        s_mov_b32 s76, 0
        K3_RND:""")
        for hd in range(4):
            a.e(f"s_bitcmp0_b32 s76, {hd}\ns_cbranch_scc1 K3_L{hd}")
            for b in (2 * hd, 2 * hd + 1):
                r = OR_ + 8 * b
                a.e(f"""buffer_load_dwordx4 v[{r}:{r+3}], v1, s[52:55], s{66 if b < 4 else 69} offen offset:{(b&3)*1024} sc1
                buffer_load_dwordx4 v[{r+4}:{r+7}], v1, s[52:55], s{67 if b < 4 else 70} offen offset:{(b&3)*1024} sc1""")
            a.label(f"K3_L{hd}")
        a.e(f"""s_or_b32 s6, s75, s76
        s_cmp_eq_u32 s6, 15
        s_cbranch_scc1 K3_NS
        s_mov_b64 exec, 0xff
        buffer_load_dword v6, v9, s[52:55], s66 offen offset:2044 sc1
        s_mov_b64 exec, -1
        K3_NS:
        s_waitcnt vmcnt(0)""")
        for hd in range(4):
            r = OR_ + 16 * hd
            a.e(f"""s_bitcmp0_b32 s76, {hd}
            s_cbranch_scc1 K3_M{hd}
            v_xor_b32 v4, v{r+3}, v8
            v_xor_b32 v5, v{r+7}, v8
            v_xor_b32 v3, v{r+11}, v8
            v_xor_b32 v7, v{r+15}, v8
            v_or3_b32 v4, v4, v5, v3
            v_or_b32 v4, v4, v7
            v_and_b32 v4, s5, v4
            v_cmp_ne_u32 vcc, 0, v4
            s_cmp_lg_u64 vcc, 0
            s_cbranch_scc1 K3_M{hd}
            s_bitset1_b32 s75, {hd}""")
            mms(WO + 16 * hd, r); mms(WO + 16 * hd + 8, r + 8)
            a.label(f"K3_M{hd}")
        a.e(f"""s_cmp_eq_u32 s75, 15
        s_cbranch_scc1 K3_OE
        v_xor_b32 v4, v6, v8
        v_and_b32 v4, s5, v4
        v_cmp_ne_u32 vcc, 0, v4
        s_sub_u32 s4, s4, 1
        s_lshr_b32 s6, vcc_lo, 4
        s_or_b32 s6, s6, vcc_lo
        s_or_b32 s6, s6, s75
        s_andn2_b32 s76, 15, s6
        s_cmp_lg_u32 s4, 0
        s_cbranch_scc1 K3_RND
        K3_OE:""")
    else:
        a.e(f"""s_mov_b32 s4, {SPIN}
        s_brev_b32 s5, 0xffff
        s_branch {'K3_OS' if TV == 1 else 'K3_OQ'}
        K3_OP:
        s_sleep {os.environ.get('SLO', 1)}
        K3_OQ:
        s_mov_b64 exec, 0xff
        buffer_load_dword v6, v9, s[52:55], s66 offen offset:2044 sc1
        s_sub_u32 s4, s4, 1
        s_waitcnt vmcnt(0)
        v_xor_b32 v6, v6, v8
        v_and_b32 v6, s5, v6
        v_cmp_ne_u32 vcc, 0, v6
        s_mov_b64 exec, -1
        s_cmp_eq_u32 s4, 0
        s_cbranch_scc1 K3_OE
        s_cmp_lg_u64 vcc, 0
        s_cbranch_scc1 K3_OP
        K3_OS:""")
        for b in range(8):
            r = OR_ + 8 * b
            a.e(f"""buffer_load_dwordx4 v[{r}:{r+3}], v1, s[52:55], s{66 if b < 4 else 69} offen offset:{(b&3)*1024} sc1
            buffer_load_dwordx4 v[{r+4}:{r+7}], v1, s[52:55], s{67 if b < 4 else 70} offen offset:{(b&3)*1024} sc1""")
        for b in range(8):
            r = OR_ + 8 * b
            a.e(f"s_waitcnt vmcnt({2*(7-b)})")
            mms(WO + 8 * b, r, b == 0)
            a.e(f"v_xor_b32 v4, v{r+3}, v8\nv_xor_b32 v5, v{r+7}, v8")
            a.e(f"v_or_b32 v6, v4, v5" if b == 0 else "v_or3_b32 v6, v4, v5, v6")
        a.e(f"""v_and_b32 v6, s5, v6
        v_cmp_ne_u32 vcc, 0, v6
        s_cmp_lg_u64 vcc, 0
        s_cbranch_scc1 K3_OP
        K3_OE:""")
    a.stamp(8)
    a.fence()
    pwrite(1)
    for i in range(2):
        psum(i)
        for r in range(4): a.e(f"v_cvt_pk_bf16_f32 v{XR[i]+r}, v{PS+8*i+2*r}, v{PS+8*i+2*r+1}")
        a.e(f"buffer_store_dwordx4 v[{XR[i]}:{XR[i]+3}], v244, s[36:39], s{23+i} offen{os.environ.get('OSC', '')}")
```

```python
from asmlib import *
from k1 import WS_Q, WS_KV, WS_ACT, WS_P, WS_SIZE, srd, f32, FL_H, poll, nonce_check, SPIN, SLP, SLOT, tile_np, RD, ring_off, wd_load, LAY, UP, JS
from k2 import mf, flagread
D = int(os.environ.get('D3', 3)); PH = int(os.environ.get('PH', 0)); NK = 28; TV = int(os.environ.get('TV', 0))
AC = 16; WO = 80; OR_ = 144; WF = 144; HR = 160; XR = [248, 252]; PS = 224
RST = 272
def ffn2(a, endlab):
    srd(a, 44, 16, 448*448*2); srd(a, 36, 26, 1835008)
    tile_np(a, 65, 4)
    a.e(f"""s_cselect_b32 s64, 1, 0
    s_lshl_b32 s69, s60, 13
    s_add_u32 s69, s69, {FL_H}
    s_lshl_b32 s5, s61, 9
    s_add_u32 s7, s69, s5
    s_lshl_b32 s5, s62, 7
    s_add_u32 s7, s7, s5
    s_lshr_b32 s3, s61, 3                ; half
    s_lshl_b32 s71, s63, 10
    s_lshl_b32 s63, s60, 1
    s_add_u32 s63, s63, s3               ; tp
    s_lshl_b32 s3, s3, 8
    s_add_u32 s69, s69, s3
    v_mov_b32 v1, v0
    v_lshrrev_b32 v0, 4, v0
    s_lshl_b32 s5, s62, 6
    v_add_u32 v15, s5, v0                ; tid
    s_mul_i32 s20, s63, {2*144*1024}
    s_add_u32 s20, s20, {WS_ACT}
    s_lshl_b32 s5, s62, 13
    s_add_u32 s66, s20, s5
    s_add_u32 s66, s66, {112*1024}
    s_add_u32 s67, s66, {144*1024}
    s_mul_i32 s5, s62, {NK*1024}
    s_add_u32 s20, s20, s5
    s_add_u32 s21, s20, {144*1024}
    s_lshl_b32 s5, s65, 7
    s_mul_i32 s68, s62, {112*896}
    s_add_u32 s68, s68, s5
    s_mul_i32 s5, s62, 7
    v_lshrrev_b32 v3, 1, v0
    v_min_u32 v3, 6, v3
    v_add_u32 v3, s5, v3                 ; sg
    v_lshrrev_b32 v4, 1, v3
    v_add_u32 v4, 4, v4
    v_subrev_u32 v5, 24, v3
    v_cmp_gt_u32 vcc, 24, v3
    v_cndmask_b32 v3, v5, v4, vcc        ; j
    v_and_b32 v4, 1, v0
    v_lshlrev_b32 v4, 7, v4
    v_lshl_add_u32 v3, v3, 9, v4
    s_lshl_b32 s5, s61, 9
    s_sub_u32 s5, s5, s3
    v_and_b32 v4, 3, v0
    v_lshl_add_u32 v4, v4, 7, s5
    v_cmp_lt_u32 vcc, 15, v0
    v_cndmask_b32 v3, v3, v4, vcc
    v_add_u32 v3, s69, v3
    s_mov_b32 s69, 0
    v_lshrrev_b32 v4, 3, v0
    v_and_b32 v5, 7, v0
    v_mul_u32_u24 v7, 896, v4
    v_lshl_add_u32 v7, v5, 4, v7         ; rows 0-7
    v_add_u32 v8, {8*896}, v7            ; rows 8-15
    s_mov_b32 s5, {(13<<0) | (18<<8) | (3<<16) | (4<<24)}
    v_lshlrev_b32 v5, 3, v4
    v_lshrrev_b32 v5, v5, s5
    v_and_b32 v5, 31, v5
    v_cmp_lt_u32 vcc, 3, v4
    v_cndmask_b32 v5, 0, v5, vcc
    v_sub_u32 v5, 24, v5
    v_mul_u32_u24 v5, 896, v5
    v_add_u32 v9, v7, v5
    v_lshrrev_b32 v4, 5, v0
    v_bfe_u32 v10, v0, 2, 2
    v_lshl_add_u32 v10, v4, 2, v10
    v_lshlrev_b32 v10, 7, v10
    v_bfe_u32 v4, v0, 4, 1
    v_lshl_add_u32 v10, v4, 5, v10
    v_and_b32 v4, 3, v0
    v_lshl_add_u32 v10, v4, 3, v10
    v_add_u32 v10, s74, v10
    v_add_u32 v241, {UP}, v10
    v_add_u32 v242, s20, v1
    v_add_u32 v243, s21, v1
    s_mov_b32 s20, s71
    s_waitcnt vmcnt(0)""")
    a.e("\n".join(nonce_check(14, 4)))
    a.e(f"""s_mov_b64 exec, 1
    buffer_store_dword v14, off, s[52:55], s7 sc1
    s_mov_b64 exec, -1
    s_setprio 0""")
    a.stamp(4)
    a.e(f"s_cmp_eq_u32 s64, 1\ns_cbranch_scc1 {endlab}")
    def wl(k):
        o = ring_off(k)
        if k < NK: return "\n".join(wd_load(k))
        if k % 2 == 0:
            return f"""s_add_u32 m0, s74, {o}
            s_add_u32 s22, s68, {16*896}
            buffer_load_dwordx4 v7, s[44:47], s68 offen lds
            s_add_u32 m0, s74, {o + 1024}
            s_nop 0
            buffer_load_dwordx4 v8, s[44:47], s68 offen lds"""
        return f"""s_add_u32 m0, s74, {o}
            s_nop 0
            buffer_load_dwordx4 v7, s[44:47], s22 offen lds
            s_add_u32 m0, s74, {o + 1024}
            s_nop 0
            buffer_load_dwordx4 v9, s[44:47], s68 offen lds
            s_add_u32 s68, s68, {28*896}"""
    def wreg(k): return WF + 8 * (k & 1) if k < NK else WO + 8 * (k - NK)
    def wr(k):
        for e in range(2):
            for u in range(2):
                b = wreg(k) + 4 * e + 2 * u
                a.e(f"ds_read_b64_tr_b16 v[{b}:{b+1}], v{10 if k % RD < 6 else 241} offset:{(k % RD % 6)*2048 + u*1024 + e*64}")
    def hl(k):
        r = HR + 8 * (k % D)
        return f"""buffer_load_dwordx4 v[{r}:{r+3}], v242, s[52:55], s20 offen sc1
        s_add_u32 s5, s20, 1024
        buffer_load_dwordx4 v[{r+4}:{r+7}], v243, s[52:55], s20 offen sc1
        s_cmp_eq_u32 s5, {28*1024}
        s_cselect_b32 s20, 0, s5"""
    if JS:
        a.e("s_cmp_ge_u32 s61, 3\ns_cbranch_scc1 K3_JS")
        for k in range(6): a.e(wl(k))
        a.label("K3_JS")
    if not LAY:
        for k in range(6, RD): a.e(wl(k))
    a.e(f"""v_lshrrev_b32 v2, 3, v15
    v_and_b32 v245, 7, v15
    v_mul_u32_u24 v244, 896, v2
    v_lshl_add_u32 v244, v245, 4, v244
    s_mul_i32 s23, s63, {64*896}
    s_lshl_b32 s5, s65, 7
    s_add_u32 s23, s23, s5
    s_add_u32 s24, s23, {32*896}
    buffer_load_dwordx4 v[{XR[0]}:{XR[0]+3}], v244, s[32:35], s23 offen
    buffer_load_dwordx4 v[{XR[1]}:{XR[1]+3}], v244, s[32:35], s24 offen""")
    poll(a, [(6, 3, 69)], 14, 4, lanes=20 if LAY else 14)
    a.stamp(5)
    q = []
    def issue(txt, tag):
        a.e(txt); q.extend([tag, tag])
    def wait(tags):
        last = max([i for i, t in enumerate(q) if t in tags], default=-1)
        if last >= 0:
            a.e(f"s_waitcnt vmcnt({len(q) - 1 - last})"); del q[:last + 1]
    def mms(w, h, first=False):
        for e in range(2):
            for t in range(2):
                acc = AC + 16 * (2 * t + e)
                a.e(mf(acc, w + 4 * e, h + 4 * t, None if first else acc))
    for k in range(D): issue(hl(k), ("h", k))
    nw = [6 if LAY else RD]
    wr(0)
    for k in range(NK + 8):
        wait([("h", k), ("w", k + 1)])
        a.e("s_waitcnt lgkmcnt(0)")
        if k < NK: mms(wreg(k), HR + 8 * (k % D), k == 0)
        if k + 1 < NK + 8: wr(k + 1)
        if k + D < NK: issue(hl(k + D), ("h", k + D))
        for _ in range(2):
            if nw[0] <= k + RD and nw[0] < NK + 8:
                issue(wl(nw[0]), ("w", nw[0])); nw[0] += 1
    for b in range(16): a.e(f"v_and_b32 v{WO+4*b+3}, 0xffff, v{WO+4*b+3}")
    a.stamp(6)
    a.e(f"""v_and_b32 v10, 31, v0
    v_mul_u32_u24 v10, {RST}, v10
    v_lshrrev_b32 v11, 5, v0
    v_lshl_add_u32 v10, v11, 4, v10
    v_add_u32 v10, s74, v10
    v_add_u32 v13, {UP}, v10
    v_mul_u32_u24 v11, {RST}, v2
    v_lshl_add_u32 v11, v245, 5, v11
    v_add_u32 v11, {SLOT}, v11
    v_add_u32 v12, {UP}, v11
    v_and_b32 v8, 0x1fff, v14
    v_or_b32 v8, 0x2000, v8
    v_lshlrev_b32 v8, 16, v8
    s_add_u32 s69, s66, 4096
    s_add_u32 s70, s67, 4096
    v_and_b32 v9, 3, v0
    v_lshlrev_b32 v9, 11, v9
    v_bfe_u32 v4, v0, 2, 1
    v_mul_u32_u24 v4, {144*1024}, v4
    v_add_u32 v9, v9, v4""")
    def pwrite(nb, mid=None):
        for t in range(2):
            for e in range(2):
                for g in range(4):
                    acc = AC + 16 * (2 * t + e) + 4 * g
                    a.e(f"ds_write_b128 v{10+3*t}, v[{acc}:{acc+3}] offset:{e*128 + g*32}")
        a.e("s_waitcnt lgkmcnt(0)" + "\ns_barrier" * nb)
        if mid: mid()
        for i in range(2):
            for w in range(4):
                for h in range(2):
                    r = AC + 32 * i + 8 * w + 4 * h
                    a.e(f"ds_read_b128 v[{r}:{r+3}], v{11+i} offset:{w * 12288 + h * 16}")
    def mid():
        a.e("s_setprio 3")
        flagread(a, "K3_NOFB", 4 * SLOT)
        a.e("s_barrier\ns_barrier")
        a.label("K3_NOFB")
        a.stamp(7)
    pwrite(1, mid)
    for i in range(2):
        for r in range(4):
            a.e(f"v_lshlrev_b32 v{PS+8*i+2*r}, 16, v{XR[i]+r}\nv_and_b32 v{PS+8*i+2*r+1}, 0xffff0000, v{XR[i]+r}")
    def psum(i):
        a.e(f"s_waitcnt lgkmcnt({8 - 8*i})")
        for w in range(4):
            for r in range(8): a.e(f"v_add_f32 v{PS+8*i+r}, v{PS+8*i+r}, v{AC+32*i+8*w+r}")
    psum(0); psum(1)
    if PH:
        for r in range(64): a.e(f"v_mov_b32 v{AC+r}, 0")
    a.e("s_barrier")
    if PH:
        a.e(f"""s_mov_b32 s4, {SPIN}
        s_brev_b32 s5, 0xffff
        s_mov_b32 s75, 0
        s_mov_b32 s76, 0
        K3_RND:""")
        for hd in range(4):
            a.e(f"s_bitcmp0_b32 s76, {hd}\ns_cbranch_scc1 K3_L{hd}")
            for b in (2 * hd, 2 * hd + 1):
                r = OR_ + 8 * b
                a.e(f"""buffer_load_dwordx4 v[{r}:{r+3}], v1, s[52:55], s{66 if b < 4 else 69} offen offset:{(b&3)*1024} sc1
                buffer_load_dwordx4 v[{r+4}:{r+7}], v1, s[52:55], s{67 if b < 4 else 70} offen offset:{(b&3)*1024} sc1""")
            a.label(f"K3_L{hd}")
        a.e(f"""s_or_b32 s6, s75, s76
        s_cmp_eq_u32 s6, 15
        s_cbranch_scc1 K3_NS
        s_mov_b64 exec, 0xff
        buffer_load_dword v6, v9, s[52:55], s66 offen offset:2044 sc1
        s_mov_b64 exec, -1
        K3_NS:
        s_waitcnt vmcnt(0)""")
        for hd in range(4):
            r = OR_ + 16 * hd
            a.e(f"""s_bitcmp0_b32 s76, {hd}
            s_cbranch_scc1 K3_M{hd}
            v_xor_b32 v4, v{r+3}, v8
            v_xor_b32 v5, v{r+7}, v8
            v_xor_b32 v3, v{r+11}, v8
            v_xor_b32 v7, v{r+15}, v8
            v_or3_b32 v4, v4, v5, v3
            v_or_b32 v4, v4, v7
            v_and_b32 v4, s5, v4
            v_cmp_ne_u32 vcc, 0, v4
            s_cmp_lg_u64 vcc, 0
            s_cbranch_scc1 K3_M{hd}
            s_bitset1_b32 s75, {hd}""")
            mms(WO + 16 * hd, r); mms(WO + 16 * hd + 8, r + 8)
            a.label(f"K3_M{hd}")
        a.e(f"""s_cmp_eq_u32 s75, 15
        s_cbranch_scc1 K3_OE
        v_xor_b32 v4, v6, v8
        v_and_b32 v4, s5, v4
        v_cmp_ne_u32 vcc, 0, v4
        s_sub_u32 s4, s4, 1
        s_lshr_b32 s6, vcc_lo, 4
        s_or_b32 s6, s6, vcc_lo
        s_or_b32 s6, s6, s75
        s_andn2_b32 s76, 15, s6
        s_cmp_lg_u32 s4, 0
        s_cbranch_scc1 K3_RND
        K3_OE:
        s_nop 7
        s_nop 3""")
    else:
        a.e(f"""s_mov_b32 s4, {SPIN}
        s_brev_b32 s5, 0xffff
        s_branch {'K3_OS' if TV == 1 else 'K3_OQ'}
        K3_OP:
        s_sleep {os.environ.get('SLO', 1)}
        K3_OQ:
        s_mov_b64 exec, 0xff
        buffer_load_dword v6, v9, s[52:55], s66 offen offset:2044 sc1
        s_sub_u32 s4, s4, 1
        s_waitcnt vmcnt(0)
        v_xor_b32 v6, v6, v8
        v_and_b32 v6, s5, v6
        v_cmp_ne_u32 vcc, 0, v6
        s_mov_b64 exec, -1
        s_cmp_eq_u32 s4, 0
        s_cbranch_scc1 K3_OE
        s_cmp_lg_u64 vcc, 0
        s_cbranch_scc1 K3_OP
        K3_OS:""")
        for b in range(8):
            r = OR_ + 8 * b
            a.e(f"""buffer_load_dwordx4 v[{r}:{r+3}], v1, s[52:55], s{66 if b < 4 else 69} offen offset:{(b&3)*1024} sc1
            buffer_load_dwordx4 v[{r+4}:{r+7}], v1, s[52:55], s{67 if b < 4 else 70} offen offset:{(b&3)*1024} sc1""")
        for b in range(8):
            r = OR_ + 8 * b
            a.e(f"s_waitcnt vmcnt({2*(7-b)})")
            mms(WO + 8 * b, r, b == 0)
            a.e(f"v_xor_b32 v4, v{r+3}, v8\nv_xor_b32 v5, v{r+7}, v8")
            a.e(f"v_or_b32 v6, v4, v5" if b == 0 else "v_or3_b32 v6, v4, v5, v6")
        a.e(f"""v_and_b32 v6, s5, v6
        v_cmp_ne_u32 vcc, 0, v6
        s_cmp_lg_u64 vcc, 0
        s_cbranch_scc1 K3_OP
        K3_OE:""")
    a.stamp(8)
    a.fence()
    pwrite(1)
    for i in range(2):
        psum(i)
        for r in range(4): a.e(f"v_cvt_pk_bf16_f32 v{XR[i]+r}, v{PS+8*i+2*r}, v{PS+8*i+2*r+1}")
        a.e(f"buffer_store_dwordx4 v[{XR[i]}:{XR[i]+3}], v244, s[36:39], s{23+i} offen{os.environ.get('OSC', '')}")
```
